```python
import torch

def _softmax(x, axis=-1):
    return torch.softmax(x, dim=axis)

def _gelu(x):
    return torch.nn.functional.gelu(x, approximate='tanh')

def _silu(x):
    return torch.nn.functional.silu(x)

def _sigmoid(x):
    return torch.sigmoid(x)

def _layernorm(x, axis=-1, eps=1e-05):
    m = x.mean(dim=axis, keepdim=True)
    v = x.var(dim=axis, keepdim=True, unbiased=False)
    return (x - m) / torch.sqrt(v + eps)

def _scatter_add(tgt, idx, src, axis=0):
    return tgt.clone().index_add_(axis, idx, src)

def _segment_sum(src, seg, n):
    out = torch.zeros((n,) + src.shape[1:], dtype=src.dtype)
    return out.index_add_(0, seg, src)

def _pad(x, pw):
    flat = tuple((v for pair in reversed(pw) for v in pair))
    return torch.nn.functional.pad(x, flat)
kernel_name = 'adaLN_cond__compressed_kv_cla__geglu_ffn__prompt'

def setup_inputs():

    _w = lambda a: (lambda t: t.to(torch.bfloat16) if t.is_floating_point() else t)(torch.as_tensor(a))

    def _A_setup():
        B, H, Sq, Sk, D, M = (1, 32, 2048, 2048, 128, 512)
        Dc = 4 * D
        return {'x': _w((lambda *s: torch.randn(*s, dtype=torch.bfloat16) * 0.05)(B, Sq, M)), 'c_kv': _w((lambda *s: torch.randn(*s, dtype=torch.bfloat16) * 1.6)(B, Sk, Dc)), 'w_q': _w((lambda *s: torch.randn(*s, dtype=torch.bfloat16) * 0.8)(M, H, D) * M ** (-0.5)), 'w_uk': _w((lambda *s: torch.randn(*s, dtype=torch.bfloat16) * 0.8)(Dc, H, D) * Dc ** (-0.5)), 'w_uv': _w((lambda *s: torch.randn(*s, dtype=torch.bfloat16) * 1.6)(Dc, H, D) * Dc ** (-0.5)), 'w_o': _w((lambda *s: torch.randn(*s, dtype=torch.bfloat16) * 1.6)(H, D, M) * (H * D) ** (-0.5))}
    _A_in = _A_setup()

    def _B_setup():
        B, S, D, F = (1, 2048, 512, 1376)
        return {'x': _w((lambda *s: torch.randn(*s, dtype=torch.bfloat16) * 0.05)(B, S, D)), 'w_gate': _w((lambda *s: torch.randn(*s, dtype=torch.bfloat16) * 0.05)(D, F)), 'w_up': _w((lambda *s: torch.randn(*s, dtype=torch.bfloat16) * 0.05)(D, F)), 'w_down': _w((lambda *s: torch.randn(*s, dtype=torch.bfloat16) * 0.05)(F, D))}
    _B_in = _B_setup()
    return {'A_x': _A_in['x'], 'A_c_kv': _A_in['c_kv'], 'A_w_q': _A_in['w_q'], 'A_w_uk': _A_in['w_uk'], 'A_w_uv': _A_in['w_uv'], 'A_w_o': _A_in['w_o'], 'B_x': _B_in['x'], 'B_w_gate': _B_in['w_gate'], 'B_w_up': _B_in['w_up'], 'B_w_down': _B_in['w_down'], 'c': _w((lambda *s: torch.randn(*s, dtype=torch.bfloat16) * 0.1)(1, 512) * 8.0), 'w_mod': _w((lambda *s: torch.randn(*s, dtype=torch.bfloat16) * 0.1)(512, 6 * 512) * 512 ** (-0.5) * 8.0)}

def reference(A_x, A_c_kv, A_w_q, A_w_uk, A_w_uv, A_w_o, B_x, B_w_gate, B_w_up, B_w_down, c, w_mod):

    def _A_ref(x, c_kv, w_q, w_uk, w_uv, w_o):
        B, Sq, M = (x.shape[0], x.shape[1], x.shape[2])
        Sk = c_kv.shape[1]
        H, D = (w_q.shape[1], w_q.shape[2])
        q = torch.einsum('bqm,mhd->bhqd', x, w_q)
        k = torch.einsum('bkc,chd->bhkd', c_kv, w_uk)
        v = torch.einsum('bkc,chd->bhkd', c_kv, w_uv)
        scores = torch.einsum('bhqd,bhkd->bhqk', q, k) * D ** (-0.5)
        off = Sk - Sq
        qi = torch.arange(Sq)[:, None]
        kj = torch.arange(Sk)[None, :]
        cmask = kj <= qi + off
        scores = torch.where(cmask[None, None], scores, -1000000000.0)
        p = _softmax(scores, axis=-1)
        ctx = torch.einsum('bhqk,bhkd->bhqd', p, v)
        return torch.einsum('bhqd,hdm->bqm', ctx, w_o)

    def _B_ref(x, w_gate, w_up, w_down):
        return _gelu(x @ w_gate) * (x @ w_up) @ w_down
    x = A_x
    mod = (_silu(c) @ w_mod).reshape(c.shape[0], 6, 1, -1)
    sa, ca, ga, sb, cb, gb = (mod[:, 0].clone(), mod[:, 1].clone(), mod[:, 2].clone(), mod[:, 3].clone(), mod[:, 4].clone(), mod[:, 5].clone())
    h = _layernorm(x, axis=-1) * (1 + ca) + sa
    x = x + ga * _A_ref(h, A_c_kv, A_w_q, A_w_uk, A_w_uv, A_w_o)
    h = _layernorm(x, axis=-1) * (1 + cb) + sb
    x = x + gb * _B_ref(h, B_w_gate, B_w_up, B_w_down)
    return x
```

```python
import re

def v(i, n=1): return f"v{i}" if n == 1 else f"v[{i}:{i+n-1}]"
def a(i, n=1): return f"a{i}" if n == 1 else f"a[{i}:{i+n-1}]"
def s(i, n=1): return f"s{i}" if n == 1 else f"s[{i}:{i+n-1}]"

class Asm:
    def __init__(self):
        self.lines = []
        self.uid = 0
    def __call__(self, txt):
        for l in txt.split("\n"):
            l = l.strip()
            if l:
                self.lines.append(l)
    def label(self, name): self.lines.append(name + ":")
    def newlabel(self, p="L"):
        self.uid += 1
        return f"{p}_{self.uid}"
    def extend(self, lst):
        for x in lst: self(x)
    def text(self):
        out = []
        for l in self.lines:
            if l.endswith(":") or l.startswith("."):
                out.append(l)
            else:
                out.append("  " + l)
        return "\n".join(out) + "\n"

def interleave(main, fill, start=0, end=None, per=None):
    end = len(main) if end is None else end
    n = end - start
    out = []
    slots = [[] for _ in main]
    for i, f in enumerate(fill):
        g = start + (i * n) // len(fill) if per is None else start + i // per
        slots[min(g, len(main) - 1)].append(f)
    for m, sl in zip(main, slots):
        out.append(m)
        for f in sl:
            if isinstance(f, (list, tuple)): out.extend(f)
            else: out.append(f)
    return out

_REG = re.compile(r"\b([vas])(\d+)\b|\b([vas])\[(\d+):(\d+)\]|\b(vcc|exec|m0|scc)\b(?:_lo|_hi)?")
def regs_of(op):
    out = set()
    for m in _REG.finditer(op):
        if m.group(1): out.add((m.group(1), int(m.group(2))))
        elif m.group(3):
            for i in range(int(m.group(4)), int(m.group(5)) + 1): out.add((m.group(3), i))
        else: out.add((m.group(6), 0))
    return out

TRANS = ("v_exp_f32", "v_log_f32", "v_rcp_f32", "v_rsq_f32", "v_sqrt_f32", "v_sin_f32", "v_cos_f32", "v_rcp_iflag_f32")
class Ins:
    def __init__(self, txt, idx):
        self.txt = txt; self.idx = idx
        t = txt.split(";")[0].strip()
        parts = t.split(None, 1)
        self.op = parts[0]
        rest = parts[1] if len(parts) > 1 else ""
        ops = []; depth = 0; cur = ""
        for ch in rest:
            if ch == "[": depth += 1
            if ch == "]": depth -= 1
            if ch == "," and depth == 0: ops.append(cur.strip()); cur = ""
            else: cur += ch
        if cur.strip(): ops.append(cur.strip())
        self.ops = ops
        op = self.op
        self.is_mfma = op.startswith("v_mfma")
        self.is_valu = op.startswith("v_") and not self.is_mfma
        self.is_salu = op.startswith("s_")
        self.is_ds = op.startswith("ds_")
        self.is_vmem = op.startswith(("buffer_", "global_", "flat_"))
        self.is_trans = op.replace("_e32", "").replace("_e64", "") in TRANS
        self.dpp = "_dpp" in op or "row_" in rest or "quad_perm" in rest
        self.w = set(); self.r = set()
        R = [regs_of(o.split(" ")[0] if not o.startswith(("abs", "-", "|")) else o) for o in ops]
        self.R = R
        if self.is_mfma:
            self.w = R[0]; self.A = R[1]; self.B = R[2]; self.C = R[3]; self.r = R[1] | R[2] | R[3]
            self.passes = 8 if "32x32x16" in op else 4 if "16x16x32" in op else None
            assert self.passes, op
        elif self.is_valu:
            if op.startswith("v_cmp"):
                self.w = set(R[0]); self.r = set().union(*R[1:])
                if op.startswith("v_cmpx"): self.w.add(("exec", 0))
            elif op.startswith(("v_permlane32_swap", "v_permlane16_swap", "v_swap")):
                self.w = R[0] | R[1]; self.r = R[0] | R[1]
            elif op.startswith(("v_add_co", "v_sub_co", "v_addc_co", "v_subb_co", "v_subrev_co", "v_mad_u64", "v_div_scale")):
                self.w = R[0] | R[1]; self.r = set().union(*R[2:])
            elif op == "v_nop":
                pass
            else:
                self.w = set(R[0]); self.r = set().union(*R[1:]) if len(R) > 1 else set()
                if op.startswith(("v_fmac", "v_dot2c", "v_pk_fmac", "v_writelane")) or self.dpp: self.r |= R[0]
                if op.startswith("v_cndmask") and len(ops) == 3: self.r.add(("vcc", 0))
        elif self.is_ds:
            if "read" in op or "bpermute" in op or "permute" in op or "swizzle" in op:
                self.w = R[0]; self.r = set().union(*R[1:])
            else:
                self.r = set().union(*R)
        elif self.is_vmem:
            lds = " lds" in (" " + rest) and rest.strip().endswith("lds") or "load_lds" in op or re.search(r"\blds\b", rest)
            self.lds = bool(lds)
            if "load" in op and not lds:
                self.w = R[0]; self.r = set().union(*R[1:])
            elif R:
                self.r = set().union(*R)
                if lds: self.r.add(("m0", 0))
                if "atomic" in op and "sc0" in rest: self.w = R[0]
            self.store_data = R[0] if ("store" in op and op.startswith("buffer")) else (R[1] if "store" in op and len(R) > 1 else set())
            self.wide = "x4" in op or "x3" in op
        elif self.is_salu:
            if op.startswith(("s_cmp", "s_cbranch", "s_branch", "s_waitcnt", "s_nop", "s_barrier", "s_endpgm", "s_setprio", "s_sleep", "s_bitcmp", "s_setpc")):
                self.r = set().union(*R) if R else set()
            else:
                self.w = set(R[0]) if R else set(); self.r = set().union(*R[1:]) if len(R) > 1 else set()
                if "saveexec" in op: self.w.add(("exec", 0))
        self.states = 1
        if op == "s_nop": self.states = int(ops[0], 0) + 1

def need(p, c):
    n = 0
    vw = {x for x in p.w if x[0] in "va"}
    sw = {x for x in p.w if x[0] in ("s", "vcc")}
    if p.is_mfma:
        D = p.w; P = p.passes
        if c.is_mfma:
            if c.C & D:
                if c.C == D and c.passes == P: n = max(n, 0)
                else: n = max(n, {4: 6, 8: 10}[P])
            if (c.A | c.B) & D: n = max(n, {4: 8, 8: 12}[P])
            if c.w & D and not (c.C == D): n = max(n, {4: 8, 8: 12}[P])
        elif c.is_valu or c.is_vmem or c.is_ds:
            if (c.r | c.w) & D: n = max(n, {4: 8, 8: 12}[P])
        if c.is_valu and (c.w & p.C): n = max(n, {4: 3, 8: 7}[P])
        if (c.is_ds or c.is_vmem) and (c.w & p.C): n = max(n, {4: 3, 8: 7}[P])
    if p.is_valu:
        if c.is_mfma and (c.r & vw): n = max(n, 2)
        if c.is_mfma and ("exec", 0) in p.w: n = max(n, 4)
        if c.is_vmem and (c.r & sw): n = max(n, 5)
        if c.is_valu:
            if c.dpp and (c.r & vw): n = max(n, 2)
            if c.dpp and ("exec", 0) in p.w: n = max(n, 5)
            if c.r & sw: n = max(n, 2)
            if c.op.startswith(("v_readlane", "v_writelane")) and len(c.R) > 2 and (c.R[2] & sw): n = max(n, 4)
            if c.op.startswith(("v_readlane", "v_readfirstlane")) and (c.r & vw): n = max(n, 1)
            if c.op.startswith("v_permlane") and (c.r & vw): n = max(n, 2)
            if p.is_trans and not c.is_trans and (c.r & vw): n = max(n, 1)
            if ("sdwa" in p.op and "dst_sel:DWORD" not in p.txt) and ((c.r | c.w) & vw): n = max(n, 1)
            if p.op.startswith("v_dot") and ((c.r | c.w) & vw) and not (c.op == p.op and len(c.R) > 3 and c.R[3] & vw and not ((c.R[1] | c.R[2]) & vw)): n = max(n, 3)
            if ("exec", 0) in p.w and c.op.startswith(("v_readlane", "v_readfirstlane", "v_writelane", "v_permlane")): n = max(n, 4)
            if c.op.startswith("v_div_fmas") and ("vcc", 0) in p.w: n = max(n, 4)
        if p.op.startswith("v_dot") and (c.is_mfma or c.is_vmem or c.is_ds) and (c.r & vw): n = max(n, 3)
        if p.is_trans and (c.is_mfma) and (c.r & vw): n = max(n, 2)
    if p.is_vmem and "store" in p.op and p.wide:
        if (c.is_valu or c.is_mfma) and (c.w & p.store_data): n = max(n, 2)
        elif c.w & p.store_data: n = max(n, 1)
    if p.is_salu and ("m0", 0) in p.w:
        if c.is_vmem and getattr(c, "lds", False): n = max(n, 1)
    return n

def check_hazards(lines, verbose=True):
    ins = []; labels = {}
    for l in lines:
        t = l.split(";")[0].strip()
        if not t or t.startswith("."): continue
        if t.endswith(":"):
            labels[t[:-1]] = len(ins); continue
        ins.append(Ins(t, len(ins)))
    def succ(i):
        x = ins[i]
        if x.op == "s_endpgm" or x.op.startswith("s_setpc"): return []
        if x.op == "s_branch": return [labels[x.ops[0]]]
        if x.op.startswith("s_cbranch"): return [labels[x.ops[0]], i + 1]
        if x.op == "s_call_b64": return [labels[x.ops[1]], i + 1]
        return [i + 1]
    probs = []
    for i, p in enumerate(ins):
        if not (p.is_mfma or p.is_valu or (p.is_vmem and "store" in p.op) or (p.is_salu and ("m0", 0) in p.w)): continue
        lim = 12 if p.is_mfma else 5
        stack = [(j, 0) for j in succ(i)]
        seen = {}
        while stack:
            j, d = stack.pop()
            if j >= len(ins) or d >= lim: continue
            if j in seen and seen[j] <= d: continue
            seen[j] = d
            c = ins[j]
            n = need(p, c)
            if n > d:
                probs.append((p.txt, c.txt, n, d))
            for k in succ(j): stack.append((k, d + c.states))
    if verbose:
        for pr in probs[:40]:
            print("HAZARD: '%s' -> '%s' need %d have %d" % pr)
        print(f"hazard check: {len(ins)} instrs, {len(probs)} problems")
    return probs

def _cls(l):
    op = l.split()[0]
    if op.startswith(("buffer_", "global_")) and op not in ("buffer_wbl2", "buffer_inv"): return "vm"
    if op.startswith("ds_"): return "lgkm"
    return None
def _tag(l):
    i = l.find(";@")
    return l[i+2:].split()[0].split(",") if i >= 0 else []

def resolve_waits(lines):
    loops = {}
    for i, l in enumerate(lines):
        if l.startswith("@loop_begin"): loops.setdefault(l.split()[1], [None, None])[0] = i
        if l.startswith("@loop_end"): loops.setdefault(l.split()[1], [None, None])[1] = i
    def count_back(i, cls, tag, wrap):
        n = 0; j = i - 1; wrapped = False
        while j >= 0:
            l = lines[j]
            if l.startswith("@loop_begin") and wrap and not wrapped:
                nm = l.split()[1]
                if loops[nm][1] > i:
                    j = loops[nm][1] - 1; wrapped = True; continue
            if not l.startswith("@") and not l.endswith(":") and _cls(l) == cls and "cond" not in _tag(l):
                if tag in _tag(l): return n
                n += 1
            j -= 1
        return None
    out = []
    for i, l in enumerate(lines):
        if l.startswith("@wait"):
            p = l.split()[1:]
            parts = []
            for k in range(0, len(p), 2):
                cls, tag = p[k], p[k+1]
                c1 = count_back(i, cls, tag, False)
                c2 = count_back(i, cls, tag, True)
                cs = [c for c in (c1, c2) if c is not None]
                assert cs, f"tag {tag} not found for {l}"
                c = min(cs)
                mx = 63 if cls == "vm" else 15
                c = min(c, mx)
                parts.append(f"{'vmcnt' if cls == 'vm' else 'lgkmcnt'}({c})")
            out.append("s_waitcnt " + " ".join(parts) + "  ; " + l[1:])
        elif l.startswith("@loop"):
            continue
        else:
            out.append(l)
    return out
```

```python
import sys
from asmlib import *

NAME = "adaLN_cond__compressed_kv_cla__geglu_ffn__prompt"
MB = 1 << 20
WS_KF, WS_VF, WS_CTX, WS_XH, WS_X1, WS_G, WS_MOD, WS_STAT = 0, 16*MB, 32*MB, 48*MB, 50*MB, 52*MB, 58*MB, 58*MB + 65536
WS_MODB, WS_UB, WS_Y = 58*MB + 16384, 58*MB + 32768, 62*MB
ARG = dict(x=0, ckv=8, wq=16, wuk=24, wuv=32, wo=40, bx=48, wg=56, wu=64, wd=72, c=80, wmod=88, out=96, dbg=104, ws=112)
M16 = "v_mfma_f32_16x16x32_bf16"
M32 = "v_mfma_f32_32x32x16_bf16"
LOG2E = 0x3fb8aa3b

def srd(A, d, base, size, off=0):
    if off:
        A(f"s_add_u32 s{d}, s{base}, {off}")
        A(f"s_addc_u32 s{d+1}, s{base+1}, 0")
    else:
        A(f"s_mov_b32 s{d}, s{base}")
        A(f"s_mov_b32 s{d+1}, s{base+1}")
    A(f"s_mov_b32 s{d+2}, {size}")
    A(f"s_mov_b32 s{d+3}, 0x20000")

def allreduce64(A, regs, t0, op="v_add_f32"):
    n = len(regs)
    for pat in ("quad_perm:[1,0,3,2]", "quad_perm:[2,3,0,1]", "row_half_mirror", "row_mirror"):
        if n < 3: A(f"s_nop {2 - n}" if n < 3 else "")
        for r in regs:
            A(f"{op}_dpp v{r}, v{r}, v{r} {pat} row_mask:0xf bank_mask:0xf")
    for sw in ("v_permlane16_swap_b32", "v_permlane32_swap_b32"):
        for i, r in enumerate(regs): A(f"v_mov_b32 v{t0+i}, v{r}")
        A("s_nop 1")
        for i, r in enumerate(regs): A(f"{sw} v{t0+i}, v{r}")
        A("s_nop 0")
        for i, r in enumerate(regs): A(f"{op} v{r}, v{r}, v{t0+i}")

DIAG = False
CLK = "s_memrealtime"
WS_DIAG = 60*MB
def stamp(A, i):
    if DIAG: A(f"{CLK} s[{86+2*i}:{87+2*i}]")
def stamp_flush(A, kidx, n, swave):
    if not DIAG: return
    A(f"""
s_waitcnt vmcnt(0)
{CLK} s[{86+2*(n-1)}:{87+2*(n-1)}]
s_load_dwordx2 s[4:5], s[0:1], 112
s_waitcnt lgkmcnt(0)
s_add_u32 s4, s4, {WS_DIAG + kidx*65536}
s_addc_u32 s5, s5, 0
s_mov_b32 s6, 65536
s_mov_b32 s7, 0x20000
s_lshl_b32 s3, s2, 8
s_lshl_b32 s2, s{swave}, 5
s_add_u32 s3, s3, s2
v_mov_b32 v8, 0
""")
    for i in range(8): A(f"v_mov_b32 v{i}, s{86+2*i}" if i < n else f"v_mov_b32 v{i}, 0")
    A("""s_mov_b64 exec, 1
buffer_store_dwordx4 v[0:3], v8, s[4:7], s3 offen
buffer_store_dwordx4 v[4:7], v8, s[4:7], s3 offen offset:16""")

def header(A, name):
    A(f".globl {name}\n.p2align 8\n.type {name},@function\n{name}:")

def desc(name, vgpr, accum, sgpr=102):
    return f""".p2align 6
.amdhsa_kernel {name}
  .amdhsa_next_free_vgpr {vgpr}
  .amdhsa_next_free_sgpr {sgpr}
  .amdhsa_accum_offset {accum}
  .amdhsa_group_segment_fixed_size 0
  .amdhsa_kernarg_size 120
  .amdhsa_user_sgpr_count 2
  .amdhsa_user_sgpr_kernarg_segment_ptr 1
  .amdhsa_system_sgpr_workgroup_id_x 1
  .amdhsa_float_denorm_mode_32 3
.end_amdhsa_kernel
"""

def k1():
    A = Asm()
    name = "k1_kernel"
    header(A, name)
    S_CKV, S_WUK, S_WUV, S_KV, S_X, S_XH, S_WMOD, S_C, S_MOD = 8, 12, 16, 20, 24, 28, 32, 36, 40
    sW, sHEAD, sKB, sROT = 44, 45, 46, 47
    sKA, sKW = 48, 52
    sAB, sWB, sT, sT2, sOK, sOV, sLA = 56, 57, 58, 59, 60, 61, 62
    P = 64
    A(f"""
s_cmp_ge_u32 s2, 256
s_cbranch_scc1 {name}_end
""")
    stamp(A, 0)
    A(f"""
s_load_dwordx4 s[64:67], s[0:1], 0      ; x, ckv
s_load_dwordx4 s[68:71], s[0:1], 24
s_load_dwordx4 s[72:75], s[0:1], 80     ; c, wmod
s_load_dwordx2 s[76:77], s[0:1], 112    ; ws
v_lshrrev_b32 v1, 6, v0
v_and_b32 v0, 63, v0
s_and_b32 s{sT}, s2, 7
v_readfirstlane_b32 s{sW}, v1
s_lshr_b32 s{sT2}, s2, 3
s_lshl_b32 s{sHEAD}, s{sT}, 2
s_and_b32 s{sKB}, s{sT2}, 3
s_add_u32 s{sHEAD}, s{sHEAD}, s{sKB}
s_lshr_b32 s{sKB}, s{sT2}, 2
s_add_u32 s{sROT}, s{sKB}, s{sT2}
""")
    for q in range(4):
        A(f"s_add_u32 s{sT}, s{sROT}, {q}\ns_and_b32 s{sT}, s{sT}, 3\ns_lshl_b32 s{sKA+q}, s{sT}, 8\ns_lshl_b32 s{sKW+q}, s{sT}, 20")
    vA0, vA1, vW, vAR0, vAR1, vOK, vOV, vT, vT2, vT3 = 2, 3, 4, 5, 6, 7, 8, 9, 10, 11
    vWR = 12
    A(f"""
v_lshrrev_b32 v{vT}, 3, v0              ; l/8
v_and_b32 v{vT2}, 7, v0                 ; l%8
v_lshrrev_b32 v{vT3}, 1, v{vT}          ; (l/8)>>1  (0..3)
v_xor_b32 v{vA0}, v{vT2}, v{vT3}
v_lshlrev_b32 v{vA0}, 4, v{vA0}
v_lshl_add_u32 v{vA0}, v{vT}, 10, v{vA0}
v_xor_b32 v{vA1}, 64, v{vA0}
v_and_b32 v{vT3}, 1, v{vT3}
s_and_b32 s{sT}, s{sW}, 1
s_lshl_b32 s{sT}, s{sT}, 1
v_or_b32 v{vT3}, s{sT}, v{vT3}
v_lshlrev_b32 v{vT3}, 1, v{vT3}            ; swz
v_xor_b32 v{vW}, v{vT2}, v{vT3}
v_lshlrev_b32 v{vW}, 4, v{vW}
v_lshl_add_u32 v{vW}, v{vT}, 13, v{vW}
s_lshl_b32 s{sT}, s{sW}, 16
v_add_u32 v{vW}, s{sT}, v{vW}
""")
    A(f"""
v_and_b32 v{vT}, 15, v0                 ; n
v_lshrrev_b32 v{vT2}, 4, v0             ; g
v_lshrrev_b32 v{vT3}, 1, v{vT}
v_xor_b32 v{vAR0}, v{vT2}, v{vT3}
v_lshlrev_b32 v{vAR0}, 4, v{vAR0}
v_and_b32 v{vT3}, 8, v{vT}
v_add_u32 v{vT3}, v{vT3}, v{vT}         ; rho0 = 16(n>>3)+(n&7)
v_lshl_add_u32 v{vAR0}, v{vT3}, 7, v{vAR0}
s_mul_i32 s{sLA}, s{sW}, 24576
v_add_u32 v{vAR0}, s{sLA}, v{vAR0}
v_xor_b32 v{vAR1}, 64, v{vAR0}
v_and_b32 v{vOK}, 1, v{vT2}
v_lshlrev_b32 v{vOK}, 9, v{vOK}
v_lshrrev_b32 v{vOV}, 1, v{vT2}
v_lshl_add_u32 v{vOK}, v{vOV}, 10, v{vOK}
v_lshl_add_u32 v{vOV}, v{vT}, 4, v{vOK}
v_lshl_add_u32 v{vOK}, v{vT3}, 4, v{vOK}
""")
    A(f"""
v_lshrrev_b32 v{vT3}, 2, v{vT}          ; r
v_lshl_add_u32 v{vWR}, v{vT2}, 3, v{vT3}   ; row
v_lshlrev_b32 v{vWR}, 7, v{vWR}
v_and_b32 v{vT}, 3, v0
v_lshl_add_u32 v{vWR}, v{vT}, 3, v{vWR}    ; + c*8
v_lshrrev_b32 v{vT3}, 1, v{vT3}
v_and_b32 v{vT2}, 1, v{vT2}
v_lshl_or_b32 v{vT3}, v{vT2}, 1, v{vT3}
v_lshl_add_u32 v{vWR}, v{vT3}, 5, v{vWR}   ; + swz*16
""")
    for t in range(1, 4):
        A(f"v_xor_b32 v{vWR+t}, {t*32}, v{vWR}")
    for b in range(1, 3):
        for t in range(4):
            A(f"v_add_u32 v{vWR+4*b+t}, {b*65536}, v{vWR+t}")
    A("s_waitcnt lgkmcnt(0)")
    srd(A, S_X, 64, 2*MB); srd(A, S_CKV, 66, 2*MB); srd(A, S_WUK, 68, 4*MB); srd(A, S_WUV, 70, 4*MB)
    srd(A, S_C, 72, 1024); srd(A, S_WMOD, 74, 512*3072*2)
    srd(A, S_KV, 76, 32*MB, WS_KF); srd(A, S_XH, 76, 2*MB, WS_XH); srd(A, S_MOD, 76, 16384 + 6144, WS_MOD)
    A(f"""
s_lshl_b32 s{sAB}, s{sKB}, 18
s_lshl_b32 s{sT}, s{sW}, 16
s_add_u32 s{sAB}, s{sAB}, s{sT}
s_lshl_b32 s{sWB}, s{sHEAD}, 8
s_lshl_b32 s{sOK}, s{sHEAD}, 19
s_lshl_b32 s{sT}, s{sKB}, 16
s_add_u32 s{sOK}, s{sOK}, s{sT}
s_lshl_b32 s{sT}, s{sW}, 14
s_add_u32 s{sOK}, s{sOK}, s{sT}
s_add_u32 s{sOV}, s{sOK}, {16*MB}
""")
    X0, CV, WM = 128, 136, 140
    vXO, vWMO = 160, 161
    sTOK, sCOL, sSEG = 80, 81, 82
    A(f"""
s_lshl_b32 s{sTOK}, s2, 3
s_lshl_b32 s{sT}, s{sW}, 1
s_add_u32 s{sTOK}, s{sTOK}, s{sT}
s_lshl_b32 s{sT}, s{sTOK}, 10
v_lshlrev_b32 v{vXO}, 4, v0
buffer_load_dwordx4 v[{X0}:{X0+3}], v{vXO}, s[{S_X}:{S_X+3}], s{sT} offen ;@side
buffer_load_dwordx4 v[{X0+4}:{X0+7}], v{vXO}, s[{S_X}:{S_X+3}], s{sT} offen offset:1024 ;@side
buffer_load_dwordx4 v[{CV}:{CV+3}], v{vXO}, s[{S_C}:{S_C+3}], 0 offen ;@side
s_and_b32 s{sT}, s2, 7
s_mul_i32 s{sCOL}, s{sT}, 24
s_lshr_b32 s{sT2}, s2, 3
s_add_u32 s{sCOL}, s{sCOL}, s{sT2}
s_lshl_b32 s{sCOL}, s{sCOL}, 4
s_lshl_b32 s{sT}, s{sW}, 2
s_add_u32 s{sCOL}, s{sCOL}, s{sT}
s_cmp_lt_u32 s{sT2}, 24
s_cselect_b32 s{sCOL}, s{sCOL}, 0x8000000
s_mov_b32 s{sT}, 49152
v_mul_lo_u32 v{vWMO}, v0, s{sT}
s_lshl_b32 s{sT}, s{sCOL}, 1
""")
    for i in range(8):
        A(f"buffer_load_dwordx2 v[{WM+2*i}:{WM+2*i+1}], v{vWMO}, s[{S_WMOD}:{S_WMOD+3}], s{sT} offen ;@side")
        if i < 7: A(f"s_add_u32 s{sT}, s{sT}, 6144")

    HI = 96*1024
    def wloc(n):
        if n < 4: return HI + n*16384
        if n in (4, 5, 6): return HI + (n-4)*16384
        if 7 <= n <= 12: return (n-7)*16384
        return HI + {13: 3, 14: 0, 15: 1}[n]*16384
    def dmaA(i):
        out = []
        for ii in range(8):
            out.append([f"s_add_u32 m0, s{sLA}, {(i % 3)*8192 + ii*1024}",
                        f"s_add_u32 s{sT}, s{sKA + i//2}, {ii*8192 + (i % 2)*128}",
                        f"s_add_u32 s{sT}, s{sT}, s{sAB}",
                        f"buffer_load_dwordx4 v{vA1 if ii & 2 else vA0}, s[{S_CKV}:{S_CKV+3}], s{sT} offen lds ;@A{i}"])
        return out
    sW10 = 83
    A(f"s_lshl_b32 s{sW10}, s{sW}, 10")
    def dmaW(n):
        c, q = n // 4, n % 4
        sr = S_WUK if c < 2 else S_WUV
        out = []
        for m in range(4):
            out.append([f"s_add_u32 m0, s{sW10}, {wloc(n) + m*4096}",
                        f"s_add_u32 s{sT}, s{sKW + q}, {m*32*8192 + (c % 2)*128}",
                        f"s_add_u32 s{sT}, s{sT}, s{sWB}",
                        f"buffer_load_dwordx4 v{vW}, s[{sr}:{sr+3}], s{sT} offen lds ;@W{n}"])
        return out
    def flat(x): return [y for z in x for y in (z if isinstance(z, list) else [z])]
    def readA(i):
        out = []
        for kk in range(2):
            for T in range(4):
                ks = 2*i + kk
                r = (ks*4 + T)*4
                out.append(f"ds_read_b128 a[{r}:{r+3}], v{vAR1 if kk else vAR0} offset:{(i % 3)*8192 + (T//2)*4096 + (T % 2)*1024} ;@RA{i}")
        return out
    WF = 64
    def readW(G):
        n, t = G // 4, G % 4
        loc = wloc(n)
        out = []
        for ks in range(4):
            for rd in range(2):
                r = WF + (G % 4)*16 + ks*4 + rd*2
                off = loc + ks*4096 + rd*512
                out.append(f"ds_read_b64_tr_b16 v[{r}:{r+1}], v{vWR + 4*(off//65536) + t} offset:{off % 65536} ;@RW{G}")
        return out

    for x in (dmaA(0), dmaW(0), dmaA(1), dmaA(2), dmaW(1), dmaW(2), dmaW(3)):
        A.extend(flat(x))

    A("@wait vm side")
    stamp(A, 1)
    F = 164
    for r in range(2):
        for j in range(4):
            A(f"v_lshlrev_b32 v{F+r*8+2*j}, 16, v{X0+4*r+j}")
            A(f"v_and_b32 v{F+r*8+2*j+1}, 0xffff0000, v{X0+4*r+j}")
    SUM = 180; TMP = 184
    for r in range(2):
        A(f"v_add_f32 v{SUM+r}, v{F+r*8}, v{F+r*8+1}")
        for j in range(2, 8): A(f"v_add_f32 v{SUM+r}, v{SUM+r}, v{F+r*8+j}")
    allreduce64(A, [SUM, SUM+1], TMP)
    for r in range(2):
        A(f"v_mul_f32 v{SUM+r}, {0x3b000000}, v{SUM+r}")
        for j in range(8): A(f"v_sub_f32 v{F+r*8+j}, v{F+r*8+j}, v{SUM+r}")
    for r in range(2):
        A(f"v_mul_f32 v{SUM+r}, v{F+r*8}, v{F+r*8}")
        for j in range(1, 8): A(f"v_fmac_f32 v{SUM+r}, v{F+r*8+j}, v{F+r*8+j}")
    allreduce64(A, [SUM, SUM+1], TMP)
    A(f"v_mov_b32 v{TMP}, 0x3727c5ac")
    for r in range(2):
        A(f"v_fmac_f32 v{TMP}, 0, v{TMP}" if False else "")
        A(f"v_fmaak_f32 v{SUM+r}, v{SUM+r}, v{SUM+r}, 0" if False else "")
        A(f"v_mul_f32 v{SUM+r}, {0x3b000000}, v{SUM+r}")
        A(f"v_add_f32 v{SUM+r}, v{SUM+r}, v{TMP}")
        A(f"v_rsq_f32 v{SUM+r}, v{SUM+r}")
    A("s_nop 0")
    for r in range(2):
        for j in range(8): A(f"v_mul_f32 v{F+r*8+j}, v{F+r*8+j}, v{SUM+r}")
        for j in range(4): A(f"v_cvt_pk_bf16_f32 v{X0+4*r+j}, v{F+r*8+2*j}, v{F+r*8+2*j+1}")
    A(f"""
v_lshrrev_b32 v{TMP}, 1, v0
v_lshlrev_b32 v{TMP}, 10, v{TMP}
v_and_b32 v{TMP+1}, 1, v0
v_lshl_add_u32 v{TMP}, v{TMP+1}, 9, v{TMP}
s_lshr_b32 s{sT}, s{sTOK}, 5
s_lshl_b32 s{sT}, s{sT}, 15
s_and_b32 s{sT2}, s{sTOK}, 31
s_lshl_b32 s{sT2}, s{sT2}, 4
s_add_u32 s{sT}, s{sT}, s{sT2}
buffer_store_dwordx4 v[{X0}:{X0+3}], v{TMP}, s[{S_XH}:{S_XH+3}], s{sT} offen
buffer_store_dwordx4 v[{X0+4}:{X0+7}], v{TMP}, s[{S_XH}:{S_XH+3}], s{sT} offen offset:16
""")
    for j in range(4):
        A(f"v_lshlrev_b32 v{F+2*j}, 16, v{CV+j}")
        A(f"v_and_b32 v{F+2*j+1}, 0xffff0000, v{CV+j}")
    for j in range(8): A(f"v_mul_f32 v{F+8+j}, {0xbfb8aa3b}, v{F+j}")
    for j in range(8): A(f"v_exp_f32 v{F+8+j}, v{F+8+j}")
    for j in range(8): A(f"v_add_f32 v{F+8+j}, 1.0, v{F+8+j}")
    for j in range(8): A(f"v_rcp_f32 v{F+8+j}, v{F+8+j}")
    for j in range(8): A(f"v_mul_f32 v{F+j}, v{F+j}, v{F+8+j}")
    for j in range(4):
        A(f"v_cvt_pk_bf16_f32 v{F+8+j}, v{F+2*j}, v{F+2*j+1}")
    for j in range(4):
        A(f"v_lshlrev_b32 v{F+2*j}, 16, v{F+8+j}")
        A(f"v_and_b32 v{F+2*j+1}, 0xffff0000, v{F+8+j}")
    AC = SUM
    for i in range(8):
        for h in range(2):
            A(f"v_lshlrev_b32 v{TMP}, 16, v{WM+2*i+h}")
            A(f"v_and_b32 v{TMP+1}, 0xffff0000, v{WM+2*i+h}")
            for e in range(2):
                A(f"{'v_mul_f32' if i == 0 else 'v_fmac_f32'} v{AC+2*h+e}, v{F+i}, v{TMP+e}")
    allreduce64(A, [AC, AC+1, AC+2, AC+3], TMP)
    A(f"""
s_lshr_b32 s{sSEG}, s{sCOL}, 9
s_cmp_eq_u32 s{sSEG}, 1
s_cselect_b32 s{sT}, 1.0, 0
s_cmp_eq_u32 s{sSEG}, 4
s_cselect_b32 s{sT}, 1.0, s{sT}
""")
    for rnd in range(2):
        for h in range(2): A(f"v_cvt_pk_bf16_f32 v{TMP+h}, v{AC+2*h}, v{AC+2*h+1}")
        for h in range(2):
            A(f"v_lshlrev_b32 v{AC+2*h}, 16, v{TMP+h}")
            A(f"v_and_b32 v{AC+2*h+1}, 0xffff0000, v{TMP+h}")
        if rnd == 0:
            for e in range(4): A(f"v_add_f32 v{AC+e}, s{sT}, v{AC+e}")
    A(f"""
s_lshl_b32 s{sT}, s{sCOL}, 2
s_lshl_b32 s{sT2}, s{sCOL}, 1
s_add_u32 s{sT2}, s{sT2}, 16384
v_mov_b32 v{TMP+2}, 0
s_mov_b64 exec, 1
buffer_store_dwordx4 v[{AC}:{AC+3}], v{TMP+2}, s[{S_MOD}:{S_MOD+3}], s{sT} offen
buffer_store_dwordx2 v[{TMP}:{TMP+1}], v{TMP+2}, s[{S_MOD}:{S_MOD+3}], s{sT2} offen
s_mov_b64 exec, -1
""")

    for i in range(3):
        A(f"@wait vm A{i}")
        A.extend(readA(i))
    for i in range(3):
        A(f"@wait lgkm RA{i}")
        A.extend(flat(dmaA(i + 3)))
    A("@wait vm W0\ns_barrier")
    stamp(A, 2)
    A.extend(readW(0)); A.extend(readW(1))
    ACC = [128, 192]; OUT = 32
    def acc(c, t, T): return ACC[c % 2] + (t*4 + T)*4
    def epilogue(c):
        out = []
        k = 0
        if c < 2:
            for b in range(2):
                for T in range(4):
                    o = OUT + k*4; k += 1
                    p = []
                    for tt in range(2):
                        r = acc(c, 2*b + tt, T)
                        p.append(f"v_cvt_pk_bf16_f32 v{o+2*tt}, v{r}, v{r+1}")
                        p.append(f"v_cvt_pk_bf16_f32 v{o+2*tt+1}, v{r+2}, v{r+3}")
                    out.extend(p)
                    out.append([f"s_add_u32 s{sT2}, s{sOK}, {(T//2)*8192 + (c % 2)*4096}",
                                f"buffer_store_dwordx4 v[{o}:{o+3}], v{vOK}, s[{S_KV}:{S_KV+3}], s{sT2} offen offset:{(T % 2)*128 + b*2048} sc1"])
        else:
            for t in range(4):
                for b in range(2):
                    o = OUT + k*4; k += 1
                    p = []
                    for aa in range(2):
                        r = acc(c, t, 2*b + aa)
                        p.append(f"v_cvt_pk_bf16_f32 v{o+2*aa}, v{r}, v{r+1}")
                        p.append(f"v_cvt_pk_bf16_f32 v{o+2*aa+1}, v{r+2}, v{r+3}")
                    out.extend(p)
                    out.append([f"s_add_u32 s{sT2}, s{sOV}, {b*8192 + (c % 2)*4096}",
                                f"buffer_store_dwordx4 v[{o}:{o+3}], v{vOV}, s[{S_KV}:{S_KV+3}], s{sT2} offen offset:{(t//2)*2048 + (t % 2)*256} sc1"])
        return out
    extra = {G: [] for G in range(64)}
    for c in range(3):
        ep = epilogue(c)
        per = 5
        for k in range(8):
            extra[16*(c+1) + 1 + k] += ep[k*per:(k+1)*per]
    def slabjob(i):
        j = [f"@wait vm A{i}"] + readA(i)
        return j
    extra[0] += slabjob(3)
    extra[1] += [f"@wait lgkm RA3"] + dmaA(6)
    extra[3] += slabjob(4)
    extra[4] += [f"@wait lgkm RA4"] + dmaA(7)
    extra[5] += slabjob(5)
    extra[8] += slabjob(6)
    extra[9] += slabjob(7)
    after = {2: [4], 3: [5], 4: [6, 7, 8, 9], 5: [10, 11, 12, 13], 6: [14], 7: [15]}
    for n, lst in after.items():
        for k, w in enumerate(lst):
            extra[4*n - 2 + k] += dmaW(w)
    for G in range(64):
        n, t = G // 4, G % 4
        c, q = n // 4, n % 4
        pre = []
        if (G + 2) % 4 == 0 and G + 2 < 64:
            pre += [f"@wait vm W{(G+2)//4}", "s_barrier"]
        pre.append(f"@wait lgkm RW{G}")
        if c == 0 and t == 0:
            pre.append(f"@wait lgkm RA{2*q+1}")
        mf = []
        for T in range(4):
            for ks in range(4):
                d = acc(c, t, T)
                wf = v(WF + (G % 4)*16 + ks*4, 4)
                af = a(((q*4 + ks)*4 + T)*4, 4)
                cin = "0" if (q == 0 and ks == 0) else v(d, 4)
                if c < 2: mf.append(f"{M16} {v(d,4)}, {wf}, {af}, {cin}")
                else:     mf.append(f"{M16} {v(d,4)}, {af}, {wf}, {cin}")
        fill = (readW(G + 2) if G + 2 < 64 else []) + extra[G]
        if G in (16, 32, 48): stamp(A, 2 + G//16)
        A.extend(pre)
        A.extend(interleave(mf, fill) if fill else mf)
    A("s_nop 7")
    stamp(A, 6)
    A.extend(flat(epilogue(3)))
    stamp_flush(A, 0, 8, sW)
    A.label(f"{name}_end")
    A("s_endpgm")
    A.lines = resolve_waits(A.lines)
    return name, A, desc(name, 512, 256), (256, 256, 160*1024)


def gaps(mf, fills):
    out = []
    for i, m in enumerate(mf):
        out.extend(m if isinstance(m, list) else [m])
        out.extend(fills.get(i, []))
    return out

def k2():
    A = Asm()
    name = "k2_kernel"
    header(A, name)
    S_WQ, S_KV, S_XH, S_MOD, S_CTX = 8, 12, 16, 20, 24
    sW, sG, sHEAD, sPAIR, sTB, sR, sNS, sT, sT2 = 28, 29, 30, 31, 32, 33, 34, 35, 36
    sSLOT, sDM0, sDK, sDJ, sTHR, sXB, sQS, sJ, sW4 = 37, 38, 39, 40, 41, 42, 43, 44, 45
    sRET = 46
    sM0, sM1 = 48, 50
    LDS_K0, LDS_MOD = 128*1024, 136*1024
    vL16, vWD, vWR, vMOD, vCUR, vNXT, vMSK, vNINF, vL, vTS, vDEL, vF, vCO = 1, 2, 3, 7, 8, 9, 10, 11, 12, 13, 14, 15, 240
    O, QF, S, P, NEGM, FR, T = 16, 80, 112, 144, 160, 176, 208
    XR = 112
    WFR = 176
    MD = 208
    FT = 244
    A(f"""
s_cmp_ge_u32 s2, 256
s_cbranch_scc1 {name}_end
""")
    stamp(A, 0)
    A(f"""
s_load_dwordx2 s[64:65], s[0:1], 16     ; wq
s_load_dwordx2 s[66:67], s[0:1], 112    ; ws
v_lshrrev_b32 v1, 6, v0
v_and_b32 v0, 63, v0
s_and_b32 s{sT}, s2, 7
v_readfirstlane_b32 s{sW}, v1
s_lshr_b32 s{sT2}, s2, 3
s_lshl_b32 s{sHEAD}, s{sT}, 2
s_and_b32 s{sT}, s{sT2}, 3
s_add_u32 s{sHEAD}, s{sHEAD}, s{sT}
s_lshr_b32 s{sPAIR}, s{sT2}, 2
s_lshr_b32 s{sG}, s{sW}, 2
s_and_b32 s{sW4}, s{sW}, 3
s_sub_u32 s{sT}, 15, s{sPAIR}
s_cmp_eq_u32 s{sG}, 0
s_cselect_b32 s{sTB}, s{sT}, s{sPAIR}
s_lshl_b32 s{sTB}, s{sTB}, 2
s_add_u32 s{sTB}, s{sTB}, s{sW4}          ; tokblk32 = U
s_mov_b32 s{sR}, s{sTB}
s_lshl_b32 s{sNS}, s{sT}, 1
s_add_u32 s{sNS}, s{sNS}, 2
s_mov_b32 s{sTHR}, 0x44800000             ; 1024.0
s_mov_b32 s{sQS}, 0x3e0293ee              ; log2(e)/sqrt(128)
v_lshlrev_b32 v{vL16}, 4, v0
; W dma voffset: (l/16)*8192 + ((l%16) ^ ((l/16)<<2))*16
v_lshrrev_b32 v{T}, 4, v0
v_and_b32 v{T+1}, 15, v0
v_lshlrev_b32 v{T+2}, 2, v{T}
v_xor_b32 v{vWD}, v{T+1}, v{T+2}
v_lshlrev_b32 v{vWD}, 4, v{vWD}
v_lshl_add_u32 v{vWD}, v{T}, 13, v{vWD}
; W tr read addr: h=l/32, half16=(l/16)&1, r=(l%16)/4, c=l%4: (8h+r)*256 + r*64 + 32(c>>1) + 16 half16 + 8(c&1)
v_lshrrev_b32 v{T+2}, 2, v{T+1}           ; r
v_lshrrev_b32 v{T+3}, 5, v0               ; h
v_lshl_add_u32 v{vWR}, v{T+3}, 3, v{T+2}
v_lshlrev_b32 v{vWR}, 8, v{vWR}
v_lshl_add_u32 v{vWR}, v{T+2}, 6, v{vWR}
v_and_b32 v{T+4}, 2, v0
v_lshl_add_u32 v{vWR}, v{T+4}, 4, v{vWR}
v_and_b32 v{T+4}, 1, v0
v_lshl_add_u32 v{vWR}, v{T+4}, 3, v{vWR}
v_and_b32 v{T+4}, 1, v{T}
v_lshl_add_u32 v{vWR}, v{T+4}, 4, v{vWR}
v_xor_b32 v{vWR+1}, 64, v{vWR}
v_xor_b32 v{vWR+2}, 128, v{vWR}
v_xor_b32 v{vWR+3}, 192, v{vWR}
v_lshlrev_b32 v{vMOD}, 5, v{T+3}
v_add_u32 v{vMOD}, {LDS_MOD}, v{vMOD}
v_and_b32 v{vMSK}, 31, v0
v_lshlrev_b32 v{T+4}, 2, v{T+3}
v_sub_u32 v{vMSK}, v{vMSK}, v{T+4}
v_mov_b32 v{vNINF}, 0xff800000
; ctx store voffset: ((l>>4)&1)*131072 + h*256 + (l%16)*16
v_and_b32 v{T+4}, 1, v{T}
v_lshlrev_b32 v{vCO}, 17, v{T+4}
v_lshl_add_u32 v{vCO}, v{T+3}, 8, v{vCO}
v_lshl_add_u32 v{vCO}, v{T+1}, 4, v{vCO}
s_waitcnt lgkmcnt(0)
""")
    srd(A, S_WQ, 64, 4*MB); srd(A, S_KV, 66, 32*MB, WS_KF); srd(A, S_XH, 66, 2*MB, WS_XH)
    srd(A, S_MOD, 66, 4096, WS_MOD); srd(A, S_CTX, 66, 16*MB, WS_CTX)
    A(f"""
s_lshl_b32 s{sT}, s{sW}, 10
s_add_u32 m0, s{sT}, {LDS_MOD}
s_lshl_b32 s{sDK}, s{sHEAD}, 19
buffer_load_dwordx4 v{vL16}, s[{S_MOD}:{S_MOD+3}], s{sT} offen lds ;@pre
s_add_u32 m0, s{sT}, {LDS_K0}
s_add_u32 s{sT2}, s{sDK}, s{sT}
buffer_load_dwordx4 v{vL16}, s[{S_KV}:{S_KV+3}], s{sT2} offen lds ;@pre
s_lshl_b32 s{sXB}, s{sTB}, 15
""")
    def loadX(ks):
        r = XR + (ks % 16)*4
        return [f"s_add_u32 s{sT2}, s{sXB}, {(ks // 4)*4096}",
                f"buffer_load_dwordx4 v[{r}:{r+3}], v{vL16}, s[{S_XH}:{S_XH+3}], s{sT2} offen offset:{(ks % 4)*1024} ;@X{ks}"]
    A(f"""
s_lshl_b32 s{sM0}, s{sW}, 12
s_lshl_b32 s{sM1}, s{sW}, 17
s_lshl_b32 s{sT}, s{sHEAD}, 8
s_add_u32 s{sM1}, s{sM1}, s{sT}
""")
    for q in range(4):
        for ks in range(4*q, 4*q + 4): A.extend(loadX(ks))
        for m in range(4):
            A(f"s_add_u32 m0, s{sM0}, {q*32768 + m*1024}")
            A(f"s_add_u32 s{sT}, s{sM1}, {q*128*8192 + m*4*8192}")
            A(f"buffer_load_dwordx4 v{vWD}, s[{S_WQ}:{S_WQ+3}], s{sT} offen lds ;@WQ{q}")
    A(f"""
s_lshl_b32 s{sT}, s{sW4}, 12
s_add_u32 s{sDK}, s{sDK}, s{sT}
s_add_u32 s{sDK}, s{sDK}, 8192
s_mov_b32 s{sDM0}, s{sT}
s_mov_b32 s{sDJ}, 0
""")
    def stage_dma(cond=True):
        lab = A.newlabel("k2_nodma")
        out = []
        if cond: out += [f"s_cmp_eq_u32 s{sG}, 0", f"s_cbranch_scc1 {lab}"]
        out += [f"s_cmp_lt_u32 s{sDJ}, s{sNS}",
                f"s_cselect_b32 s{sT}, s{sDK}, 0x40000000",
                f"s_mov_b32 m0, s{sDM0}",
                f"s_add_u32 s{sT2}, s{sT}, {16*MB - 8192}"]
        for m in range(4): out.append(f"buffer_load_dwordx4 v{vL16}, s[{S_KV}:{S_KV+3}], s{sT} offen offset:{m*1024} lds ;@cond")
        out += [f"s_add_u32 m0, s{sDM0}, 16384", f"s_add_u32 s{sDJ}, s{sDJ}, 1"]
        for m in range(4): out.append(f"buffer_load_dwordx4 v{vL16}, s[{S_KV}:{S_KV+3}], s{sT2} offen offset:{m*1024} lds ;@cond")
        out += [f"s_add_u32 s{sDK}, s{sDK}, 16384", f"s_add_u32 s{sDM0}, s{sDM0}, 32768", f"s_and_b32 s{sDM0}, s{sDM0}, 0x1ffff"]
        if cond: out.append(lab + ":")
        return out

    def readWq(ks, dbs):
        out = []
        for db in dbs:
            for rd in range(2):
                r = WFR + (ks % 2)*16 + db*4 + rd*2
                out.append(f"ds_read_b64_tr_b16 v[{r}:{r+1}], v{vWR+db} offset:{(ks % 16)*4096 + rd*1024} ;@RW{ks}_{db}")
        return out
    def readMod(ks):
        r = MD + (ks % 2)*16
        return [f"ds_read_b128 v[{r+4*i}:{r+4*i+3}], v{vMOD} offset:{ks*64 + (i % 2)*16 + (i // 2)*2048} ;@RM{ks}" for i in range(4)]
    def modulate(ks):
        x = XR + (ks % 16)*4; md = MD + (ks % 2)*16
        out = []
        for j in range(4):
            t = FT + (j % 2)*2
            out += [f"v_lshlrev_b32 v{FT+2*j}, 16, v{x+j}", f"v_and_b32 v{FT+2*j+1}, 0xffff0000, v{x+j}",
                    f"v_fma_f32 v{FT+2*j}, v{FT+2*j}, v{md+8+2*j}, v{md+2*j}",
                    f"v_fma_f32 v{FT+2*j+1}, v{FT+2*j+1}, v{md+8+2*j+1}, v{md+2*j+1}",
                    f"v_cvt_pk_bf16_f32 v{x+j}, v{FT+2*j}, v{FT+2*j+1}"]
        return out
    A("@wait vm WQ0\ns_barrier")
    stamp(A, 1)
    A.extend(readMod(0)); A.extend(readMod(1)); A.extend(readWq(0, range(4)))
    A("@wait lgkm RM0")
    A.extend(modulate(0))
    A("s_nop 0")
    for ks in range(32):
        pre = []
        if ks % 8 == 7 and ks < 31:
            q = (ks + 1) // 8
            pre += [f"@wait vm WQ{q}", "s_barrier"]
            if q >= 2: pre += stage_dma()
        if ks == 15:
            pre += [f"v_add_u32 v{vWR+db}, 0x10000, v{vWR+db}" for db in range(4)]
        x = XR + (ks % 16)*4
        mf = []
        for db in range(4):
            w = WFR + (ks % 2)*16 + db*4
            cin = "0" if ks == 0 else v(O + db*16, 16)
            mf.append([f"@wait lgkm RW{ks}_{db}", f"{M32} {v(O+db*16,16)}, {v(w,4)}, {v(x,4)}, {cin}"])
        fills = {0: [], 1: [], 2: [], 3: []}
        if ks < 31:
            fills[0] += readWq(ks + 1, [0, 1]); fills[1] += readWq(ks + 1, [2, 3])
            md = modulate(ks + 1)
            fills[0] += [f"@wait vm X{ks+1}", f"@wait lgkm RM{ks+1}"] + md[:5]
            fills[1] += md[5:10]; fills[2] += md[10:15]; fills[3] += md[15:20]
            if ks < 30: fills[3] += readMod(ks + 2)
            else: fills[3] += ["s_nop 0"]
        if 1 <= ks <= 16: fills[2] += loadX(ks + 15)
        A.extend(pre)
        A.extend(gaps(mf, fills))
    stamp(A, 2)
    A("s_waitcnt vmcnt(8)\ns_barrier")
    A.extend(stage_dma())
    A(f"v_add_u32 v{vCUR}, {LDS_K0}, v{vL16}")
    for i in range(8): A(f"ds_read_b128 {v(FR+4*i,4)}, v{vCUR} offset:{i*1024} ;@K0_{i}")
    for db in range(4):
        for r in range(16): A(f"v_mul_f32 v{O+db*16+r}, s{sQS}, v{O+db*16+r}")
        for r in range(8): A(f"v_cvt_pk_bf16_f32 v{QF+db*8+r}, v{O+db*16+2*r}, v{O+db*16+2*r+1}")
    for r in range(16): A(f"v_mov_b32 v{NEGM+r}, 0")
    def apply_mask():
        out = []
        for r in range(16):
            out.append(f"v_cmp_gt_i32 s[{52+2*(r%4)}:{53+2*(r%4)}], {8*(r//4) + r % 4}, v{vMSK}")
            if r % 4 == 3:
                for rr in range(r - 3, r + 1):
                    out.append(f"v_cndmask_b32 v{NEGM+rr}, v{NEGM+rr}, v{vNINF}, s[{52+2*(rr%4)}:{53+2*(rr%4)}]")
        return out
    A(f"s_cmp_lg_u32 s{sR}, 0\ns_cbranch_scc1 k2_nomask0")
    A.extend(apply_mask())
    A.label("k2_nomask0")
    A("s_nop 1")
    mf = []
    for i in range(8):
        cin = v(NEGM, 16) if i == 0 else v(S, 16)
        mf.append([f"@wait lgkm K0_{i}", f"{M32} {v(S,16)}, {v(FR+4*i,4)}, {v(QF+4*i,4)}, {cin}"])
    zero = [f"v_mov_b32 v{O+r}, 0" for r in range(64)]
    A.extend(gaps(mf, {i: zero[i*6:(i+1)*6] for i in range(7)} | {7: zero[42:]}))
    A(f"v_mov_b32 v{vL}, 0\nv_mov_b32 v{vCUR}, v{vL16}\ns_mov_b32 s{sSLOT}, 0")
    D = 6
    def fragoff(i):
        part, k = i // 8, i % 8
        if part == 0: return k*1024
        if part == 2: return 8192 + k*1024
        vb = 16384 + (part // 2)*8192
        return vb + ((k % 4)*2 + k // 4)*1024
    def rdfrag(i, addr):
        return f"ds_read_b128 {v(FR+4*(i%8),4)}, v{addr} offset:{fragoff(i % 32)} ;@F{i % 32}"
    for i in range(D): A(rdfrag(i, vCUR))
    def rowmax(p, dst):
        s0 = S + 16*p
        out = [f"v_max3_f32 v{dst}, v{s0}, v{s0+1}, v{s0+2}"]
        for r in range(3, 15, 2): out.append(f"v_max3_f32 v{dst}, v{dst}, v{s0+r}, v{s0+r+1}")
        out += [f"v_max_f32 v{dst}, v{dst}, v{s0+15}", f"v_mov_b32 v{vF}, v{dst}", "s_nop 1",
                f"v_permlane32_swap_b32 v{vF}, v{dst}", "s_nop 0", f"v_max_f32 v{dst}, v{dst}, v{vF}"]
        return out
    A.extend(rowmax(0, vDEL))
    for r in range(16): A(f"v_sub_f32 v{S+r}, v{S+r}, v{vDEL}")
    for r in range(16): A(f"v_sub_f32 v{NEGM+r}, v{NEGM+r}, v{vDEL}")
    def sm_elem(p, e):
        s0 = S + 16*p; pp = P + 8*p
        out = [f"v_exp_f32 v{T + e % 4}, v{s0+e}"]
        k = e % 8
        if k >= 1:
            pe = e - 1
            if k == 2: out.append(f"v_add_f32 v{vTS}, v{T + (e-2) % 4}, v{T + pe % 4}")
            elif k > 2: out.append(f"v_add_f32 v{vTS}, v{vTS}, v{T + pe % 4}")
            if pe % 2 == 1: out.append(f"v_cvt_pk_bf16_f32 v{pp + pe//2}, v{T + (pe-1) % 4}, v{T + pe % 4}")
        return out
    slow_sites = []
    def sm_fin(p, unit, site):
        pp = P + 8*p; e = unit*8 + 7
        lab = f"k2_slow_{site}"; ret = f"k2_ret_{site}"
        slow_sites.append((p, unit, lab, ret))
        return [f"v_add_f32 v{vTS}, v{vTS}, v{T + e % 4}",
                f"v_cvt_pk_bf16_f32 v{pp + e//2}, v{T + (e-1) % 4}, v{T + e % 4}",
                f"v_cmp_lt_f32 vcc, s{sTHR}, v{vTS}",
                f"s_cbranch_vccnz {lab}", ret + ":",
                f"v_add_f32 v{vL}, v{vL}, v{vTS}"]
    for e in range(4): A.extend(sm_elem(0, e))
    stamp(A, 3)
    def step_ctl(p):
        return [f"s_cmp_lt_u32 s{sR}, 2", f"s_cbranch_scc1 k2_special{p}", f"k2_back{p}:", f"s_sub_u32 s{sR}, s{sR}, 1"]
    A("s_branch k2_loop")
    A(".p2align 6")
    A("@loop_begin kv")
    A.label("k2_loop")
    A.extend(step_ctl(0))
    for p in range(2):
        base = 16*p
        mf = []; fills = {i: [] for i in range(16)}
        for i in range(8):
            cin = v(NEGM, 16) if i == 0 else v(S + 16*(1-p), 16)
            m = f"{M32} {v(S+16*(1-p),16)}, {v(FR+4*((base+i)%8),4)}, {v(QF+4*i,4)}, {cin}"
            mf.append(m)
        for i in range(8):
            sp, db = i // 4, i % 4
            mf.append(f"{M32} {v(O+16*db,16)}, {v(FR+4*((base+8+i)%8),4)}, {v(P+8*p+4*sp,4)}, {v(O+16*db,16)}")
        for i in range(16):
            if i % 2 == 0: mf[i] = [f"@wait lgkm F{base+i+1}", mf[i]]
            nxt = base + i + D
            if p == 1 and nxt == 32:
                fills[i] += ["s_waitcnt vmcnt(8)", "s_barrier",
                             f"s_add_u32 s{sSLOT}, s{sSLOT}, 32768", f"s_and_b32 s{sSLOT}, s{sSLOT}, 0x1ffff",
                             f"v_add_u32 v{vCUR}, s{sSLOT}, v{vL16}"]
            fills[i].append(rdfrag(nxt, vCUR))
        for g in range(4): fills[g] += sm_elem(p, 4 + g)
        fills[4] = sm_fin(p, 0, f"f{p}0") + fills[4] + sm_elem(p, 8)
        for g in range(5, 12): fills[g] += sm_elem(p, 4 + g)
        fills[11] += ["s_nop 0"] + sm_fin(p, 1, f"f{p}1")
        for g in range(12, 16): fills[g] += sm_elem(1 - p, g - 12)
        if p == 1:
            fills[12] += stage_dma()
            fills[15] += ["s_branch k2_loop"]
        else:
            fills[15] += step_ctl(1)
        A.extend(gaps(mf, fills))
    A("@loop_end kv")
    for p in range(2):
        A.label(f"k2_special{p}")
        A(f"s_cmp_eq_u32 s{sR}, 0\ns_cbranch_scc1 k2_tail{p}")
        A.extend(apply_mask())
        A(f"s_nop 1\ns_branch k2_back{p}")
    for p in range(2):
        A.label(f"k2_tail{p}")
        for i in range(8):
            A(f"ds_read_b128 {v(FR+4*i,4)}, v{vCUR} offset:{fragoff(16*p + 8 + i)} ;@TV{p}_{i}")
        for e in range(4, 8): A.extend(sm_elem(p, e))
        A("s_nop 0")
        A.extend(sm_fin(p, 0, f"t{p}0"))
        mf = []; fills = {i: [] for i in range(8)}
        for i in range(8):
            sp, db = i // 4, i % 4
            mf.append([f"@wait lgkm TV{p}_{i}", f"{M32} {v(O+16*db,16)}, {v(FR+4*i,4)}, {v(P+8*p+4*sp,4)}, {v(O+16*db,16)}"])
        for g in range(4): fills[g] += sm_elem(p, 8 + 2*g) + sm_elem(p, 9 + 2*g)
        fills[3] += ["s_nop 0"] + sm_fin(p, 1, f"t{p}1")
        A.extend(gaps(mf, fills))
        if p == 0: A("s_branch k2_done")
    A.label("k2_done")
    stamp(A, 4)
    A(f"""
s_lshr_b32 s{sJ}, s{sTB}, 1
s_add_u32 s{sJ}, s{sJ}, 1
s_cmp_ge_u32 s{sJ}, s{sNS}
s_cbranch_scc1 k2_epi
s_waitcnt vmcnt(8)
s_barrier
""")
    A.extend(stage_dma())
    A.label("k2_epi")
    A(f"""
v_mov_b32 v{vF}, v{vL}
s_nop 1
v_permlane32_swap_b32 v{vF}, v{vL}
s_nop 0
v_add_f32 v{vL}, v{vL}, v{vF}
v_rcp_f32 v{vL}, v{vL}
s_lshl_b32 s{sT}, s{sTB}, 18
s_lshl_b32 s{sT2}, s{sHEAD}, 12
s_add_u32 s{sXB}, s{sT}, s{sT2}
s_nop 3
""")
    for db in range(4):
        for sp in range(2):
            o = O + db*16 + sp*8; d = FR + (db*2 + sp)*4
            for r in range(8): A(f"v_mul_f32 v{o+r}, v{o+r}, v{vL}")
            for r in range(4): A(f"v_cvt_pk_bf16_f32 v{d+r}, v{o+2*r}, v{o+2*r+1}")
            A(f"buffer_store_dwordx4 {v(d,4)}, v{vCO}, s[{S_CTX}:{S_CTX+3}], s{sXB} offen offset:{db*1024 + sp*512} sc1")
    stamp(A, 5)
    A.label("k2_idle")
    A(f"""
s_add_u32 s{sJ}, s{sJ}, 1
s_cmp_ge_u32 s{sJ}, s{sNS}
s_cbranch_scc1 k2_fin
s_waitcnt vmcnt(8)
s_barrier
""")
    A.extend(stage_dma())
    A("s_branch k2_idle")
    for (p, unit, lab, ret) in slow_sites:
        A.label(lab)
        A("s_nop 7\ns_nop 7")
        A.extend(rowmax(p, vDEL))
        A(f"s_call_b64 s[{sRET}:{sRET+1}], k2_rescale")
        for e in range(unit*8, unit*8 + 8): A.extend(sm_elem(p, e))
        A("s_nop 0")
        e = unit*8 + 7
        A(f"v_add_f32 v{vTS}, v{vTS}, v{T + e % 4}")
        A(f"v_cvt_pk_bf16_f32 v{P + 8*p + e//2}, v{T + (e-1) % 4}, v{T + e % 4}")
        A(f"s_nop 1\ns_branch {ret}")
    A.label("k2_rescale")
    A(f"""
v_max_f32 v{vDEL}, 0, v{vDEL}
v_sub_f32 v{vF}, 0, v{vDEL}
v_exp_f32 v{vF}, v{vF}
""")
    for r in range(32): A(f"v_sub_f32 v{S+r}, v{S+r}, v{vDEL}")
    for r in range(16): A(f"v_sub_f32 v{NEGM+r}, v{NEGM+r}, v{vDEL}")
    for r in range(64): A(f"v_mul_f32 v{O+r}, v{O+r}, v{vF}")
    A(f"v_mul_f32 v{vL}, v{vL}, v{vF}\ns_nop 1\ns_setpc_b64 s[{sRET}:{sRET+1}]")
    A.label("k2_fin")
    stamp_flush(A, 1, 7, sW)
    A.label(f"{name}_end")
    A("s_endpgm")
    A.lines = resolve_waits(A.lines)
    return name, A, desc(name, 256, 256), (256, 512, 160*1024)


def k35(which):
    A = Asm()
    name = f"k{which}_kernel"
    header(A, name)
    K3 = which == 3
    NSTEP = 32 if K3 else 11
    S_ACT, S_W, S_RES, S_MOD, S_O1, S_O2, S_ST, S_WG, S_WU, S_UB = 8, 12, 16, 20, 24, 28, 32, 36, 40, 44
    sW, sMT, sNT, sT, sT2, sAO, sWO, sLB, sCNT, sM0 = 48, 49, 50, 51, 52, 53, 54, 55, 56, 57
    vL16, vWD, vWR, vT, vT2, vT3, vTID = 1, 2, 3, 7, 8, 9, 10
    ACC, AF, WF = 16, 80, 160
    R = 4
    A(f"""
s_cmp_ge_u32 s2, 256
s_cbranch_scc1 {name}_end
""")
    stamp(A, 0)
    A(f"""
s_load_dwordx2 s[64:65], s[0:1], {ARG['wo'] if K3 else ARG['wd']}
s_load_dwordx2 s[66:67], s[0:1], 112
s_load_dwordx2 s[68:69], s[0:1], {ARG['x'] if K3 else ARG['out']}
s_load_dwordx4 s[72:75], s[0:1], {ARG['wg']}
v_mov_b32 v{vTID}, v0
v_lshrrev_b32 v1, 6, v0
v_and_b32 v0, 63, v0
s_and_b32 s{sT}, s2, 7
v_readfirstlane_b32 s{sW}, v1
s_lshr_b32 s{sT2}, s2, 3
s_and_b32 s{sNT}, s{sT2}, 7
s_lshr_b32 s{sT2}, s{sT2}, 3
s_lshl_b32 s{sMT}, s{sT}, 2
s_add_u32 s{sMT}, s{sMT}, s{sT2}
v_lshlrev_b32 v{vL16}, 4, v0
; W dma voffset: (l/8)*1024 + ((l%8) ^ ((l>>4)<<1))*16
v_lshrrev_b32 v{vT}, 3, v0
v_and_b32 v{vT2}, 7, v0
v_lshrrev_b32 v{vT3}, 4, v0
v_lshlrev_b32 v{vWD}, 1, v{vT3}
v_xor_b32 v{vWD}, v{vWD}, v{vT2}
v_lshlrev_b32 v{vWD}, 4, v{vWD}
v_lshl_add_u32 v{vWD}, v{vT}, 10, v{vWD}
; tr read addr: g=l/16, r=(l%16)/4, c=l%4: row=16(g>>1)+4(g&1)+r ; swz=((row>>1)&3) ; addr=row*128 + swz*32 + c*8 + wave*ring
v_and_b32 v{vT}, 15, v0
v_lshrrev_b32 v{vT}, 2, v{vT}             ; r
v_and_b32 v{vT2}, 1, v{vT3}
v_lshl_add_u32 v{vT}, v{vT2}, 2, v{vT}    ; 4(g&1)+r
v_lshrrev_b32 v{vT2}, 1, v{vT}            ; swz
v_lshrrev_b32 v{vT3}, 1, v{vT3}
v_lshl_add_u32 v{vT}, v{vT3}, 4, v{vT}    ; row
v_lshlrev_b32 v{vWR}, 7, v{vT}
v_lshl_add_u32 v{vWR}, v{vT2}, 5, v{vWR}
v_and_b32 v{vT}, 3, v0
v_lshl_add_u32 v{vWR}, v{vT}, 3, v{vWR}
s_mul_i32 s{sLB}, s{sW}, {(R+1)*4096}
v_add_u32 v{vWR}, s{sLB}, v{vWR}
v_xor_b32 v{vWR+1}, 32, v{vWR}
v_xor_b32 v{vWR+2}, 64, v{vWR}
v_xor_b32 v{vWR+3}, 96, v{vWR}
s_waitcnt lgkmcnt(0)
""")
    if K3:
        srd(A, S_ACT, 66, 16*MB, WS_CTX); srd(A, S_W, 64, 4*MB); srd(A, S_RES, 68, 2*MB)
        srd(A, S_O1, 66, 2*MB, WS_X1); srd(A, S_O2, 66, 2*MB, WS_Y); srd(A, S_ST, 66, 131072, WS_STAT)
        srd(A, S_WG, 72, 512*1376*2); srd(A, S_WU, 74, 512*1376*2); srd(A, S_UB, 66, 2*1376*8, WS_UB)
        TSTR, KSTR = 131072, 1024
    else:
        srd(A, S_ACT, 66, 43*131072, WS_G); srd(A, S_W, 64, 1376*512*2); srd(A, S_RES, 66, 2*MB, WS_X1)
        srd(A, S_O1, 68, 2*MB)
        TSTR, KSTR = 1024, 131072
    srd(A, S_MOD, 66, 16384 + 6144, WS_MOD)
    A(f"""
s_mul_i32 s{sAO}, s{sMT}, {4*TSTR}
s_mul_i32 s{sT}, s{sW}, {NSTEP*KSTR}
s_add_u32 s{sAO}, s{sAO}, s{sT}
s_mul_i32 s{sWO}, s{sW}, {NSTEP*32*1024}
s_lshl_b32 s{sT}, s{sNT}, 7
s_add_u32 s{sWO}, s{sWO}, s{sT}
""")
    def issue(st):
        out = []
        slot = st % (R + 1)
        for m in range(4):
            out.append([f"s_add_u32 m0, s{sLB}, {slot*4096 + m*1024}",
                        f"s_add_u32 s{sT}, s{sWO}, {st*32768 + m*8192}",
                        f"buffer_load_dwordx4 v{vWD}, s[{S_W}:{S_W+3}], s{sT} offen lds ;@W{st}"])
        for T in range(4):
            r = AF + slot*16 + T*4
            out.append([f"s_add_u32 s{sT2}, s{sAO}, {st*KSTR + T*TSTR}",
                        f"buffer_load_dwordx4 v[{r}:{r+3}], v{vL16}, s[{S_ACT}:{S_ACT+3}], s{sT2} offen ;@A{st}"])
        return out
    def readW(st):
        out = []
        for t in range(4):
            for rd in range(2):
                r = WF + (st % 2)*16 + t*4 + rd*2
                out.append(f"ds_read_b64_tr_b16 v[{r}:{r+1}], v{vWR+t} offset:{(st % (R+1))*4096 + rd*1024} ;@RW{st}")
        return out
    def flat(x): return [y for z in x for y in (z if isinstance(z, list) else [z])]
    for st in range(R): A.extend(flat(issue(st)))
    A("@wait vm W0")
    stamp(A, 1)
    A.extend(readW(0))
    for st in range(NSTEP):
        mf = []
        for t in range(4):
            for T in range(4):
                d = ACC + (t*4 + T)*4
                cin = "0" if st == 0 else v(d, 4)
                mf.append(f"{M16} {v(d,4)}, {v(WF+(st%2)*16+t*4,4)}, {v(AF+(st%(R+1))*16+T*4,4)}, {cin}")
        fill = []
        if st + R < NSTEP: fill += issue(st + R)
        if st + 1 < NSTEP: fill += [f"@wait vm W{st+1}"] + readW(st + 1)
        A(f"@wait vm A{st} lgkm RW{st}")
        A.extend(interleave(mf, fill) if fill else mf)
    stamp(A, 2)
    RES, GA, SC = 80, 88, 96
    vRO, vMO, vRD, vWRr = 11, 12, 13, 14
    A(f"""
v_lshrrev_b32 v{vT}, 3, v{vTID}           ; token (0..31)
v_and_b32 v{vT2}, 7, v{vTID}
v_lshlrev_b32 v{vRO}, 10, v{vT}
v_lshl_add_u32 v{vRO}, v{vT2}, 4, v{vRO}
v_lshlrev_b32 v{vMO}, 5, v{vT2}
s_lshl_b32 s{sAO}, s{sMT}, 16
s_lshl_b32 s{sT}, s{sNT}, 7
s_add_u32 s{sAO}, s{sAO}, s{sT}
s_add_u32 s{sWO}, s{sAO}, 32768
s_lshl_b32 s{sT}, s{sNT}, 8
s_add_u32 s{sT2}, s{sT}, {(2 if K3 else 5)*2048}
buffer_load_dwordx4 v[{RES}:{RES+3}], v{vRO}, s[{S_RES}:{S_RES+3}], s{sAO} offen
buffer_load_dwordx4 v[{RES+4}:{RES+7}], v{vRO}, s[{S_RES}:{S_RES+3}], s{sWO} offen
buffer_load_dwordx4 v[{GA}:{GA+3}], v{vMO}, s[{S_MOD}:{S_MOD+3}], s{sT2} offen
buffer_load_dwordx4 v[{GA+4}:{GA+7}], v{vMO}, s[{S_MOD}:{S_MOD+3}], s{sT2} offen offset:16
""")
    if K3:
        A(f"""
s_add_u32 s{sT2}, s{sT}, {4*2048}
buffer_load_dwordx4 v[{SC}:{SC+3}], v{vMO}, s[{S_MOD}:{S_MOD+3}], s{sT2} offen
buffer_load_dwordx4 v[{SC+4}:{SC+7}], v{vMO}, s[{S_MOD}:{S_MOD+3}], s{sT2} offen offset:16
""")
    PITCH = 272; PART = 64*PITCH; RB = 4*(R+1)*4096
    A(f"""
v_and_b32 v{vT3}, 15, v0
v_mul_u32_u24 v{vWRr}, {PITCH}, v{vT3}
v_lshrrev_b32 v{vT3}, 4, v0
v_lshl_add_u32 v{vWRr}, v{vT3}, 4, v{vWRr}
s_mul_i32 s{sT}, s{sW}, {PART}
s_add_u32 s{sT}, s{sT}, {RB}
v_add_u32 v{vWRr}, s{sT}, v{vWRr}
v_mul_u32_u24 v{vRD}, {PITCH}, v{vT}
v_lshl_add_u32 v{vRD}, v{vT2}, 5, v{vRD}
v_add_u32 v{vRD}, {RB}, v{vRD}
""")
    for t in range(4):
        for T in range(4):
            A(f"ds_write_b128 v{vWRr}, {v(ACC+(t*4+T)*4,4)} offset:{T*16*PITCH + t*64}")
    A("s_waitcnt lgkmcnt(0)\ns_barrier")
    PR = 16
    for ps in range(2):
        for w in range(4):
            for hh in range(2):
                r = PR + (ps*4 + w)*8 + hh*4
                A(f"ds_read_b128 {v(r,4)}, v{vRD} offset:{w*PART + ps*32*PITCH + hh*16} ;@P{ps}")
    A("s_waitcnt vmcnt(0)")
    X = 104; Y = 120; ST = 136; TM = 140
    for ps in range(2):
        A(f"@wait lgkm P{ps}")
        b = PR + ps*32
        for j in range(8):
            A(f"v_add_f32 v{b+j}, v{b+j}, v{b+8+j}")
            A(f"v_add_f32 v{b+16+j}, v{b+16+j}, v{b+24+j}")
        for j in range(8): A(f"v_add_f32 v{b+j}, v{b+j}, v{b+16+j}")
        x = X + ps*8
        for j in range(4):
            A(f"v_lshlrev_b32 v{x+2*j}, 16, v{RES+ps*4+j}")
            A(f"v_and_b32 v{x+2*j+1}, 0xffff0000, v{RES+ps*4+j}")
        for j in range(8): A(f"v_fmac_f32 v{x+j}, v{b+j}, v{GA+j}")
        for j in range(4): A(f"v_cvt_pk_bf16_f32 v{RES+ps*4+j}, v{x+2*j}, v{x+2*j+1}")
        A(f"buffer_store_dwordx4 {v(RES+ps*4,4)}, v{vRO}, s[{S_O1}:{S_O1+3}], s{sAO if ps == 0 else sWO} offen" + (" sc1" if K3 else ""))
    if K3:
        for ps in range(2):
            x = X + ps*8
            for j in range(4):
                A(f"v_lshlrev_b32 v{x+2*j}, 16, v{RES+ps*4+j}")
                A(f"v_and_b32 v{x+2*j+1}, 0xffff0000, v{RES+ps*4+j}")
            y = Y + ps*8
            for j in range(8): A(f"v_mul_f32 v{y+j}, v{x+j}, v{SC+j}")
            for j in range(4): A(f"v_cvt_pk_bf16_f32 v{y+j}, v{y+2*j}, v{y+2*j+1}")
            A(f"v_add_f32 v{ST+2*ps}, v{x}, v{x+1}")
            for j in range(2, 8): A(f"v_add_f32 v{ST+2*ps}, v{ST+2*ps}, v{x+j}")
        A(f"""
v_lshrrev_b32 v{vT3}, 1, v{vT2}
v_lshlrev_b32 v{vMO}, 10, v{vT3}
v_and_b32 v{vT3}, 1, v{vT2}
v_lshl_add_u32 v{vMO}, v{vT3}, 9, v{vMO}
v_lshl_add_u32 v{vMO}, v{vT}, 4, v{vMO}
s_lshl_b32 s{sT}, s{sMT}, 16
s_lshl_b32 s{sT2}, s{sNT}, 12
s_add_u32 s{sT}, s{sT}, s{sT2}
s_add_u32 s{sT2}, s{sT}, 32768
buffer_store_dwordx4 {v(Y,4)}, v{vMO}, s[{S_O2}:{S_O2+3}], s{sT} offen
buffer_store_dwordx4 {v(Y+8,4)}, v{vMO}, s[{S_O2}:{S_O2+3}], s{sT2} offen
""")
        def red8(regs):
            for pat in ("quad_perm:[1,0,3,2]", "quad_perm:[2,3,0,1]", "row_half_mirror"):
                A("s_nop 0")
                for r in regs: A(f"v_add_f32_dpp v{r}, v{r}, v{r} {pat} row_mask:0xf bank_mask:0xf")
        red8([ST, ST+2])
        for ps in range(2):
            x = X + ps*8
            A(f"v_mul_f32 v{ST+2*ps}, {0x3c800000}, v{ST+2*ps}")
            for j in range(8): A(f"v_sub_f32 v{x+j}, v{x+j}, v{ST+2*ps}")
            A(f"v_mul_f32 v{ST+2*ps+1}, v{x}, v{x}")
            for j in range(1, 8): A(f"v_fmac_f32 v{ST+2*ps+1}, v{x+j}, v{x+j}")
        red8([ST+1, ST+3])
        A(f"""
v_lshlrev_b32 v{vMO}, 6, v{vT}
v_cmp_eq_u32 vcc, 0, v{vT2}
s_lshl_b32 s{sT}, s{sMT}, 12
s_lshl_b32 s{sT2}, s{sNT}, 3
s_add_u32 s{sT}, s{sT}, s{sT2}
s_mov_b64 exec, vcc
buffer_store_dwordx2 {v(ST,2)}, v{vMO}, s[{S_ST}:{S_ST+3}], s{sT} offen
buffer_store_dwordx2 {v(ST+2,2)}, v{vMO}, s[{S_ST}:{S_ST+3}], s{sT} offen offset:2048
s_mov_b64 exec, -1
""")
        BF, UA, UW = 144, 160, 164
        A(f"""
s_cmp_ge_u32 s2, 172
s_cbranch_scc1 {name}_noub
s_cmp_ge_u32 s2, 86
s_cselect_b32 s{S_WG}, s{S_WU}, s{S_WG}
s_cselect_b32 s{S_WG+1}, s{S_WU+1}, s{S_WG+1}
s_cselect_b32 s{sT2}, 86, 0
s_sub_u32 s{sT2}, s2, s{sT2}
v_lshrrev_b32 v{vT}, 1, v0
v_mul_u32_u24 v{vT}, 2752, v{vT}
v_and_b32 v{vT2}, 1, v0
v_lshl_add_u32 v{vT}, v{vT2}, 4, v{vT}
s_mul_i32 s{sT}, s{sW}, {128*2752}
s_lshl_b32 s{sCNT}, s{sT2}, 5
s_add_u32 s{sT}, s{sT}, s{sCNT}
""")
        for m in range(4):
            A(f"s_add_u32 m0, s{sLB}, {m*1024}")
            A(f"s_add_u32 s{sCNT}, s{sT}, {m*32*2752}")
            A(f"buffer_load_dwordx4 v{vT}, s[{S_WG}:{S_WG+3}], s{sCNT} offen lds")
        A(f"""
v_and_b32 v{vT2}, 15, v0
v_lshrrev_b32 v{vT3}, 4, v0
v_lshlrev_b32 v{vT3}, 4, v{vT3}
v_lshlrev_b32 v{vMO}, 10, v{vT2}
v_sub_u32 v{vT3}, v{vT3}, v{vMO}
v_add_u32 v{vT3}, {16384 + 4*1024}, v{vT3}
v_mov_b32 v{vMO}, 0x100000
v_cmp_gt_u32 vcc, 2, v{vT2}
s_lshl_b32 s{sCNT}, s{sW}, 8
s_nop 0
v_cndmask_b32 v{vT3}, v{vMO}, v{vT3}, vcc
""")
        for m in range(4):
            A(f"buffer_load_dwordx4 {v(BF+4*m,4)}, v{vT3}, s[{S_MOD}:{S_MOD+3}], s{sCNT} offen offset:{m*64}")
        A(f"""
v_lshrrev_b32 v{vT}, 4, v0
v_lshlrev_b32 v{vT}, 8, v{vT}
v_lshl_add_u32 v{vT}, v{vT2}, 3, v{vT}    ; g*256 + (r*4+c)*8 = g*256 + r*32 + c*8
v_add_u32 v{vT}, s{sLB}, v{vT}
s_waitcnt vmcnt(0)
""")
        for m in range(4):
            for rd in range(2):
                A(f"ds_read_b64_tr_b16 {v(UW+4*m+2*rd,2)}, v{vT} offset:{m*1024 + rd*128}")
        A("s_waitcnt lgkmcnt(0)")
        for m in range(4):
            A(f"{M16} {v(UA,4)}, {v(UW+4*m,4)}, {v(BF+4*m,4)}, {'0' if m == 0 else v(UA,4)}")
        RB2 = RB + 4*PART
        A(f"""
s_lshl_b32 s{sT}, s{sW}, 10
s_add_u32 s{sT}, s{sT}, {RB2}
v_add_u32 v{vT}, s{sT}, v{vL16}
v_add_u32 v{vT3}, {RB2}, v{vL16}
s_nop 4
ds_write_b128 v{vT}, {v(UA,4)}
s_waitcnt lgkmcnt(0)
s_barrier
""")
        for w in range(4): A(f"ds_read_b128 {v(UW+4*w,4)}, v{vT3} offset:{w*1024}")
        A("s_waitcnt lgkmcnt(0)")
        for j in range(4):
            A(f"v_add_f32 v{UW+j}, v{UW+j}, v{UW+4+j}")
            A(f"v_add_f32 v{UW+8+j}, v{UW+8+j}, v{UW+12+j}")
        for j in range(4): A(f"v_add_f32 v{UW+j}, v{UW+j}, v{UW+8+j}")
        A(f"""
v_mul_u32_u24 v{vT}, {2*1376*4}, v{vT2}
v_lshrrev_b32 v{vT3}, 4, v0
v_lshl_add_u32 v{vT}, v{vT3}, 4, v{vT}
v_cndmask_b32 v{vT}, v{vMO}, v{vT}, vcc
s_lshl_b32 s{sT}, s2, 6
s_cmp_lg_u32 s{sW}, 0
s_cbranch_scc1 {name}_noub
buffer_store_dwordx4 {v(UW,4)}, v{vT}, s[{S_UB}:{S_UB+3}], s{sT} offen
""")
        A.label(f"{name}_noub")
    stamp_flush(A, which - 1, 4, sW)
    A.label(f"{name}_end")
    A("s_endpgm")
    A.lines = resolve_waits(A.lines)
    return name, A, desc(name, 256, 256), (256, 256, 4*(R+1)*4096 + 4*64*272 + 4096)

def k3(): return k35(3)
def k5(): return k35(5)

def k4():
    A = Asm()
    name = "k4_kernel"
    header(A, name)
    S_Y, S_WG, S_WU, S_ST, S_UB, S_G = 8, 12, 16, 20, 24, 28
    sW, sMT, sNT, sT, sT2, sYO, sWO, sM0 = 48, 49, 50, 51, 52, 53, 54, 55
    vL16, vWD, vWR, vT, vT2, vT3, vMU, vRS, vUB, vGO = 1, 2, 5, 8, 9, 10, 11, 12, 13, 14
    ACC, YF, WF, STT = 16, 112, 176, 224
    NSL, RING, SLOT = 8, 6, 24576
    LDS_UB = RING*SLOT
    A(f"""
s_cmp_ge_u32 s2, 240
s_cbranch_scc1 {name}_end
""")
    stamp(A, 0)
    A(f"""
s_load_dwordx4 s[64:67], s[0:1], {ARG['wg']}
s_load_dwordx2 s[68:69], s[0:1], 112
v_lshrrev_b32 v1, 6, v0
v_and_b32 v0, 63, v0
s_and_b32 s{sT}, s2, 7
v_readfirstlane_b32 s{sW}, v1
s_lshr_b32 s{sT2}, s2, 3                  ; 0..29
s_and_b32 s{sMT}, s{sT2}, 1
s_lshl_b32 s{sT}, s{sT}, 1
s_add_u32 s{sMT}, s{sMT}, s{sT}
s_lshr_b32 s{sNT}, s{sT2}, 1
v_lshlrev_b32 v{vL16}, 4, v0
""")
    for i in range(3):
        A(f"""
v_add_u32 v{vT}, {i*64}, v0
v_mul_u32_u24 v{vT2}, 43691, v{vT}
v_lshrrev_b32 v{vT2}, 19, v{vT2}          ; /12
v_mul_u32_u24 v{vT3}, 12, v{vT2}
v_sub_u32 v{vT3}, v{vT}, v{vT3}
v_mul_u32_u24 v{vWD+i}, 2752, v{vT2}
v_lshl_add_u32 v{vWD+i}, v{vT3}, 4, v{vWD+i}
""")
    A(f"""
v_lshrrev_b32 v{vT}, 5, v0
v_and_b32 v{vT2}, 15, v0
v_lshrrev_b32 v{vT3}, 2, v{vT2}
v_lshl_add_u32 v{vT3}, v{vT}, 3, v{vT3}
v_mul_u32_u24 v{vWR}, 192, v{vT3}
v_and_b32 v{vT3}, 16, v0
v_lshl_add_u32 v{vWR}, v{vT3}, 1, v{vWR}
v_and_b32 v{vT3}, 3, v0
v_lshl_add_u32 v{vWR}, v{vT3}, 3, v{vWR}
v_add_u32 v{vWR+1}, {2*SLOT}, v{vWR}
v_add_u32 v{vWR+2}, {4*SLOT}, v{vWR}
v_lshlrev_b32 v{vUB}, 4, v{vT}
v_add_u32 v{vUB}, {LDS_UB}, v{vUB}
; G store voffset: ((l>>4)&1)*1024 + h*256 + (l%16)*16
v_and_b32 v{vT3}, 16, v0
v_lshlrev_b32 v{vGO}, 6, v{vT3}
v_lshl_add_u32 v{vGO}, v{vT}, 8, v{vGO}
v_lshl_add_u32 v{vGO}, v{vT2}, 4, v{vGO}
s_waitcnt lgkmcnt(0)
""")
    srd(A, S_WG, 64, 512*1376*2); srd(A, S_WU, 66, 512*1376*2)
    srd(A, S_Y, 68, 2*MB, WS_Y); srd(A, S_ST, 68, 131072, WS_STAT); srd(A, S_UB, 68, 2*1376*8, WS_UB); srd(A, S_G, 68, 43*131072, WS_G)
    A(f"""
s_lshl_b32 s{sYO}, s{sMT}, 2
s_add_u32 s{sYO}, s{sYO}, s{sW}           ; tokblk32
s_lshl_b32 s{sT}, s{sYO}, 11
s_lshl_b32 s{sYO}, s{sYO}, 15
v_and_b32 v{vT}, 31, v0
v_lshlrev_b32 v{vT}, 6, v{vT}
s_mul_i32 s{sWO}, s{sW}, {16*2752}
s_mul_i32 s{sT2}, s{sNT}, 192
s_add_u32 s{sWO}, s{sWO}, s{sT2}
s_mul_i32 s{sM0}, s{sW}, 3072
""")
    for i in range(4): A(f"buffer_load_dwordx4 {v(STT+4*i,4)}, v{vT}, s[{S_ST}:{S_ST+3}], s{sT} offen offset:{16*i} ;@ST")
    A(f"""
s_mul_i32 s{sT}, s{sW}, {1376*4}
s_mul_i32 s{sT2}, s{sNT}, 384
s_add_u32 s{sT}, s{sT}, s{sT2}
s_lshl_b32 s{sT2}, s{sW}, 10
s_add_u32 m0, s{sT2}, {LDS_UB}
s_nop 0
buffer_load_dwordx4 v{vL16}, s[{S_UB}:{S_UB+3}], s{sT} offen lds ;@UB
""")
    def loadY(ks):
        r = YF + (ks % 16)*4
        return [[f"s_add_u32 s{sT2}, s{sYO}, {(ks // 4)*4096}",
                 f"buffer_load_dwordx4 v[{r}:{r+3}], v{vL16}, s[{S_Y}:{S_Y+3}], s{sT2} offen offset:{(ks % 4)*1024} ;@Y{ks}"]]
    def dmaW(n):
        out = []
        for mat in range(2):
            sr = S_WG if mat == 0 else S_WU
            for i in range(3):
                out.append([f"s_add_u32 m0, s{sM0}, {(n % RING)*SLOT + mat*12288 + i*1024}",
                            f"s_add_u32 s{sT}, s{sWO}, {n*64*2752}",
                            f"buffer_load_dwordx4 v{vWD+i}, s[{sr}:{sr+3}], s{sT} offen lds ;@W{n}"])
        return out
    def flat(x): return [y for z in x for y in (z if isinstance(z, list) else [z])]
    def readW(ks):
        n = ks // 4; sl = n % RING
        out = []
        for ct in range(6):
            for rd in range(2):
                r = WF + (ks % 2)*24 + ct*4 + rd*2
                off = (sl % 2)*SLOT + (ct // 3)*12288 + ((ks % 4)*16 + rd*4)*192 + (ct % 3)*64
                out.append(f"ds_read_b64_tr_b16 v[{r}:{r+1}], v{vWR + sl//2} offset:{off} ;@RW{ks}_{ct}")
        return out
    A.extend(flat(dmaW(0)))
    for ks in range(4): A.extend(flat(loadY(ks)))
    A.extend(flat(dmaW(1)))
    for ks in range(4, 8): A.extend(flat(loadY(ks)))
    A("@wait vm W0\ns_barrier")
    stamp(A, 1)
    A.extend(readW(0))
    pend = {0: dmaW(2), 1: loadY(8) + loadY(9) + loadY(10) + loadY(11), 2: dmaW(3), 3: loadY(12) + loadY(13) + loadY(14) + loadY(15),
            4: dmaW(4), 6: dmaW(5), 8: dmaW(6), 12: dmaW(7)}
    for ks in range(32):
        pre = []
        if ks % 4 == 3 and ks < 31:
            pre += [f"@wait vm W{(ks+1)//4}", "s_barrier"]
        pre.append(f"@wait vm Y{ks}")
        mf = []
        for ct in range(6):
            cin = "0" if ks == 0 else v(ACC + ct*16, 16)
            mf.append([f"@wait lgkm RW{ks}_{ct}", f"{M32} {v(ACC+ct*16,16)}, {v(WF+(ks%2)*24+ct*4,4)}, {v(YF+(ks%16)*4,4)}, {cin}"])
        fill = (readW(ks + 1) if ks < 31 else []) + pend.get(ks, [])
        if 5 <= ks <= 20: fill += loadY(ks + 11)
        A.extend(pre)
        out = []
        per = -(-len(fill) // 6)
        for i, m in enumerate(mf):
            out += m + flat(fill[i*per:(i+1)*per])
        A.extend(out)
    stamp(A, 2)
    A(f"v_add_f32 v{vMU}, v{STT}, v{STT+2}")
    for i in range(2, 8): A(f"v_add_f32 v{vMU}, v{vMU}, v{STT+2*i}")
    A(f"v_mul_f32 v{vMU}, 0x3e000000, v{vMU}")
    A(f"v_add_f32 v{vRS}, v{STT+1}, v{STT+3}")
    for i in range(2, 8): A(f"v_add_f32 v{vRS}, v{vRS}, v{STT+2*i+1}")
    A(f"v_mov_b32 v{vT2}, 0")
    for i in range(8):
        A(f"v_sub_f32 v{vT}, v{STT+2*i}, v{vMU}")
        A(f"v_fmac_f32 v{vT2}, v{vT}, v{vT}")
    A(f"""
v_fmac_f32 v{vRS}, 0x42800000, v{vT2}
v_mov_b32 v{vT}, 0x3727c5ac
v_fmac_f32 v{vT}, 0x3b000000, v{vRS}
v_rsq_f32 v{vRS}, v{vT}
s_lshl_b32 s{sT}, s{sMT}, 3
s_lshl_b32 s{sT2}, s{sW}, 1
s_add_u32 s{sT}, s{sT}, s{sT2}
s_lshl_b32 s{sT}, s{sT}, 10               ; tokblk16*1024
s_mul_i32 s{sT2}, s{sNT}, {3*131072}
s_add_u32 s{sYO}, s{sT}, s{sT2}
v_mul_f32 v{vMU}, v{vMU}, v{vRS}          ; r*mu
s_mov_b32 s56, 0xc0135761                 ; -2*log2e*sqrt(2/pi)
s_mov_b32 s57, 0xbdd2d3e8                 ; that * 0.044715
""")
    U = YF
    for tl in range(3):
        for vec in range(4):
            for q in range(4):
                A(f"ds_read_b128 {v(U+vec*16+q*4,4)}, v{vUB} offset:{vec*1024 + tl*128 + q*32} ;@U{tl}")
        A(f"@wait lgkm U{tl}")
        g0 = ACC + tl*16; u0 = ACC + (3 + tl)*16
        TT = WF
        for r in range(16):
            A(f"v_fma_f32 v{U+32+r}, -v{vMU}, v{U+r}, v{U+32+r}")
            A(f"v_fma_f32 v{U+48+r}, -v{vMU}, v{U+16+r}, v{U+48+r}")
        for r in range(16):
            A(f"v_fma_f32 v{g0+r}, v{g0+r}, v{vRS}, v{U+32+r}")
            A(f"v_fma_f32 v{u0+r}, v{u0+r}, v{vRS}, v{U+48+r}")
        for r in range(16): A(f"v_mul_f32 v{TT+r}, v{g0+r}, v{g0+r}")
        A(f"v_mov_b32 v{vT}, s56")
        for r in range(16): A(f"v_fma_f32 v{TT+r}, v{TT+r}, s57, v{vT}")
        for r in range(16): A(f"v_mul_f32 v{TT+r}, v{TT+r}, v{g0+r}")
        for r in range(16): A(f"v_exp_f32 v{TT+r}, v{TT+r}")
        for r in range(16): A(f"v_mul_f32 v{g0+r}, v{g0+r}, v{u0+r}")
        for r in range(16): A(f"v_add_f32 v{TT+r}, 1.0, v{TT+r}")
        for r in range(16): A(f"v_rcp_f32 v{TT+r}, v{TT+r}")
        A("s_nop 0")
        for r in range(16): A(f"v_mul_f32 v{g0+r}, v{g0+r}, v{TT+r}")
        for r in range(8): A(f"v_cvt_pk_bf16_f32 v{u0+r}, v{g0+2*r}, v{g0+2*r+1}")
        A(f"s_add_u32 s{sT}, s{sYO}, {tl*131072}")
        for sp in range(2):
            A(f"buffer_store_dwordx4 {v(u0+4*sp,4)}, v{vGO}, s[{S_G}:{S_G+3}], s{sT} offen offset:{sp*512} sc1")
    stamp_flush(A, 3, 4, sW)
    A.label(f"{name}_end")
    A("s_endpgm")
    A.lines = resolve_waits(A.lines)
    return name, A, desc(name, 256, 256), (240, 256, RING*SLOT + 4096)

KERNELS = [k1, k2, k3, k4, k5]

def build(kernels=None):
    ks = [k() for k in (kernels or KERNELS)]
    hdr = open("cdna_kernels/" + NAME + ".s.ref").read().split("; Override launch")[0]
    out = hdr
    for name, A, d, (grid, blk, lds) in ks:
        out += f"; @launch kernel={name} grid=({grid},1,1) block=({blk},1,1) lds={lds}\n"
    out += '.amdgcn_target "amdgcn-amd-amdhsa--gfx950"\n.text\n'
    for name, A, d, _ in ks:
        pr = check_hazards(A.lines)
        out += A.text()
    out += '.section .rodata,"a"\n'
    for name, A, d, _ in ks:
        out += d
    return out

if __name__ == "__main__":
    if "diag" in sys.argv[2:]: DIAG = True
    if "cyc" in sys.argv[2:]: CLK = "s_memtime"
    txt = build()
    path = sys.argv[1] if len(sys.argv) > 1 else "cdna_kernels/" + NAME + ".s"
    open(path, "w").write(txt)
    print("wrote", path, len(txt))
```

```python
import sys
from asmlib import *

NAME = "adaLN_cond__compressed_kv_cla__geglu_ffn__prompt"
MB = 1 << 20
WS_KF, WS_VF, WS_CTX, WS_XH, WS_X1, WS_G, WS_MOD, WS_STAT = 0, 16*MB, 32*MB, 48*MB, 50*MB, 52*MB, 58*MB, 58*MB + 65536
WS_MODB, WS_UB, WS_Y = 58*MB + 16384, 58*MB + 32768, 62*MB
ARG = dict(x=0, ckv=8, wq=16, wuk=24, wuv=32, wo=40, bx=48, wg=56, wu=64, wd=72, c=80, wmod=88, out=96, dbg=104, ws=112)
M16 = "v_mfma_f32_16x16x32_bf16"
M32 = "v_mfma_f32_32x32x16_bf16"
LOG2E = 0x3fb8aa3b

def srd(A, d, base, size, off=0):
    if off:
        A(f"s_add_u32 s{d}, s{base}, {off}")
        A(f"s_addc_u32 s{d+1}, s{base+1}, 0")
    else:
        A(f"s_mov_b32 s{d}, s{base}")
        A(f"s_mov_b32 s{d+1}, s{base+1}")
    A(f"s_mov_b32 s{d+2}, {size}")
    A(f"s_mov_b32 s{d+3}, 0x20000")

def allreduce64(A, regs, t0, op="v_add_f32"):
    n = len(regs)
    for pat in ("quad_perm:[1,0,3,2]", "quad_perm:[2,3,0,1]", "row_half_mirror", "row_mirror"):
        if n < 3: A(f"s_nop {2 - n}" if n < 3 else "")
        for r in regs:
            A(f"{op}_dpp v{r}, v{r}, v{r} {pat} row_mask:0xf bank_mask:0xf")
    for sw in ("v_permlane16_swap_b32", "v_permlane32_swap_b32"):
        for i, r in enumerate(regs): A(f"v_mov_b32 v{t0+i}, v{r}")
        A("s_nop 1")
        for i, r in enumerate(regs): A(f"{sw} v{t0+i}, v{r}")
        A("s_nop 0")
        for i, r in enumerate(regs): A(f"{op} v{r}, v{r}, v{t0+i}")

DIAG = False
ABL = set()
CLK = "s_memrealtime"
WS_DIAG = 60*MB
def stamp(A, i):
    if DIAG: A(f"{CLK} s[{86+2*i}:{87+2*i}]")
def stamp_flush(A, kidx, n, swave):
    if not DIAG: return
    A(f"""
s_waitcnt vmcnt(0)
{CLK} s[{86+2*(n-1)}:{87+2*(n-1)}]
s_load_dwordx2 s[4:5], s[0:1], 112
s_waitcnt lgkmcnt(0)
s_add_u32 s4, s4, {WS_DIAG + kidx*65536}
s_addc_u32 s5, s5, 0
s_mov_b32 s6, 65536
s_mov_b32 s7, 0x20000
s_lshl_b32 s3, s2, 8
s_lshl_b32 s2, s{swave}, 5
s_add_u32 s3, s3, s2
v_mov_b32 v8, 0
""")
    for i in range(8): A(f"v_mov_b32 v{i}, s{86+2*i}" if i < n else f"v_mov_b32 v{i}, 0")
    A("""s_mov_b64 exec, 1
buffer_store_dwordx4 v[0:3], v8, s[4:7], s3 offen
buffer_store_dwordx4 v[4:7], v8, s[4:7], s3 offen offset:16""")

def header(A, name):
    A(f".globl {name}\n.p2align 8\n.type {name},@function\n{name}:")

def desc(name, vgpr, accum, sgpr=102):
    return f""".p2align 6
.amdhsa_kernel {name}
  .amdhsa_next_free_vgpr {vgpr}
  .amdhsa_next_free_sgpr {sgpr}
  .amdhsa_accum_offset {accum}
  .amdhsa_group_segment_fixed_size 0
  .amdhsa_kernarg_size 120
  .amdhsa_user_sgpr_count 2
  .amdhsa_user_sgpr_kernarg_segment_ptr 1
  .amdhsa_system_sgpr_workgroup_id_x 1
  .amdhsa_float_denorm_mode_32 3
.end_amdhsa_kernel
"""

def flat(x): return [y for z in x for y in (flat(z) if isinstance(z, list) else [z])]

def allreduce64_list(regs, tmps, op="v_add_f32"):
    out = []
    for pat in ("quad_perm:[1,0,3,2]", "quad_perm:[2,3,0,1]", "row_half_mirror", "row_mirror"):
        out.append("s_nop 1" if len(regs) == 1 else "s_nop 0")
        for r in regs: out.append(f"{op}_dpp v{r}, v{r}, v{r} {pat} row_mask:0xf bank_mask:0xf")
    for sw in ("v_permlane16_swap_b32", "v_permlane32_swap_b32"):
        for r, t in zip(regs, tmps): out.append(f"v_mov_b32 v{t}, v{r}")
        out.append("s_nop 1")
        for r, t in zip(regs, tmps): out.append(f"{sw} v{t}, v{r}")
        out.append("s_nop 0")
        for r, t in zip(regs, tmps): out.append(f"{op} v{r}, v{r}, v{t}")
    return out

def k1():
    A = Asm()
    name = "k1_kernel"
    header(A, name)
    S_CKV, S_WUK, S_WUV, S_KV, S_X, S_XH, S_WMOD, S_C, S_MOD, S_DBG, S_WQ = 8, 12, 16, 20, 24, 28, 32, 36, 40, 44, 48
    sW, sHEAD, sKB, sAB, sWB = 52, 53, 54, 55, 56
    sT, sT2, sOK, sOV, sLA, sW10, sTOK, sCOL, sSD, sE = 64, 65, 66, 67, 68, 69, 70, 71, 72, 73
    sJ1, sJ2, sJ3 = 74, 75, 76
    K1S = "k1start" in ABL
    A(f"""
s_cmp_ge_u32 s2, 256
s_cbranch_scc1 {name}_end
""")
    stamp(A, 0)
    vA0, vA1, vW, vAR0, vAR1, vOK, vOV, vT, vT2, vT3 = 2, 3, 4, 5, 6, 7, 8, 9, 10, 11
    vWR = 12
    A(f"""
s_load_dwordx2 s[{S_CKV}:{S_CKV+1}], s[0:1], {ARG['ckv']}
s_load_dwordx2 s[{S_WUK}:{S_WUK+1}], s[0:1], {ARG['wuk']}
s_load_dwordx2 s[{S_WUV}:{S_WUV+1}], s[0:1], {ARG['wuv']}
s_load_dwordx2 s[{S_X}:{S_X+1}], s[0:1], {ARG['x']}
s_load_dwordx2 s[{S_C}:{S_C+1}], s[0:1], {ARG['c']}
s_load_dwordx2 s[{S_WMOD}:{S_WMOD+1}], s[0:1], {ARG['wmod']}
s_load_dwordx2 s[{S_WQ}:{S_WQ+1}], s[0:1], {ARG['wq']}
s_load_dwordx2 s[{S_DBG}:{S_DBG+1}], s[0:1], {ARG['dbg']}
s_load_dwordx2 s[{S_KV}:{S_KV+1}], s[0:1], {ARG['ws']}
v_lshrrev_b32 v1, 6, v0
v_and_b32 v0, 63, v0
s_and_b32 s{sT}, s2, 7
v_readfirstlane_b32 s{sW}, v1
s_lshr_b32 s{sT2}, s2, 3
s_lshl_b32 s{sHEAD}, s{sT}, 2
s_and_b32 s{sKB}, s{sT2}, 3
s_add_u32 s{sHEAD}, s{sHEAD}, s{sKB}
s_lshr_b32 s{sKB}, s{sT2}, 2
s_mov_b32 s{S_CKV+2}, {2*MB}
s_mov_b32 s{S_CKV+3}, 0x20000
s_mov_b32 s{S_WUK+2}, {4*MB}
s_mov_b32 s{S_WUK+3}, 0x20000
s_lshl_b32 s{sAB}, s{sKB}, 18
s_lshl_b32 s{sT}, s{sW}, 16
s_add_u32 s{sAB}, s{sAB}, s{sT}
s_lshl_b32 s{sWB}, s{sHEAD}, 8
v_lshrrev_b32 v{vT}, 3, v0              ; l/8
v_and_b32 v{vT2}, 7, v0                 ; l%8
v_lshrrev_b32 v{vT3}, 1, v{vT}          ; (l/8)>>1  (0..3)
v_xor_b32 v{vA0}, v{vT2}, v{vT3}
v_lshlrev_b32 v{vA0}, 4, v{vA0}
v_lshl_add_u32 v{vA0}, v{vT}, 10, v{vA0}   ; A dma voffset, rows with bit4=0
v_xor_b32 v{vA1}, 64, v{vA0}
v_and_b32 v{vT3}, 1, v{vT3}
s_and_b32 s{sT}, s{sW}, 1
s_lshl_b32 s{sT}, s{sT}, 1
v_or_b32 v{vT3}, s{sT}, v{vT3}
v_lshlrev_b32 v{vT3}, 1, v{vT3}            ; swz
v_xor_b32 v{vW}, v{vT2}, v{vT3}
v_lshlrev_b32 v{vW}, 4, v{vW}
v_lshl_add_u32 v{vW}, v{vT}, 13, v{vW}
s_lshl_b32 s{sT}, s{sW}, 16
v_add_u32 v{vW}, s{sT}, v{vW}              ; + wave*8 rows
s_lshl_b32 s{sLA}, s{sW}, 14
s_lshl_b32 s{sW10}, s{sW}, 10
s_waitcnt lgkmcnt(0)
""")
    HI = 64*1024; SIDE = 144*1024
    SEQ = [(c, q) for q in range(4) for c in range(2)] + [(c, q) for c in (2, 3) for q in range(4)]
    WLOC = {n: HI + (n % 5)*16384 for n in range(10)}
    WLOC.update({10: 0, 11: 16384, 12: 32768, 13: 49152, 14: HI + 0*16384, 15: HI + 1*16384})
    def dmaA(i):
        return [[f"s_add_u32 m0, s{sLA}, {(i % 2)*8192 + ii*1024}",
                 f"s_add_u32 s{sT}, s{sAB}, {ii*8192 + i*128}",
                 f"buffer_load_dwordx4 v{vA1 if ii & 2 else vA0}, s[{S_CKV}:{S_CKV+3}], s{sT} offen lds ;@A{i}"] for ii in range(8)]
    def dmaW(n):
        c, q = SEQ[n]
        sr = S_WUK if c < 2 else S_WUV
        return [[f"s_add_u32 m0, s{sW10}, {WLOC[n] + m*4096}",
                 f"s_add_u32 s{sT}, s{sWB}, {q*128*8192 + m*32*8192 + (c % 2)*128}",
                 f"buffer_load_dwordx4 v{vW}, s[{sr}:{sr+3}], s{sT} offen lds ;@W{n}"] for m in range(4)]
    for x in (dmaW(0), dmaA(0)):
        A.extend(flat(x))
    A(f"""
v_and_b32 v{vT}, 15, v0                 ; n
v_lshrrev_b32 v{vT2}, 4, v0             ; g
v_lshrrev_b32 v{vT3}, 1, v{vT}
v_xor_b32 v{vAR0}, v{vT2}, v{vT3}
v_lshlrev_b32 v{vAR0}, 4, v{vAR0}
v_and_b32 v{vT3}, 8, v{vT}
v_add_u32 v{vT3}, v{vT3}, v{vT}         ; rho0 = 16(n>>3)+(n&7)
v_lshl_add_u32 v{vAR0}, v{vT3}, 7, v{vAR0}
v_add_u32 v{vAR0}, s{sLA}, v{vAR0}
v_xor_b32 v{vAR1}, 64, v{vAR0}
v_and_b32 v{vOK}, 1, v{vT2}
v_lshlrev_b32 v{vOK}, 9, v{vOK}
v_lshrrev_b32 v{vOV}, 1, v{vT2}
v_lshl_add_u32 v{vOK}, v{vOV}, 10, v{vOK}
v_lshl_add_u32 v{vOV}, v{vT}, 4, v{vOK}
v_lshl_add_u32 v{vOK}, v{vT3}, 4, v{vOK}
v_lshrrev_b32 v{vT3}, 2, v{vT}          ; r
v_lshl_add_u32 v{vWR}, v{vT2}, 3, v{vT3}   ; row
v_lshlrev_b32 v{vWR}, 7, v{vWR}
v_and_b32 v{vT}, 3, v0
v_lshl_add_u32 v{vWR}, v{vT}, 3, v{vWR}    ; + c*8
v_lshrrev_b32 v{vT3}, 1, v{vT3}
v_and_b32 v{vT2}, 1, v{vT2}
v_lshl_or_b32 v{vT3}, v{vT2}, 1, v{vT3}
v_lshl_add_u32 v{vWR}, v{vT3}, 5, v{vWR}   ; + swz*16
""")
    for t in range(1, 4): A(f"v_xor_b32 v{vWR+t}, {t*32}, v{vWR}")
    for b in range(1, 3):
        for t in range(4): A(f"v_add_u32 v{vWR+4*b+t}, {b*65536}, v{vWR+t}")
    for d, size in ((S_WUV, 4*MB), (S_X, 2*MB), (S_C, 1024), (S_WMOD, 512*3072*2), (S_WQ, 4*MB), (S_DBG, 256), (S_KV, 32*MB)):
        A(f"s_mov_b32 s{d+2}, {size}\ns_mov_b32 s{d+3}, 0x20000")
    srd(A, S_XH, S_KV, 2*MB, WS_XH); srd(A, S_MOD, S_KV, 16384 + 6144, WS_MOD)
    A(f"""
s_lshl_b32 s{sOK}, s{sHEAD}, 19
s_lshl_b32 s{sT}, s{sKB}, 16
s_add_u32 s{sOK}, s{sOK}, s{sT}
s_lshl_b32 s{sT}, s{sW}, 14
s_add_u32 s{sOK}, s{sOK}, s{sT}
s_add_u32 s{sOV}, s{sOK}, {16*MB}
s_lshl_b32 s{sTOK}, s2, 3
s_and_b32 s{sT}, s2, 7
s_lshl_b32 s{sT}, s{sT}, 3
s_bfe_u32 s{sT2}, s2, 0x30003
s_add_u32 s{sCOL}, s{sT}, s{sT2}
s_and_b32 s{sT}, s2, 0xc0
s_add_u32 s{sCOL}, s{sCOL}, s{sT}
s_lshl_b32 s{sSD}, s{sW}, 12
s_add_u32 s{sSD}, s{sSD}, {SIDE}
""")
    A.extend(flat(dmaA(1))); A.extend(flat(dmaW(1)))

    def readA(i):
        out = []
        for kk in range(2):
            for T in range(4):
                r = ((2*i + kk)*4 + T)*4
                out.append(f"ds_read_b128 a[{r}:{r+3}], v{vAR1 if kk else vAR0} offset:{(i % 2)*8192 + (T//2)*4096 + (T % 2)*1024} ;@RA{i}")
        return out
    WF = 64
    def gfrags(G):
        k = G % 4
        if G < 4: return [(2*(k % 2) + i // 2, 2*(k // 2) + i % 2) for i in range(4)]
        return [(k, ks) for ks in range(4)]
    def readW(G):
        n = G // 4
        out = []
        for i, (t, ks) in enumerate(gfrags(G)):
            for rd in range(2):
                r = WF + (G % 3)*16 + i*4 + rd*2
                off = WLOC[n] + ks*4096 + rd*512
                out.append(f"ds_read_b64_tr_b16 v[{r}:{r+1}], v{vWR + 4*(off//65536) + t} offset:{off % 65536} ;@RW{G}")
        return out

    A("@wait vm A0")
    A.extend(readA(0))
    A("s_barrier")
    stamp(A, 1)
    A.extend(readW(0)); A.extend(readW(1))
    ACC = [128, 192]; OUT = 32
    def acc(c, t, T): return ACC[c % 2] + (t*4 + T)*4
    def epilogue(c):
        out = []
        k = 0
        if c < 2:
            for b in range(2):
                for T in range(4):
                    o = OUT + (k % 4)*4; k += 1
                    p = []
                    for tt in range(2):
                        r = acc(c, 2*b + tt, T)
                        p.append(f"v_cvt_pk_bf16_f32 v{o+2*tt}, v{r}, v{r+1}")
                        p.append(f"v_cvt_pk_bf16_f32 v{o+2*tt+1}, v{r+2}, v{r+3}")
                    p.append([f"s_add_u32 s{sE}, s{sOK}, {(T//2)*8192 + (c % 2)*4096}",
                              f"buffer_store_dwordx4 v[{o}:{o+3}], v{vOK}, s[{S_KV}:{S_KV+3}], s{sE} offen offset:{(T % 2)*128 + b*2048} sc1"])
                    out.append(p)
        else:
            for t in range(4):
                for b in range(2):
                    o = OUT + (k % 4)*4; k += 1
                    p = []
                    for aa in range(2):
                        r = acc(c, t, 2*b + aa)
                        p.append(f"v_cvt_pk_bf16_f32 v{o+2*aa}, v{r}, v{r+1}")
                        p.append(f"v_cvt_pk_bf16_f32 v{o+2*aa+1}, v{r+2}, v{r+3}")
                    p.append([f"s_add_u32 s{sE}, s{sOV}, {b*8192 + (c % 2)*4096}",
                              f"buffer_store_dwordx4 v[{o}:{o+3}], v{vOV}, s[{S_KV}:{S_KV+3}], s{sE} offen offset:{(t//2)*2048 + (t % 2)*256} sc1"])
                    out.append(p)
        return out
    extra = {G: [] for G in range(64)}
    for k, p in enumerate(epilogue(0)): extra[[27, 28, 28, 29, 30, 31, 32, 33][k]] += p
    for k, p in enumerate(epilogue(1)): extra[34 + (3*k) // 2] += p
    for k, p in enumerate(epilogue(2)): extra[46 + 2*k] += p
    ep3 = epilogue(3)
    for k in range(4): extra[62 + k // 2] += ep3[k]
    def slabjob(i): return [f"@wait vm A{i}"] + readA(i)
    waitRA = {0: 0, 2: 1}
    extra[0] += dmaA(2) + dmaW(2)
    extra[1] += slabjob(1) + dmaW(3)
    extra[2] += dmaA(3) + dmaW(4)
    for i in range(2, 8):
        g0 = 4 + (i - 2)*3
        extra[g0] += slabjob(i)
        extra[g0 + 1] += [f"@wait lgkm RA{i}"] + (dmaA(i + 2) if i + 2 < 8 else [])
    wsched = {6: 5, 10: 6, 15: 7, 18: 8, 22: 9, 23: 10, 24: 11, 25: 12, 26: 13, 27: 14, 30: 15}
    for G, w in wsched.items(): extra[G] = dmaW(w) + extra[G]
    def spread(lst, g0, g1, nm=""):
        if "noside" in ABL: return
        if "nowait" in ABL: lst = [[y for y in flat([x]) if not y.startswith("@wait vm")] for x in lst]
        if "novalu1" in ABL: lst = [[y for y in flat([x]) if not (y.startswith("v_") and not y.startswith(("v_lsh", "v_and_b32 v%d" % vT2, "v_mov_b32 v2", "v_readf")) or y.startswith("s_nop"))] for x in lst]
        if "nonop" in ABL: lst = [[y for y in flat([x]) if not y.startswith("s_nop")] for x in lst]
        if "nomem" in ABL: lst = [[y for y in flat([x]) if not y.startswith(("buffer_", "@wait vm", "s_cbranch"))] for x in lst]
        n = g1 - g0
        per = -(-len(lst) // n)
        for k in range(n): extra[g0 + k] += lst[k*per:(k+1)*per]

    F = 112; RAW = 48; SCL = 56; SHF = 24
    t0, t1, t2, t3 = vT2, vT3, 1, OUT + 15
    j1 = [f"v_lshrrev_b32 v{t0}, 1, v0", f"v_mul_u32_u24 v{t0}, 6144, v{t0}", f"v_and_b32 v{t1}, 1, v0",
          f"v_lshl_add_u32 v{t0}, v{t1}, 4, v{t0}",
          f"s_mul_i32 s{sJ2}, s{sW}, {128*6144}", f"s_lshl_b32 s{sJ1}, s{sCOL}, 5", f"s_add_u32 s{sJ2}, s{sJ2}, s{sJ1}",
          [f"s_cmp_lt_u32 s{sCOL}, 192", f"s_cselect_b32 s{sJ2}, s{sJ2}, 0x10000000"],
          f"v_and_b32 v{t1}, 3, v0", f"v_lshlrev_b32 v{t1}, 6, v{t1}", f"v_lshrrev_b32 v{vT}, 4, v0",
          f"v_lshl_add_u32 v{t1}, v{vT}, 4, v{t1}", f"s_lshl_b32 s{sJ1}, s{sW}, 8",
          f"buffer_load_dwordx4 {v(SCL,4)}, v{t1}, s[{S_C}:{S_C+3}], s{sJ1} offen ;@CV"]
    for m in range(4):
        j1.append([f"s_add_u32 m0, s{sSD}, {m*1024}", f"s_add_u32 s{sJ1}, s{sJ2}, {m*32*6144}",
                   f"buffer_load_dwordx4 v{t0}, s[{S_WMOD}:{S_WMOD+3}], s{sJ1} offen lds ;@WM"])
    spread(j1, 3, 4)
    j1b = [f"v_lshlrev_b32 v{t1}, 4, v0", f"v_add_u32 v{t3}, {SIDE}, v{t1}", f"v_add_u32 v{t1}, s{sSD}, v{t1}",
           f"v_and_b32 v{t0}, 15, v0", f"v_lshlrev_b32 v{t2}, 8, v{vT}", f"v_lshl_add_u32 v{t2}, v{t0}, 3, v{t2}",
           f"v_add_u32 v{t2}, s{sSD}, v{t2}", "@wait vm CV"]
    for j in range(4):
        j1b += [f"v_lshlrev_b32 v{RAW+2*j}, 16, v{SCL+j}", f"v_and_b32 v{RAW+2*j+1}, 0xffff0000, v{SCL+j}"]
    for j in range(8): j1b.append(f"v_mul_f32 v{SHF+j}, 0xbfb8aa3b, v{RAW+j}")
    for j in range(8): j1b.append(f"v_exp_f32 v{SHF+j}, v{SHF+j}")
    for j in range(8): j1b.append(f"v_add_f32 v{SHF+j}, 1.0, v{SHF+j}")
    for j in range(8): j1b.append(f"v_rcp_f32 v{SHF+j}, v{SHF+j}")
    for j in range(8): j1b.append(f"v_mul_f32 v{RAW+j}, v{RAW+j}, v{SHF+j}")
    for j in range(4): j1b.append(f"v_cvt_pk_bf16_f32 v{RAW+j}, v{RAW+2*j}, v{RAW+2*j+1}")
    j1b.append("@wait vm WM")
    MW = [SCL, SCL+4, SHF, SHF+4]
    for m in range(4):
        for rd in range(2): j1b.append(f"ds_read_b64_tr_b16 {v(MW[m]+2*rd,2)}, v{t2} offset:{m*1024 + rd*128} ;@MW")
    for m in range(4):
        for j in range(4):
            j1b.append(f"v_mov_b32_dpp v{F+4*m+j}, v{RAW+j} quad_perm:[{m},{m},{m},{m}] row_mask:0xf bank_mask:0xf")
    j1b += ["@wait lgkm MW", "s_nop 0"]
    for m in range(4): j1b.append(f"{M16} {v(RAW+4,4)}, {v(MW[m],4)}, {v(F+4*m,4)}, {'0' if m == 0 else v(RAW+4,4)}")
    j1b += ["s_nop 7", f"ds_write_b128 v{t1}, {v(RAW+4,4)} ;@MP", "@wait lgkm MP"]
    spread(j1b, 8, 18)
    j1c = [f"ds_read_b128 {v(F+4*w,4)}, v{t3} offset:{w*4096} ;@MR" for w in range(4)]
    j1c += [f"s_lshr_b32 s{sJ1}, s{sCOL}, 5", [f"s_cmp_eq_u32 s{sJ1}, 1", f"s_cselect_b32 s{sJ2}, 1.0, 0"],
            [f"s_cmp_eq_u32 s{sJ1}, 4", f"s_cselect_b32 s{sJ2}, 1.0, s{sJ2}"], "@wait lgkm MR"]
    for j in range(4): j1c += [f"v_add_f32 v{F+j}, v{F+j}, v{F+4+j}", f"v_add_f32 v{F+8+j}, v{F+8+j}, v{F+12+j}"]
    for j in range(4): j1c.append(f"v_add_f32 v{F+j}, v{F+j}, v{F+8+j}")
    for rnd in range(2):
        for h in range(2): j1c.append(f"v_cvt_pk_bf16_f32 v{F+4+h}, v{F+2*h}, v{F+2*h+1}")
        for h in range(2): j1c += [f"v_lshlrev_b32 v{F+2*h}, 16, v{F+4+h}", f"v_and_b32 v{F+2*h+1}, 0xffff0000, v{F+4+h}"]
        if rnd == 0:
            for e in range(4): j1c.append(f"v_add_f32 v{F+e}, s{sJ2}, v{F+e}")
    j1c += [f"v_lshlrev_b32 v{t0}, 4, v{vT}", f"v_lshlrev_b32 v{t1}, 3, v{vT}",
            f"s_lshl_b32 s{sJ1}, s{sCOL}, 6", f"s_lshl_b32 s{sJ2}, s{sCOL}, 5", f"s_add_u32 s{sJ2}, s{sJ2}, 16384",
            [f"s_cmp_lt_u32 s{sCOL}, 192", f"s_cselect_b32 s{sJ1}, s{sJ1}, 0x10000000", f"s_cselect_b32 s{sJ2}, s{sJ2}, 0x10000000"],
            [f"s_cmp_eq_u32 s{sW}, 0", f"s_cselect_b32 s{sJ1}, s{sJ1}, 0x10000000", f"s_cselect_b32 s{sJ2}, s{sJ2}, 0x10000000"],
            [f"s_mov_b32 exec_lo, 0x10001", f"s_mov_b32 exec_hi, 0x10001",
             f"buffer_store_dwordx4 {v(F,4)}, v{t0}, s[{S_MOD}:{S_MOD+3}], s{sJ1} offen sc1 ;@MS",
             f"buffer_store_dwordx2 {v(F+4,2)}, v{t1}, s[{S_MOD}:{S_MOD+3}], s{sJ2} offen sc1 ;@MS",
             "s_mov_b64 exec, -1"]]
    spread(j1c, 18, 22)
    t0, t1, t2, t3 = vA0, vA1, vAR0, vAR1
    j1d = [f"s_lshl_b32 s{sJ1}, s{sW}, 8", f"s_add_u32 s{sJ1}, s{sJ1}, s{sCOL}", [f"s_cmp_lt_u32 s{sJ1}, 64",
           f"s_cselect_b32 s{sJ1}, 0, 0x1000"], f"v_mov_b32 v{t0}, 0", f"v_mov_b32 v{t1}, 1",
           ["@wait vm MS", "s_mov_b64 exec, 1",
            f"buffer_atomic_add v{t1}, v{t0}, s[{S_DBG}:{S_DBG+3}], s{sJ1} offen sc1", "s_mov_b64 exec, -1"]]
    spread(j1d, 26, 27)
    j2 = [f"v_lshlrev_b32 v{t2}, 4, v0", f"s_lshl_b32 s{sJ1}, s{sTOK}, 10", f"s_lshl_b32 s{sJ2}, s{sW}, 11", f"s_add_u32 s{sJ1}, s{sJ1}, s{sJ2}",
          f"buffer_load_dwordx4 {v(RAW,4)}, v{t2}, s[{S_X}:{S_X+3}], s{sJ1} offen ;@XR",
          f"buffer_load_dwordx4 {v(RAW+4,4)}, v{t2}, s[{S_X}:{S_X+3}], s{sJ1} offen offset:1024 ;@XR"]
    spread(j2, 22, 23)
    pf = [f"v_lshlrev_b32 v{t2}, 13, v{vT}", f"v_and_b32 v{t3}, 15, v0", f"v_lshl_add_u32 v{t2}, v{t3}, 4, v{t2}",
          f"s_lshl_b32 s{sJ2}, s{sKB}, 19", f"s_lshl_b32 s{sJ1}, s{sW}, 17", f"s_add_u32 s{sJ2}, s{sJ2}, s{sJ1}",
          f"s_add_u32 s{sJ2}, s{sJ2}, s{sWB}"]
    for m in range(4):
        pf.append([f"s_add_u32 m0, s{sSD}, {m*1024}", f"s_add_u32 s{sJ1}, s{sJ2}, {m*32768}",
                   f"buffer_load_dwordx4 v{t2}, s[{S_WQ}:{S_WQ+3}], s{sJ1} offen lds ;@PF"])
    spread(pf, 31, 33)
    S0, S1 = vT, vT2; TA, TB = vT3, t3
    j2b = ["@wait vm XR"]
    for r in range(2):
        for j in range(4):
            j2b += [f"v_lshlrev_b32 v{F+r*8+2*j}, 16, v{RAW+4*r+j}", f"v_and_b32 v{F+r*8+2*j+1}, 0xffff0000, v{RAW+4*r+j}"]
    for r, sr in enumerate((S0, S1)):
        j2b.append(f"v_add_f32 v{sr}, v{F+r*8}, v{F+r*8+1}")
        for j in range(2, 8): j2b.append(f"v_add_f32 v{sr}, v{sr}, v{F+r*8+j}")
    j2b += allreduce64_list([S0, S1], [TA, TB])
    for r, sr in enumerate((S0, S1)):
        j2b.append(f"v_mul_f32 v{sr}, 0x3b000000, v{sr}")
        for j in range(8): j2b.append(f"v_sub_f32 v{F+r*8+j}, v{F+r*8+j}, v{sr}")
    for r, sr in enumerate((S0, S1)):
        j2b.append(f"v_mul_f32 v{sr}, v{F+r*8}, v{F+r*8}")
        for j in range(1, 8): j2b.append(f"v_fmac_f32 v{sr}, v{F+r*8+j}, v{F+r*8+j}")
    j2b += allreduce64_list([S0, S1], [TA, TB])
    for sr in (S0, S1):
        j2b += [f"v_mov_b32 v{TA}, 0x3727c5ac", f"v_fmac_f32 v{TA}, 0x3b000000, v{sr}", f"v_rsq_f32 v{sr}, v{TA}", "s_nop 0",
                f"v_mul_f32 v{sr}, 0x3e0293ee, v{sr}"]
    for r, sr in enumerate((S0, S1)):
        for j in range(8): j2b.append(f"v_mul_f32 v{F+r*8+j}, v{F+r*8+j}, v{sr}")
    spread(j2b, 33, 48)
    poll = [f"buffer_load_dword v{t1}, v{t0}, s[{S_DBG}:{S_DBG+3}], 0 offen sc1 ;@PL"]
    spread(poll, 42, 43)
    chk = [["@wait vm PL", f"v_readfirstlane_b32 s{sJ1}, v{t1}", "s_nop 0", f"s_cmp_lt_u32 s{sJ1}, 64", f"s_cbranch_scc1 {name}_spin", f"{name}_go:"],
           f"v_lshlrev_b32 v{t2}, 5, v0",
           f"buffer_load_dwordx4 {v(SHF,4)}, v{t2}, s[{S_MOD}:{S_MOD+3}], 0 offen sc1 ;@ML",
           f"buffer_load_dwordx4 {v(SHF+4,4)}, v{t2}, s[{S_MOD}:{S_MOD+3}], 0 offen offset:16 sc1 ;@ML",
           f"buffer_load_dwordx4 {v(SCL,4)}, v{t2}, s[{S_MOD}:{S_MOD+3}], 0 offen offset:2048 sc1 ;@ML",
           f"buffer_load_dwordx4 {v(SCL+4,4)}, v{t2}, s[{S_MOD}:{S_MOD+3}], 0 offen offset:2064 sc1 ;@ML"]
    spread(chk, 48, 49)
    j2c = [f"v_lshlrev_b32 v{t2}, 7, v0", f"s_lshl_b32 s{sJ1}, s{sW}, 5", f"s_add_u32 s{sJ1}, s{sJ1}, {SIDE}", f"v_add_u32 v{t2}, s{sJ1}, v{t2}",
           "@wait vm ML"]
    for j in range(8): j2c.append(f"v_mul_f32 v{SHF+j}, 0x3e0293ee, v{SHF+j}")
    for r in range(2):
        for j in range(8): j2c.append(f"v_fma_f32 v{F+r*8+j}, v{F+r*8+j}, v{SCL+j}, v{SHF+j}")
        for j in range(4): j2c.append(f"v_cvt_pk_bf16_f32 v{RAW+4*r+j}, v{F+r*8+2*j}, v{F+r*8+2*j+1}")
        j2c.append(f"ds_write_b128 v{t2}, {v(RAW+4*r,4)} offset:{16*r} ;@HW")
    j2c.append("@wait lgkm HW")
    spread(j2c, 54, 58)
    j2d = [f"v_lshlrev_b32 v{t2}, 4, v0", f"s_lshl_b32 s{sJ1}, s{sW}, 11", f"s_add_u32 s{sJ1}, s{sJ1}, {SIDE}", f"v_add_u32 v{t2}, s{sJ1}, v{t2}",
           f"ds_read_b128 {v(RAW,4)}, v{t2} ;@HR", f"ds_read_b128 {v(RAW+4,4)}, v{t2} offset:1024 ;@HR",
           f"v_lshrrev_b32 v{t3}, 3, v0", f"v_lshlrev_b32 v{t3}, 9, v{t3}", f"v_and_b32 v{t0}, 7, v0", f"v_lshl_add_u32 v{t3}, v{t0}, 4, v{t3}",
           f"s_lshr_b32 s{sJ2}, s{sTOK}, 5", f"s_lshl_b32 s{sJ2}, s{sJ2}, 15", f"s_and_b32 s{sJ3}, s{sTOK}, 31", f"s_lshl_b32 s{sJ3}, s{sJ3}, 4",
           f"s_add_u32 s{sJ2}, s{sJ2}, s{sJ3}", f"s_lshl_b32 s{sJ3}, s{sW}, 13", f"s_add_u32 s{sJ2}, s{sJ2}, s{sJ3}", f"s_add_u32 s{sJ3}, s{sJ2}, 4096",
           "@wait lgkm HR",
           f"buffer_store_dwordx4 {v(RAW,4)}, v{t3}, s[{S_XH}:{S_XH+3}], s{sJ2} offen sc1",
           f"buffer_store_dwordx4 {v(RAW+4,4)}, v{t3}, s[{S_XH}:{S_XH+3}], s{sJ3} offen sc1"]
    spread(j2d, 58, 60)

    for G in range(64):
        n = G // 4
        c, q = SEQ[n]
        pre = []
        if (G + 2) % 4 == 0 and G + 2 < 64:
            pre += [f"@wait vm W{(G+2)//4}", "s_barrier"]
        pre.append(f"@wait lgkm RW{G}")
        if G in waitRA: pre.append(f"@wait lgkm RA{waitRA[G]}")
        if G == 8: pre.append("@wait lgkm RA3")
        mf = []
        fr = gfrags(G)
        ts = sorted({t for t, _ in fr})
        for t in ts:
            for T in range(4):
                for i, (tt, ks) in enumerate(fr):
                    if tt != t: continue
                    d = acc(c, t, T)
                    wf = v(WF + (G % 3)*16 + i*4, 4)
                    af = a(((q*4 + ks)*4 + T)*4, 4)
                    cin = "0" if (q == 0 and ks == 0) else v(d, 4)
                    if c < 2: mf.append(f"{M16} {v(d,4)}, {wf}, {af}, {cin}")
                    else:     mf.append(f"{M16} {v(d,4)}, {af}, {wf}, {cin}")
        rw = readW(G + 2) if G + 2 < 64 else []
        slots = [[] for _ in range(16)]
        for k, x in enumerate(rw): slots[2*k].append(x)
        ex = extra[G]
        order = [1, 3, 5, 7, 9, 11, 13, 15, 0, 2, 4, 6, 8, 10, 12, 14]
        cnt = [0]*16
        for k in range(len(ex)): cnt[order[k % 16]] += 1
        k = 0
        for gi in range(16):
            for _ in range(cnt[gi]):
                slots[gi].append(ex[k]); k += 1
        st = (2, 4, 8, 12, 16) if K1S else (8, 16, 32, 48)
        if G in st: stamp(A, 2 + st.index(G))
        A.extend(pre)
        for m, sl in zip(mf, slots):
            A(m); A.extend(flat(sl))
    if not K1S: stamp(A, 6)
    A.extend(flat(ep3[4:6]))
    A.extend(flat(ep3[6:]))
    stamp_flush(A, 0, 8, sW)
    A.label(f"{name}_end")
    A("s_endpgm")
    A.label(f"{name}_spin")
    if "noside" in ABL: A.label(f"{name}_go")
    A(f"""
s_mov_b32 s{sJ3}, 0x40000
{name}_spin2:
s_sleep 16
buffer_load_dword v{t1}, v{t0}, s[{S_DBG}:{S_DBG+3}], 0 offen sc1 ;@cond
s_waitcnt vmcnt(0)
v_readfirstlane_b32 s{sJ1}, v{t1}
s_sub_u32 s{sJ3}, s{sJ3}, 1
s_cbranch_scc1 {name}_go
s_cmp_lt_u32 s{sJ1}, 64
s_cbranch_scc1 {name}_spin2
s_branch {name}_go
""")
    A.lines = resolve_waits(A.lines)
    return name, A, desc(name, 512, 256), (256, 256, 160*1024)

def gaps(mf, fills):
    out = []
    for i, m in enumerate(mf):
        out.extend(m if isinstance(m, list) else [m])
        out.extend(fills.get(i, []))
    return out

def k2():
    A = Asm()
    name = "k2_kernel"
    header(A, name)
    S_WQ, S_KV, S_XH, S_CTX, S_PF = 8, 12, 16, 20, 24
    sW, sG, sHEAD, sPAIR, sTB, sR, sNS, sT, sT2 = 28, 29, 30, 31, 32, 33, 34, 35, 36
    sSLOT, sDM0, sDK, sDJ, sTHR, sXB, sFAST, sJ, sW4 = 37, 38, 39, 40, 41, 42, 43, 44, 45
    sRET = 46
    sM0, sM1, sREDO, sLIM = 48, 49, 50, 51
    LDS_K0, LDS_FLAG, LDS_PF = 128*1024, 136*1024, 144*1024
    vL16, vWD, vWR, vFLG, vCUR, vMSK, vNINF, vL, vTS, vDEL, vF, vCO = 1, 2, 3, 7, 8, 10, 11, 12, 13, 14, 15, 9
    O, QF, S, P, NEGM, FR, T = 16, 80, 112, 144, 160, 176, 208
    XR = 112
    WFR = 176
    A(f"""
s_cmp_ge_u32 s2, 256
s_cbranch_scc1 {name}_end
""")
    stamp(A, 0)
    A(f"""
s_load_dwordx2 s[{S_WQ}:{S_WQ+1}], s[0:1], {ARG['wq']}
s_load_dwordx2 s[{S_KV}:{S_KV+1}], s[0:1], {ARG['ws']}
s_load_dwordx2 s[64:65], s[0:1], {ARG['wo']}
s_load_dwordx4 s[68:71], s[0:1], {ARG['wg']}
s_load_dwordx2 s[72:73], s[0:1], {ARG['wd']}
v_lshrrev_b32 v1, 6, v0
v_and_b32 v0, 63, v0
s_and_b32 s{sT}, s2, 7
v_readfirstlane_b32 s{sW}, v1
s_lshr_b32 s{sT2}, s2, 3
s_lshl_b32 s{sHEAD}, s{sT}, 2
s_and_b32 s{sT}, s{sT2}, 3
s_add_u32 s{sHEAD}, s{sHEAD}, s{sT}
s_lshr_b32 s{sPAIR}, s{sT2}, 2
s_lshr_b32 s{sG}, s{sW}, 2
s_and_b32 s{sW4}, s{sW}, 3
s_sub_u32 s{sT}, 15, s{sPAIR}
s_cmp_eq_u32 s{sG}, 0
s_cselect_b32 s{sTB}, s{sT}, s{sPAIR}
s_lshl_b32 s{sTB}, s{sTB}, 2
s_add_u32 s{sTB}, s{sTB}, s{sW4}          ; tokblk32 = U
s_lshl_b32 s{sNS}, s{sT}, 1
s_add_u32 s{sNS}, s{sNS}, 2
v_lshlrev_b32 v{vL16}, 4, v0
; W dma voffset: (l/16)*8192 + ((l%16) ^ ((l/16)<<2))*16
v_lshrrev_b32 v{T}, 4, v0
v_and_b32 v{T+1}, 15, v0
v_lshlrev_b32 v{T+2}, 2, v{T}
v_xor_b32 v{vWD}, v{T+1}, v{T+2}
v_lshlrev_b32 v{vWD}, 4, v{vWD}
v_lshl_add_u32 v{vWD}, v{T}, 13, v{vWD}
s_mov_b32 s{S_WQ+2}, {4*MB}
s_mov_b32 s{S_WQ+3}, 0x20000
s_mov_b32 s{S_KV+2}, {32*MB}
s_mov_b32 s{S_KV+3}, 0x20000
s_lshl_b32 s{sXB}, s{sTB}, 15
s_lshl_b32 s{sM0}, s{sW}, 12
s_lshl_b32 s{sM1}, s{sW}, 17              ; rows: wave*16*8192
s_lshl_b32 s{sT}, s{sHEAD}, 8
s_add_u32 s{sM1}, s{sM1}, s{sT}
s_waitcnt lgkmcnt(0)
""")
    srd(A, S_XH, S_KV, 2*MB, WS_XH)
    def loadX(ks):
        r = XR + (ks % 16)*4
        return [f"s_add_u32 s{sT2}, s{sXB}, {(ks // 4)*4096}",
                f"buffer_load_dwordx4 v[{r}:{r+3}], v{vL16}, s[{S_XH}:{S_XH+3}], s{sT2} offen offset:{(ks % 4)*1024} ;@X{ks}"]
    def dmaWq(q, m):
        return [f"s_add_u32 m0, s{sM0}, {q*32768 + m*1024}",
                f"s_add_u32 s{sT}, s{sM1}, {q*128*8192 + m*4*8192}",
                f"buffer_load_dwordx4 v{vWD}, s[{S_WQ}:{S_WQ+3}], s{sT} offen lds ;@WQ{q}"]
    for m in range(4): A.extend(dmaWq(0, m))
    for ks in range(4): A.extend(loadX(ks))
    for m in range(4): A.extend(dmaWq(1, m))
    for ks in range(4, 10): A.extend(loadX(ks))
    A(f"""
; W tr read addr: h=l/32, half16=(l/16)&1, r=(l%16)/4, c=l%4: (8h+r)*256 + r*64 + 32(c>>1) + 16 half16 + 8(c&1)
v_lshrrev_b32 v{T+2}, 2, v{T+1}           ; r
v_lshrrev_b32 v{T+3}, 5, v0               ; h
v_lshl_add_u32 v{vWR}, v{T+3}, 3, v{T+2}
v_lshlrev_b32 v{vWR}, 8, v{vWR}
v_lshl_add_u32 v{vWR}, v{T+2}, 6, v{vWR}
v_and_b32 v{T+4}, 2, v0
v_lshl_add_u32 v{vWR}, v{T+4}, 4, v{vWR}
v_and_b32 v{T+4}, 1, v0
v_lshl_add_u32 v{vWR}, v{T+4}, 3, v{vWR}
v_and_b32 v{T+4}, 1, v{T}
v_lshl_add_u32 v{vWR}, v{T+4}, 4, v{vWR}
v_xor_b32 v{vWR+1}, 64, v{vWR}
v_xor_b32 v{vWR+2}, 128, v{vWR}
v_xor_b32 v{vWR+3}, 192, v{vWR}
v_and_b32 v{vMSK}, 31, v0
v_lshlrev_b32 v{T+4}, 2, v{T+3}
v_sub_u32 v{vMSK}, v{vMSK}, v{T+4}        ; q_local - 4h
v_mov_b32 v{vNINF}, 0xff800000
v_and_b32 v{T+4}, 1, v{T}
v_lshlrev_b32 v{vCO}, 17, v{T+4}
v_lshl_add_u32 v{vCO}, v{T+3}, 8, v{vCO}
v_lshl_add_u32 v{vCO}, v{T+1}, 4, v{vCO}
v_mov_b32 v{vFLG}, {LDS_FLAG}
v_mov_b32 v{vF}, 0
ds_write_b32 v{vFLG}, v{vF}
s_mov_b32 s{sTHR}, 0x44800000             ; 1024.0
s_mov_b32 s{sLIM}, 0x4e800000             ; 2^30
s_mov_b32 s{sREDO}, 0
s_sub_u32 s{sFAST}, s{sTB}, 1
s_lshr_b32 s{sFAST}, s{sFAST}, 1
s_cmp_eq_u32 s{sTB}, 0
s_cselect_b32 s{sFAST}, 0, s{sFAST}       ; floor((U-1)/2)
""")
    srd(A, S_CTX, S_KV, 16*MB, WS_CTX)
    def dma_init():
        return [f"s_lshl_b32 s{sDK}, s{sHEAD}, 19", f"s_lshl_b32 s{sDM0}, s{sW4}, 12", f"s_add_u32 s{sDK}, s{sDK}, s{sDM0}",
                f"s_add_u32 s{sDK}, s{sDK}, 8192", f"s_mov_b32 s{sDJ}, 0"]
    A.extend(dma_init())
    def stage_parts():
        it = []
        for m in range(4):
            pre = [f"s_cmp_lt_u32 s{sDJ}, s{sNS}", f"s_cselect_b32 s{sT}, s{sDK}, 0x40000000", f"s_mov_b32 m0, s{sDM0}",
                   f"s_add_u32 s{sT2}, s{sT}, {16*MB - 8192}"] if m == 0 else []
            it.append(pre + [f"buffer_load_dwordx4 v{vL16}, s[{S_KV}:{S_KV+3}], s{sT} offen offset:{m*1024} lds ;@cond"])
        for m in range(4):
            pre = [f"s_add_u32 m0, s{sDM0}, 16384", f"s_add_u32 s{sDJ}, s{sDJ}, 1"] if m == 0 else []
            post = [f"s_add_u32 s{sDK}, s{sDK}, 16384", f"s_add_u32 s{sDM0}, s{sDM0}, 32768", f"s_and_b32 s{sDM0}, s{sDM0}, 0x1ffff"] if m == 3 else []
            it.append(pre + [f"buffer_load_dwordx4 v{vL16}, s[{S_KV}:{S_KV+3}], s{sT2} offen offset:{m*1024} lds ;@cond"] + post)
        return it
    def stage_dma():
        lab = A.newlabel("k2_nodma")
        return [f"s_cmp_eq_u32 s{sG}, 0", f"s_cbranch_scc1 {lab}"] + flat(stage_parts()) + [lab + ":"]
    dmaK0 = [f"s_lshl_b32 s{sT}, s{sW}, 10", f"s_add_u32 m0, s{sT}, {LDS_K0}", f"s_lshl_b32 s{sT2}, s{sHEAD}, 19",
             f"s_add_u32 s{sT2}, s{sT2}, s{sT}",
             f"buffer_load_dwordx4 v{vL16}, s[{S_KV}:{S_KV+3}], s{sT2} offen lds ;@K0"]

    def readWq(ks, dbs):
        out = []
        for db in dbs:
            for rd in range(2):
                r = WFR + (ks % 2)*16 + db*4 + rd*2
                out.append(f"ds_read_b64_tr_b16 v[{r}:{r+1}], v{vWR+db} offset:{(ks % 16)*4096 + rd*1024} ;@RW{ks}_{db}")
        return out
    queue = [("x", 10), ("x", 11), ("w", 2, 0), ("w", 2, 1), ("x", 12), ("x", 13), ("w", 2, 2), ("w", 2, 3), ("x", 14), ("x", 15),
             ("x", 16), ("x", 17), ("w", 3, 0), ("x", 18), ("w", 3, 1), ("x", 19), ("w", 3, 2), ("x", 20), ("w", 3, 3), ("x", 21), ("k",)]
    queue += [("x", n) for n in range(22, 32)]
    A("@wait vm WQ0\ns_barrier")
    stamp(A, 1)
    A.extend(readWq(0, range(4)))
    for ks in range(32):
        pre = []
        if ks % 8 == 7 and ks < 31:
            q = (ks + 1) // 8
            pre += [f"@wait vm WQ{q}", "s_barrier"]
            if q >= 2: pre += stage_dma()
        if ks == 15:
            pre += [f"v_add_u32 v{vWR+db}, 0x10000, v{vWR+db}" for db in range(4)]
        pre.append(f"@wait vm X{ks}")
        x = XR + (ks % 16)*4
        mf = []
        for db in range(4):
            w = WFR + (ks % 2)*16 + db*4
            cin = "0" if ks == 0 else v(O + db*16, 16)
            mf.append([f"@wait lgkm RW{ks}_{db}", f"{M32} {v(O+db*16,16)}, {v(w,4)}, {v(x,4)}, {cin}"])
        fills = {0: [], 1: [], 2: [], 3: []}
        if ks < 31:
            for db in range(4): fills[min(db, 2)] += readWq(ks + 1, [db])
        for slot in (1, 3):
            if queue and not (queue[0][0] == "x" and queue[0][1] - 15 > ks):
                it = queue.pop(0)
                fills[slot] += loadX(it[1]) if it[0] == "x" else dmaWq(it[1], it[2]) if it[0] == "w" else dmaK0
        A.extend(pre)
        A.extend(gaps(mf, fills))
    assert not queue
    stamp(A, 2)
    A(f"""
s_cmp_lg_u32 s{sG}, 0
s_cbranch_scc1 k2_nopf
s_lshl_b32 s{sT}, s2, 2
s_add_u32 s{sT}, s{sT}, s{sW4}
s_lshl_b32 s{sT2}, s{sW4}, 12
s_add_u32 m0, s{sT2}, {LDS_PF}
s_lshl_b32 s{sT2}, s{sT}, 12
s_lshl_b32 s{sT}, s{sT}, 11
""")
    srd(A, S_PF, 64, 4*MB)
    for m in range(4): A(f"buffer_load_dwordx4 v{vL16}, s[{S_PF}:{S_PF+3}], s{sT2} offen offset:{m*1024} lds ;@cond")
    for base in (68, 70, 72):
        srd(A, S_PF, base, 512*1376*2)
        for m in range(2): A(f"buffer_load_dwordx4 v{vL16}, s[{S_PF}:{S_PF+3}], s{sT} offen offset:{m*1024} lds ;@cond")
    A.label("k2_nopf")
    A("s_nop 3")
    for db in range(4):
        for r in range(8): A(f"v_cvt_pk_bf16_f32 v{QF+db*8+r}, v{O+db*16+2*r}, v{O+db*16+2*r+1}")
    A.label("k2_att")
    A(f"s_cmp_eq_u32 s{sG}, 0\ns_cbranch_scc1 k2_att2\ns_waitcnt vmcnt(8)")
    A.label("k2_att2")
    A("s_barrier")
    A(f"v_add_u32 v{vCUR}, {LDS_K0}, v{vL16}")
    for i in range(8): A(f"ds_read_b128 {v(FR+4*i,4)}, v{vCUR} offset:{i*1024} ;@K0_{i}")
    A.extend(stage_dma())
    A(f"s_mov_b32 s{sR}, s{sTB}\ns_mov_b64 s[60:61], 0")
    for r in range(16): A(f"v_mov_b32 v{NEGM+r}, 0")
    def apply_mask():
        out = []
        for r in range(16):
            out.append(f"v_cmp_gt_i32 s[{52+2*(r%4)}:{53+2*(r%4)}], {8*(r//4) + r % 4}, v{vMSK}")
            if r % 4 == 3:
                for rr in range(r - 3, r + 1):
                    out.append(f"v_cndmask_b32 v{NEGM+rr}, v{NEGM+rr}, v{vNINF}, s[{52+2*(rr%4)}:{53+2*(rr%4)}]")
        return out
    A(f"s_cmp_lg_u32 s{sR}, 0\ns_cbranch_scc1 k2_nomask0")
    A.extend(apply_mask())
    A.label("k2_nomask0")
    A("s_nop 1")
    mf = []
    for i in range(8):
        cin = v(NEGM, 16) if i == 0 else v(S, 16)
        mf.append([f"@wait lgkm K0_{i}", f"{M32} {v(S,16)}, {v(FR+4*i,4)}, {v(QF+4*i,4)}, {cin}"])
    zero = [f"v_mov_b32 v{O+r}, 0" for r in range(64)]
    A.extend(gaps(mf, {i: zero[i*7:(i+1)*7] for i in range(7)} | {7: zero[49:]}))
    A(f"v_mov_b32 v{vL}, 0\nv_mov_b32 v{vCUR}, v{vL16}\ns_mov_b32 s{sSLOT}, 0")
    D = 6
    def fragoff(i):
        part, k = i // 8, i % 8
        if part == 0: return k*1024
        if part == 2: return 8192 + k*1024
        vb = 16384 + (part // 2)*8192
        return vb + ((k % 4)*2 + k // 4)*1024
    def rdfrag(i, addr):
        return f"ds_read_b128 {v(FR+4*(i%8),4)}, v{addr} offset:{fragoff(i % 32)} ;@F{i % 32}"
    for i in range(D): A(rdfrag(i, vCUR))
    def rowmax(p, dst):
        s0 = S + 16*p
        out = [f"v_max3_f32 v{dst}, v{s0}, v{s0+1}, v{s0+2}"]
        for r in range(3, 15, 2): out.append(f"v_max3_f32 v{dst}, v{dst}, v{s0+r}, v{s0+r+1}")
        out += [f"v_max_f32 v{dst}, v{dst}, v{s0+15}", f"v_mov_b32 v{vF}, v{dst}", "s_nop 1",
                f"v_permlane32_swap_b32 v{vF}, v{dst}", "s_nop 0", f"v_max_f32 v{dst}, v{dst}, v{vF}"]
        return out
    A.extend(rowmax(0, vDEL))
    for r in range(16): A(f"v_sub_f32 v{NEGM+r}, v{NEGM+r}, v{vDEL}")
    for r in range(16): A(f"v_sub_f32 v{S+r}, v{S+r}, v{vDEL}")
    def sm_elem(p, e):
        s0 = S + 16*p; pp = P + 8*p
        out = [f"v_exp_f32 v{T + e % 4}, v{s0+e}"]
        k = e % 8
        if k >= 1:
            pe = e - 1
            if k == 2: out.append(f"v_add_f32 v{vTS}, v{T + (e-2) % 4}, v{T + pe % 4}")
            elif k > 2: out.append(f"v_add_f32 v{vTS}, v{vTS}, v{T + pe % 4}")
            if pe % 2 == 1: out.append(f"v_cvt_pk_bf16_f32 v{pp + pe//2}, v{T + (pe-1) % 4}, v{T + pe % 4}")
        return out
    slow_sites = []
    def sm_fin(p, unit, site=None):
        pp = P + 8*p; e = unit*8 + 7
        out = [f"v_add_f32 v{vTS}, v{vTS}, v{T + e % 4}",
               f"v_cvt_pk_bf16_f32 v{pp + e//2}, v{T + (e-1) % 4}, v{T + e % 4}"]
        if site:
            lab = f"k2_slow_{site}"; ret = f"k2_ret_{site}"
            slow_sites.append((p, unit, lab, ret))
            out += [f"v_cmp_lt_f32 vcc, s{sTHR}, v{vTS}", f"s_cbranch_vccnz {lab}", ret + ":"]
        return out + [f"v_add_f32 v{vL}, v{vL}, v{vTS}"]
    for e in range(4): A.extend(sm_elem(0, e))
    stamp(A, 3)
    A(f"""
s_cmp_eq_u32 s{sFAST}, 0
s_cbranch_scc1 k2_loop
s_lshl_b32 s{sT}, s{sFAST}, 1
s_sub_u32 s{sR}, s{sR}, s{sT}
s_mov_b32 s{sJ}, s{sFAST}
s_cmp_eq_u32 s{sG}, 0
s_cbranch_scc1 k2_fast0
s_branch k2_fast1
""")
    def step_mf(p):
        base = 16*p
        mf = []
        for i in range(8):
            cin = v(NEGM, 16) if i == 0 else v(S + 16*(1-p), 16)
            mf.append(f"{M32} {v(S+16*(1-p),16)}, {v(FR+4*((base+i)%8),4)}, {v(QF+4*i,4)}, {cin}")
        for i in range(8):
            sp, db = i // 4, i % 4
            mf.append(f"{M32} {v(O+16*db,16)}, {v(FR+4*((base+8+i)%8),4)}, {v(P+8*p+4*sp,4)}, {v(O+16*db,16)}")
        for i in range(0, 16, 2): mf[i] = [f"@wait lgkm F{base+i+1}", mf[i]]
        return mf
    slot_adv = [f"s_add_u32 s{sSLOT}, s{sSLOT}, 32768", f"s_and_b32 s{sSLOT}, s{sSLOT}, 0x1ffff"]
    for grp in range(2):
        A(".p2align 6")
        A(f"@loop_begin fast{grp}")
        A.label(f"k2_fast{grp}")
        for p in range(2):
            base = 16*p
            mf = step_mf(p); fills = {i: [] for i in range(16)}
            for i in range(16):
                nxt = base + i + D
                if p == 1 and nxt == 32:
                    fills[i] += (["s_waitcnt vmcnt(8)"] if grp == 1 else []) + ["s_barrier"]
                fills[i].append(rdfrag(nxt, vCUR))
            for g in range(4): fills[g] += sm_elem(p, 4 + g)
            fills[4] += sm_fin(p, 0) + sm_elem(p, 8)
            if p == 0:
                for g in range(5, 11): fills[g] += sm_elem(p, 4 + g)
                fills[5] += slot_adv
                fills[10] += sm_elem(p, 15)[:1]
                fills[11] += sm_elem(p, 15)[1:] + sm_fin(p, 1)
                for g in range(12, 16): fills[g] += sm_elem(1 - p, g - 12)
            else:
                fills[5] += sm_elem(p, 9) + sm_elem(p, 10)
                for g in range(6, 10): fills[g] += sm_elem(p, 5 + g)
                fills[9] += [f"v_add_u32 v{vCUR}, s{sSLOT}, v{vL16}"]
                fills[11] += sm_elem(p, 15) + ["s_nop 0"] + sm_fin(p, 1)
                fills[12] += sm_elem(0, 0) + sm_elem(0, 1)
                fills[13] += sm_elem(0, 2)
                fills[14] += sm_elem(0, 3)
                if grp == 1:
                    sp_ = stage_parts()
                    for k, it in enumerate(sp_): fills[11 + k // 2] += it
                fills[14] += [f"s_sub_u32 s{sJ}, s{sJ}, 1", f"s_cmp_lg_u32 s{sJ}, 0"]
                fills[15] += [f"s_cbranch_scc1 k2_fast{grp}"]
            body = gaps(mf, fills)
            if "halfds" in ABL: body = [x for x in body if not (x.startswith("ds_read") and int(x.split(";@F")[1]) % 2 == 0)]
            if "nods" in ABL: body = [x for x in body if not x.startswith("ds_read") and not x.startswith("@wait")]
            if "novalu" in ABL: body = [x for x in body if not x.startswith(("v_exp", "v_add_f32", "v_cvt"))]
            if "noexp" in ABL: body = [x.replace("v_exp_f32", "v_mov_b32") for x in body]
            if "noadd" in ABL: body = [x for x in body if not x.startswith("v_add_f32")]
            if "nodma" in ABL: body = [x for x in body if not x.startswith("buffer_load")]
            A.extend(body)
        A(f"@loop_end fast{grp}")
        A(f"v_cmp_nge_f32 s[60:61], s{sLIM}, v{vL}")
        A("s_branch k2_loop")
    def step_ctl(p):
        return [f"s_cmp_lt_u32 s{sR}, 2", f"s_cbranch_scc1 k2_special{p}", f"k2_back{p}:", f"s_sub_u32 s{sR}, s{sR}, 1"]
    A("@loop_begin kv")
    A.label("k2_loop")
    A.extend(step_ctl(0))
    for p in range(2):
        base = 16*p
        mf = step_mf(p); fills = {i: [] for i in range(16)}
        for i in range(16):
            nxt = base + i + D
            if p == 1 and nxt == 32:
                fills[i] += ["s_waitcnt vmcnt(8)", "s_barrier"] + slot_adv + [f"v_add_u32 v{vCUR}, s{sSLOT}, v{vL16}"]
            fills[i].append(rdfrag(nxt, vCUR))
        for g in range(4): fills[g] += sm_elem(p, 4 + g)
        fills[4] = sm_fin(p, 0, f"f{p}0") + fills[4] + sm_elem(p, 8)
        for g in range(5, 12): fills[g] += sm_elem(p, 4 + g)
        fills[11] += ["s_nop 0"] + sm_fin(p, 1, f"f{p}1")
        for g in range(12, 16): fills[g] += sm_elem(1 - p, g - 12)
        if p == 1:
            fills[12] += stage_dma()
            fills[15] += ["s_branch k2_loop"]
        else:
            fills[15] += step_ctl(1)
        A.extend(gaps(mf, fills))
    A("@loop_end kv")
    for p in range(2):
        A.label(f"k2_special{p}")
        A(f"s_cmp_eq_u32 s{sR}, 0\ns_cbranch_scc1 k2_tail{p}")
        A.extend(apply_mask())
        A(f"s_nop 1\ns_branch k2_back{p}")
    for p in range(2):
        A.label(f"k2_tail{p}")
        for i in range(8):
            A(f"ds_read_b128 {v(FR+4*i,4)}, v{vCUR} offset:{fragoff(16*p + 8 + i)} ;@TV{p}_{i}")
        for e in range(4, 8): A.extend(sm_elem(p, e))
        A("s_nop 0")
        A.extend(sm_fin(p, 0, f"t{p}0"))
        mf = []; fills = {i: [] for i in range(8)}
        for i in range(8):
            sp, db = i // 4, i % 4
            mf.append([f"@wait lgkm TV{p}_{i}", f"{M32} {v(O+16*db,16)}, {v(FR+4*i,4)}, {v(P+8*p+4*sp,4)}, {v(O+16*db,16)}"])
        for g in range(4): fills[g] += sm_elem(p, 8 + 2*g) + sm_elem(p, 9 + 2*g)
        fills[3] += ["s_nop 0"] + sm_fin(p, 1, f"t{p}1")
        A.extend(gaps(mf, fills))
        if p == 0: A("s_branch k2_done")
    A.label("k2_done")
    stamp(A, 4)
    A(f"""
s_lshr_b32 s{sJ}, s{sTB}, 1
s_add_u32 s{sJ}, s{sJ}, 1
s_cmp_ge_u32 s{sJ}, s{sNS}
s_cbranch_scc1 k2_epi
s_waitcnt vmcnt(8)
s_barrier
""")
    A.extend(stage_dma())
    A.label("k2_epi")
    A(f"""
v_mov_b32 v{vF}, v{vL}
s_nop 1
v_permlane32_swap_b32 v{vF}, v{vL}
s_nop 0
v_add_f32 v{vL}, v{vL}, v{vF}
v_rcp_f32 v{vL}, v{vL}
s_cmp_eq_u64 s[60:61], {"0" if not (ABL & {"halfds", "nods", "novalu", "noexp", "noadd", "nodma"}) else "s[60:61]"}
s_cbranch_scc1 k2_noflag
v_mov_b32 v{vF}, 1
ds_write_b32 v{vFLG}, v{vF}
k2_noflag:
s_lshl_b32 s{sT}, s{sTB}, 18
s_lshl_b32 s{sT2}, s{sHEAD}, 12
s_add_u32 s{sXB}, s{sT}, s{sT2}
s_nop 3
""")
    for db in range(4):
        for sp in range(2):
            o = O + db*16 + sp*8; d = FR + (db*2 + sp)*4
            for r in range(8): A(f"v_mul_f32 v{o+r}, v{o+r}, v{vL}")
            for r in range(4): A(f"v_cvt_pk_bf16_f32 v{d+r}, v{o+2*r}, v{o+2*r+1}")
            A(f"buffer_store_dwordx4 {v(d,4)}, v{vCO}, s[{S_CTX}:{S_CTX+3}], s{sXB} offen offset:{db*1024 + sp*512} sc1")
    stamp(A, 5)
    A.label("k2_idle")
    A(f"""
s_add_u32 s{sJ}, s{sJ}, 1
s_cmp_ge_u32 s{sJ}, s{sNS}
s_cbranch_scc1 k2_vote
s_waitcnt vmcnt(8)
s_barrier
""")
    A.extend([x for x in stage_dma() if not ("nodma" in ABL and x.startswith("buffer_load"))])
    A("s_branch k2_idle")
    A.label("k2_vote")
    A(f"""
s_cmp_lg_u32 s{sREDO}, 0
s_cbranch_scc1 k2_fin
s_waitcnt lgkmcnt(0)
s_barrier
ds_read_b32 v{vF}, v{vFLG}
s_waitcnt lgkmcnt(0)
v_readfirstlane_b32 s{sT}, v{vF}
s_cmp_eq_u32 s{sT}, 0
s_cbranch_scc1 k2_fin
s_waitcnt vmcnt(0)
s_mov_b32 s{sREDO}, 1
s_mov_b32 s{sFAST}, 0
""")
    A.extend(dma_init())
    A.extend(stage_dma()); A.extend(stage_dma())
    A("s_branch k2_att")
    for (p, unit, lab, ret) in slow_sites:
        A.label(lab)
        A("s_nop 7\ns_nop 7")
        A.extend(rowmax(p, vDEL))
        A(f"s_call_b64 s[{sRET}:{sRET+1}], k2_rescale")
        for e in range(unit*8, unit*8 + 8): A.extend(sm_elem(p, e))
        A("s_nop 0")
        e = unit*8 + 7
        A(f"v_add_f32 v{vTS}, v{vTS}, v{T + e % 4}")
        A(f"v_cvt_pk_bf16_f32 v{P + 8*p + e//2}, v{T + (e-1) % 4}, v{T + e % 4}")
        A(f"s_nop 1\ns_branch {ret}")
    A.label("k2_rescale")
    A(f"""
v_max_f32 v{vDEL}, 0, v{vDEL}
v_sub_f32 v{vF}, 0, v{vDEL}
v_exp_f32 v{vF}, v{vF}
""")
    for r in range(32): A(f"v_sub_f32 v{S+r}, v{S+r}, v{vDEL}")
    for r in range(16): A(f"v_sub_f32 v{NEGM+r}, v{NEGM+r}, v{vDEL}")
    for r in range(64): A(f"v_mul_f32 v{O+r}, v{O+r}, v{vF}")
    A(f"v_mul_f32 v{vL}, v{vL}, v{vF}\ns_nop 1\ns_setpc_b64 s[{sRET}:{sRET+1}]")
    A.label("k2_fin")
    stamp_flush(A, 1, 7, sW)
    A.label(f"{name}_end")
    A("s_endpgm")
    A.lines = resolve_waits(A.lines)
    return name, A, desc(name, 256, 256), (256, 512, 160*1024)

def k35(which):
    A = Asm()
    name = f"k{which}_kernel"
    header(A, name)
    K3 = which == 3
    NSTEP = 32 if K3 else 11
    S_ACT, S_W, S_RES, S_MOD, S_O1, S_O2, S_ST, S_WG, S_WU, S_UB = 8, 12, 16, 20, 24, 28, 32, 36, 40, 44
    sW, sMT, sNT, sT, sT2, sAO, sWO, sLB, sCNT, sM0 = 48, 49, 50, 51, 52, 53, 54, 55, 56, 57
    vL16, vWD, vWR, vT, vT2, vT3, vTID = 1, 2, 3, 7, 8, 9, 10
    ACC, AF, WF = 16, 80, 160
    R = 4
    A(f"""
s_cmp_ge_u32 s2, 256
s_cbranch_scc1 {name}_end
""")
    stamp(A, 0)
    A(f"""
s_load_dwordx2 s[64:65], s[0:1], {ARG['wo'] if K3 else ARG['wd']}
s_load_dwordx2 s[66:67], s[0:1], 112
s_load_dwordx2 s[68:69], s[0:1], {ARG['x'] if K3 else ARG['out']}
s_load_dwordx4 s[72:75], s[0:1], {ARG['wg']}
v_mov_b32 v{vTID}, v0
v_lshrrev_b32 v1, 6, v0
v_and_b32 v0, 63, v0
s_and_b32 s{sT}, s2, 7
v_readfirstlane_b32 s{sW}, v1
s_lshr_b32 s{sT2}, s2, 3
s_and_b32 s{sNT}, s{sT2}, 7
s_lshr_b32 s{sT2}, s{sT2}, 3
s_lshl_b32 s{sMT}, s{sT}, 2
s_add_u32 s{sMT}, s{sMT}, s{sT2}
v_lshlrev_b32 v{vL16}, 4, v0
; W dma voffset: (l/8)*1024 + ((l%8) ^ ((l>>4)<<1))*16
v_lshrrev_b32 v{vT}, 3, v0
v_and_b32 v{vT2}, 7, v0
v_lshrrev_b32 v{vT3}, 4, v0
v_lshlrev_b32 v{vWD}, 1, v{vT3}
v_xor_b32 v{vWD}, v{vWD}, v{vT2}
v_lshlrev_b32 v{vWD}, 4, v{vWD}
v_lshl_add_u32 v{vWD}, v{vT}, 10, v{vWD}
; tr read addr: g=l/16, r=(l%16)/4, c=l%4: row=16(g>>1)+4(g&1)+r ; swz=((row>>1)&3) ; addr=row*128 + swz*32 + c*8 + wave*ring
v_and_b32 v{vT}, 15, v0
v_lshrrev_b32 v{vT}, 2, v{vT}             ; r
v_and_b32 v{vT2}, 1, v{vT3}
v_lshl_add_u32 v{vT}, v{vT2}, 2, v{vT}    ; 4(g&1)+r
v_lshrrev_b32 v{vT2}, 1, v{vT}            ; swz
v_lshrrev_b32 v{vT3}, 1, v{vT3}
v_lshl_add_u32 v{vT}, v{vT3}, 4, v{vT}    ; row
v_lshlrev_b32 v{vWR}, 7, v{vT}
v_lshl_add_u32 v{vWR}, v{vT2}, 5, v{vWR}
v_and_b32 v{vT}, 3, v0
v_lshl_add_u32 v{vWR}, v{vT}, 3, v{vWR}
s_mul_i32 s{sLB}, s{sW}, {(R+1)*4096}
v_add_u32 v{vWR}, s{sLB}, v{vWR}
v_xor_b32 v{vWR+1}, 32, v{vWR}
v_xor_b32 v{vWR+2}, 64, v{vWR}
v_xor_b32 v{vWR+3}, 96, v{vWR}
s_waitcnt lgkmcnt(0)
""")
    if K3:
        srd(A, S_ACT, 66, 16*MB, WS_CTX); srd(A, S_W, 64, 4*MB); srd(A, S_RES, 68, 2*MB)
        srd(A, S_O1, 66, 2*MB, WS_X1); srd(A, S_O2, 66, 2*MB, WS_Y); srd(A, S_ST, 66, 131072, WS_STAT)
        srd(A, S_WG, 72, 512*1376*2); srd(A, S_WU, 74, 512*1376*2); srd(A, S_UB, 66, 2*1376*8, WS_UB)
        TSTR, KSTR = 131072, 1024
    else:
        srd(A, S_ACT, 66, 43*131072, WS_G); srd(A, S_W, 64, 1376*512*2); srd(A, S_RES, 66, 2*MB, WS_X1)
        srd(A, S_O1, 68, 2*MB)
        TSTR, KSTR = 1024, 131072
    srd(A, S_MOD, 66, 16384 + 6144, WS_MOD)
    A(f"""
s_mul_i32 s{sAO}, s{sMT}, {4*TSTR}
s_mul_i32 s{sT}, s{sW}, {NSTEP*KSTR}
s_add_u32 s{sAO}, s{sAO}, s{sT}
s_mul_i32 s{sWO}, s{sW}, {NSTEP*32*1024}
s_lshl_b32 s{sT}, s{sNT}, 7
s_add_u32 s{sWO}, s{sWO}, s{sT}
""")
    def issue(st):
        out = []
        slot = st % (R + 1)
        for m in range(4):
            out.append([f"s_add_u32 m0, s{sLB}, {slot*4096 + m*1024}",
                        f"s_add_u32 s{sT}, s{sWO}, {st*32768 + m*8192}",
                        f"buffer_load_dwordx4 v{vWD}, s[{S_W}:{S_W+3}], s{sT} offen lds ;@W{st}"])
        for T in range(4):
            r = AF + slot*16 + T*4
            out.append([f"s_add_u32 s{sT2}, s{sAO}, {st*KSTR + T*TSTR}",
                        f"buffer_load_dwordx4 v[{r}:{r+3}], v{vL16}, s[{S_ACT}:{S_ACT+3}], s{sT2} offen ;@A{st}"])
        return out
    def readW(st):
        out = []
        for t in range(4):
            for rd in range(2):
                r = WF + (st % 2)*16 + t*4 + rd*2
                out.append(f"ds_read_b64_tr_b16 v[{r}:{r+1}], v{vWR+t} offset:{(st % (R+1))*4096 + rd*1024} ;@RW{st}")
        return out
    def flat(x): return [y for z in x for y in (z if isinstance(z, list) else [z])]
    for st in range(R): A.extend(flat(issue(st)))
    A("@wait vm W0")
    stamp(A, 1)
    A.extend(readW(0))
    for st in range(NSTEP):
        mf = []
        for t in range(4):
            for T in range(4):
                d = ACC + (t*4 + T)*4
                cin = "0" if st == 0 else v(d, 4)
                mf.append(f"{M16} {v(d,4)}, {v(WF+(st%2)*16+t*4,4)}, {v(AF+(st%(R+1))*16+T*4,4)}, {cin}")
        fill = []
        if st + R < NSTEP: fill += issue(st + R)
        if st + 1 < NSTEP: fill += [f"@wait vm W{st+1}"] + readW(st + 1)
        A(f"@wait vm A{st} lgkm RW{st}")
        A.extend(interleave(mf, fill) if fill else mf)
    stamp(A, 2)
    RES, GA, SC = 80, 88, 96
    vRO, vMO, vRD, vWRr = 11, 12, 13, 14
    A(f"""
v_lshrrev_b32 v{vT}, 3, v{vTID}           ; token (0..31)
v_and_b32 v{vT2}, 7, v{vTID}
v_lshlrev_b32 v{vRO}, 10, v{vT}
v_lshl_add_u32 v{vRO}, v{vT2}, 4, v{vRO}
v_lshlrev_b32 v{vMO}, 5, v{vT2}
s_lshl_b32 s{sAO}, s{sMT}, 16
s_lshl_b32 s{sT}, s{sNT}, 7
s_add_u32 s{sAO}, s{sAO}, s{sT}
s_add_u32 s{sWO}, s{sAO}, 32768
s_lshl_b32 s{sT}, s{sNT}, 8
s_add_u32 s{sT2}, s{sT}, {(2 if K3 else 5)*2048}
buffer_load_dwordx4 v[{RES}:{RES+3}], v{vRO}, s[{S_RES}:{S_RES+3}], s{sAO} offen
buffer_load_dwordx4 v[{RES+4}:{RES+7}], v{vRO}, s[{S_RES}:{S_RES+3}], s{sWO} offen
buffer_load_dwordx4 v[{GA}:{GA+3}], v{vMO}, s[{S_MOD}:{S_MOD+3}], s{sT2} offen
buffer_load_dwordx4 v[{GA+4}:{GA+7}], v{vMO}, s[{S_MOD}:{S_MOD+3}], s{sT2} offen offset:16
""")
    if K3:
        A(f"""
s_add_u32 s{sT2}, s{sT}, {4*2048}
buffer_load_dwordx4 v[{SC}:{SC+3}], v{vMO}, s[{S_MOD}:{S_MOD+3}], s{sT2} offen
buffer_load_dwordx4 v[{SC+4}:{SC+7}], v{vMO}, s[{S_MOD}:{S_MOD+3}], s{sT2} offen offset:16
""")
    PITCH = 272; PART = 64*PITCH; RB = 4*(R+1)*4096
    A(f"""
v_and_b32 v{vT3}, 15, v0
v_mul_u32_u24 v{vWRr}, {PITCH}, v{vT3}
v_lshrrev_b32 v{vT3}, 4, v0
v_lshl_add_u32 v{vWRr}, v{vT3}, 4, v{vWRr}
s_mul_i32 s{sT}, s{sW}, {PART}
s_add_u32 s{sT}, s{sT}, {RB}
v_add_u32 v{vWRr}, s{sT}, v{vWRr}
v_mul_u32_u24 v{vRD}, {PITCH}, v{vT}
v_lshl_add_u32 v{vRD}, v{vT2}, 5, v{vRD}
v_add_u32 v{vRD}, {RB}, v{vRD}
""")
    for t in range(4):
        for T in range(4):
            A(f"ds_write_b128 v{vWRr}, {v(ACC+(t*4+T)*4,4)} offset:{T*16*PITCH + t*64}")
    A("s_waitcnt lgkmcnt(0)\ns_barrier")
    PR = 16
    for ps in range(2):
        for w in range(4):
            for hh in range(2):
                r = PR + (ps*4 + w)*8 + hh*4
                A(f"ds_read_b128 {v(r,4)}, v{vRD} offset:{w*PART + ps*32*PITCH + hh*16} ;@P{ps}")
    A("s_waitcnt vmcnt(0)")
    X = 104; Y = 120; ST = 136; TM = 140
    for ps in range(2):
        A(f"@wait lgkm P{ps}")
        b = PR + ps*32
        for j in range(8):
            A(f"v_add_f32 v{b+j}, v{b+j}, v{b+8+j}")
            A(f"v_add_f32 v{b+16+j}, v{b+16+j}, v{b+24+j}")
        for j in range(8): A(f"v_add_f32 v{b+j}, v{b+j}, v{b+16+j}")
        x = X + ps*8
        for j in range(4):
            A(f"v_lshlrev_b32 v{x+2*j}, 16, v{RES+ps*4+j}")
            A(f"v_and_b32 v{x+2*j+1}, 0xffff0000, v{RES+ps*4+j}")
        for j in range(8): A(f"v_fmac_f32 v{x+j}, v{b+j}, v{GA+j}")
        for j in range(4): A(f"v_cvt_pk_bf16_f32 v{RES+ps*4+j}, v{x+2*j}, v{x+2*j+1}")
        A(f"buffer_store_dwordx4 {v(RES+ps*4,4)}, v{vRO}, s[{S_O1}:{S_O1+3}], s{sAO if ps == 0 else sWO} offen" + (" sc1" if K3 else ""))
    if K3:
        for ps in range(2):
            x = X + ps*8
            for j in range(4):
                A(f"v_lshlrev_b32 v{x+2*j}, 16, v{RES+ps*4+j}")
                A(f"v_and_b32 v{x+2*j+1}, 0xffff0000, v{RES+ps*4+j}")
            y = Y + ps*8
            for j in range(8): A(f"v_mul_f32 v{y+j}, v{x+j}, v{SC+j}")
            for j in range(4): A(f"v_cvt_pk_bf16_f32 v{y+j}, v{y+2*j}, v{y+2*j+1}")
            A(f"v_add_f32 v{ST+2*ps}, v{x}, v{x+1}")
            for j in range(2, 8): A(f"v_add_f32 v{ST+2*ps}, v{ST+2*ps}, v{x+j}")
        A(f"""
v_lshrrev_b32 v{vT3}, 1, v{vT2}
v_lshlrev_b32 v{vMO}, 10, v{vT3}
v_and_b32 v{vT3}, 1, v{vT2}
v_lshl_add_u32 v{vMO}, v{vT3}, 9, v{vMO}
v_lshl_add_u32 v{vMO}, v{vT}, 4, v{vMO}
s_lshl_b32 s{sT}, s{sMT}, 16
s_lshl_b32 s{sT2}, s{sNT}, 12
s_add_u32 s{sT}, s{sT}, s{sT2}
s_add_u32 s{sT2}, s{sT}, 32768
buffer_store_dwordx4 {v(Y,4)}, v{vMO}, s[{S_O2}:{S_O2+3}], s{sT} offen
buffer_store_dwordx4 {v(Y+8,4)}, v{vMO}, s[{S_O2}:{S_O2+3}], s{sT2} offen
""")
        def red8(regs):
            for pat in ("quad_perm:[1,0,3,2]", "quad_perm:[2,3,0,1]", "row_half_mirror"):
                A("s_nop 0")
                for r in regs: A(f"v_add_f32_dpp v{r}, v{r}, v{r} {pat} row_mask:0xf bank_mask:0xf")
        red8([ST, ST+2])
        for ps in range(2):
            x = X + ps*8
            A(f"v_mul_f32 v{ST+2*ps}, {0x3c800000}, v{ST+2*ps}")
            for j in range(8): A(f"v_sub_f32 v{x+j}, v{x+j}, v{ST+2*ps}")
            A(f"v_mul_f32 v{ST+2*ps+1}, v{x}, v{x}")
            for j in range(1, 8): A(f"v_fmac_f32 v{ST+2*ps+1}, v{x+j}, v{x+j}")
        red8([ST+1, ST+3])
        A(f"""
v_lshlrev_b32 v{vMO}, 6, v{vT}
v_cmp_eq_u32 vcc, 0, v{vT2}
s_lshl_b32 s{sT}, s{sMT}, 12
s_lshl_b32 s{sT2}, s{sNT}, 3
s_add_u32 s{sT}, s{sT}, s{sT2}
s_mov_b64 exec, vcc
buffer_store_dwordx2 {v(ST,2)}, v{vMO}, s[{S_ST}:{S_ST+3}], s{sT} offen
buffer_store_dwordx2 {v(ST+2,2)}, v{vMO}, s[{S_ST}:{S_ST+3}], s{sT} offen offset:2048
s_mov_b64 exec, -1
""")
        BF, UA, UW = 144, 160, 164
        A(f"""
s_cmp_ge_u32 s2, 172
s_cbranch_scc1 {name}_noub
s_cmp_ge_u32 s2, 86
s_cselect_b32 s{S_WG}, s{S_WU}, s{S_WG}
s_cselect_b32 s{S_WG+1}, s{S_WU+1}, s{S_WG+1}
s_cselect_b32 s{sT2}, 86, 0
s_sub_u32 s{sT2}, s2, s{sT2}
v_lshrrev_b32 v{vT}, 1, v0
v_mul_u32_u24 v{vT}, 2752, v{vT}
v_and_b32 v{vT2}, 1, v0
v_lshl_add_u32 v{vT}, v{vT2}, 4, v{vT}
s_mul_i32 s{sT}, s{sW}, {128*2752}
s_lshl_b32 s{sCNT}, s{sT2}, 5
s_add_u32 s{sT}, s{sT}, s{sCNT}
""")
        for m in range(4):
            A(f"s_add_u32 m0, s{sLB}, {m*1024}")
            A(f"s_add_u32 s{sCNT}, s{sT}, {m*32*2752}")
            A(f"buffer_load_dwordx4 v{vT}, s[{S_WG}:{S_WG+3}], s{sCNT} offen lds")
        A(f"""
v_and_b32 v{vT2}, 15, v0
v_lshrrev_b32 v{vT3}, 4, v0
v_lshlrev_b32 v{vT3}, 4, v{vT3}
v_lshlrev_b32 v{vMO}, 10, v{vT2}
v_sub_u32 v{vT3}, v{vT3}, v{vMO}
v_add_u32 v{vT3}, {16384 + 4*1024}, v{vT3}
v_mov_b32 v{vMO}, 0x100000
v_cmp_gt_u32 vcc, 2, v{vT2}
s_lshl_b32 s{sCNT}, s{sW}, 8
s_nop 0
v_cndmask_b32 v{vT3}, v{vMO}, v{vT3}, vcc
""")
        for m in range(4):
            A(f"buffer_load_dwordx4 {v(BF+4*m,4)}, v{vT3}, s[{S_MOD}:{S_MOD+3}], s{sCNT} offen offset:{m*64}")
        A(f"""
v_lshrrev_b32 v{vT}, 4, v0
v_lshlrev_b32 v{vT}, 8, v{vT}
v_lshl_add_u32 v{vT}, v{vT2}, 3, v{vT}    ; g*256 + (r*4+c)*8 = g*256 + r*32 + c*8
v_add_u32 v{vT}, s{sLB}, v{vT}
s_waitcnt vmcnt(0)
""")
        for m in range(4):
            for rd in range(2):
                A(f"ds_read_b64_tr_b16 {v(UW+4*m+2*rd,2)}, v{vT} offset:{m*1024 + rd*128}")
        A("s_waitcnt lgkmcnt(0)")
        for m in range(4):
            A(f"{M16} {v(UA,4)}, {v(UW+4*m,4)}, {v(BF+4*m,4)}, {'0' if m == 0 else v(UA,4)}")
        RB2 = RB + 4*PART
        A(f"""
s_lshl_b32 s{sT}, s{sW}, 10
s_add_u32 s{sT}, s{sT}, {RB2}
v_add_u32 v{vT}, s{sT}, v{vL16}
v_add_u32 v{vT3}, {RB2}, v{vL16}
s_nop 4
ds_write_b128 v{vT}, {v(UA,4)}
s_waitcnt lgkmcnt(0)
s_barrier
""")
        for w in range(4): A(f"ds_read_b128 {v(UW+4*w,4)}, v{vT3} offset:{w*1024}")
        A("s_waitcnt lgkmcnt(0)")
        for j in range(4):
            A(f"v_add_f32 v{UW+j}, v{UW+j}, v{UW+4+j}")
            A(f"v_add_f32 v{UW+8+j}, v{UW+8+j}, v{UW+12+j}")
        for j in range(4): A(f"v_add_f32 v{UW+j}, v{UW+j}, v{UW+8+j}")
        A(f"""
v_mul_u32_u24 v{vT}, {2*1376*4}, v{vT2}
v_lshrrev_b32 v{vT3}, 4, v0
v_lshl_add_u32 v{vT}, v{vT3}, 4, v{vT}
v_cndmask_b32 v{vT}, v{vMO}, v{vT}, vcc
s_lshl_b32 s{sT}, s2, 6
s_cmp_lg_u32 s{sW}, 0
s_cbranch_scc1 {name}_noub
buffer_store_dwordx4 {v(UW,4)}, v{vT}, s[{S_UB}:{S_UB+3}], s{sT} offen
""")
        A.label(f"{name}_noub")
    stamp_flush(A, which - 1, 4, sW)
    A.label(f"{name}_end")
    A("s_endpgm")
    A.lines = resolve_waits(A.lines)
    return name, A, desc(name, 256, 256), (256, 256, 4*(R+1)*4096 + 4*64*272 + 4096)

def k3(): return k35(3)
def k5(): return k35(5)

def k4():
    A = Asm()
    name = "k4_kernel"
    header(A, name)
    S_Y, S_WG, S_WU, S_ST, S_UB, S_G = 8, 12, 16, 20, 24, 28
    sW, sMT, sNT, sT, sT2, sYO, sWO, sM0 = 48, 49, 50, 51, 52, 53, 54, 55
    vL16, vWD, vWR, vT, vT2, vT3, vMU, vRS, vUB, vGO = 1, 2, 5, 8, 9, 10, 11, 12, 13, 14
    ACC, YF, WF, STT = 16, 112, 176, 224
    NSL, RING, SLOT = 8, 6, 24576
    LDS_UB = RING*SLOT
    A(f"""
s_cmp_ge_u32 s2, 240
s_cbranch_scc1 {name}_end
""")
    stamp(A, 0)
    A(f"""
s_load_dwordx4 s[64:67], s[0:1], {ARG['wg']}
s_load_dwordx2 s[68:69], s[0:1], 112
v_lshrrev_b32 v1, 6, v0
v_and_b32 v0, 63, v0
s_and_b32 s{sT}, s2, 7
v_readfirstlane_b32 s{sW}, v1
s_lshr_b32 s{sT2}, s2, 3                  ; 0..29
s_and_b32 s{sMT}, s{sT2}, 1
s_lshl_b32 s{sT}, s{sT}, 1
s_add_u32 s{sMT}, s{sMT}, s{sT}
s_lshr_b32 s{sNT}, s{sT2}, 1
v_lshlrev_b32 v{vL16}, 4, v0
""")
    for i in range(3):
        A(f"""
v_add_u32 v{vT}, {i*64}, v0
v_mul_u32_u24 v{vT2}, 43691, v{vT}
v_lshrrev_b32 v{vT2}, 19, v{vT2}          ; /12
v_mul_u32_u24 v{vT3}, 12, v{vT2}
v_sub_u32 v{vT3}, v{vT}, v{vT3}
v_mul_u32_u24 v{vWD+i}, 2752, v{vT2}
v_lshl_add_u32 v{vWD+i}, v{vT3}, 4, v{vWD+i}
""")
    A(f"""
v_lshrrev_b32 v{vT}, 5, v0
v_and_b32 v{vT2}, 15, v0
v_lshrrev_b32 v{vT3}, 2, v{vT2}
v_lshl_add_u32 v{vT3}, v{vT}, 3, v{vT3}
v_mul_u32_u24 v{vWR}, 192, v{vT3}
v_and_b32 v{vT3}, 16, v0
v_lshl_add_u32 v{vWR}, v{vT3}, 1, v{vWR}
v_and_b32 v{vT3}, 3, v0
v_lshl_add_u32 v{vWR}, v{vT3}, 3, v{vWR}
v_add_u32 v{vWR+1}, {2*SLOT}, v{vWR}
v_add_u32 v{vWR+2}, {4*SLOT}, v{vWR}
v_lshlrev_b32 v{vUB}, 4, v{vT}
v_add_u32 v{vUB}, {LDS_UB}, v{vUB}
; G store voffset: ((l>>4)&1)*1024 + h*256 + (l%16)*16
v_and_b32 v{vT3}, 16, v0
v_lshlrev_b32 v{vGO}, 6, v{vT3}
v_lshl_add_u32 v{vGO}, v{vT}, 8, v{vGO}
v_lshl_add_u32 v{vGO}, v{vT2}, 4, v{vGO}
s_waitcnt lgkmcnt(0)
""")
    srd(A, S_WG, 64, 512*1376*2); srd(A, S_WU, 66, 512*1376*2)
    srd(A, S_Y, 68, 2*MB, WS_Y); srd(A, S_ST, 68, 131072, WS_STAT); srd(A, S_UB, 68, 2*1376*8, WS_UB); srd(A, S_G, 68, 43*131072, WS_G)
    A(f"""
s_lshl_b32 s{sYO}, s{sMT}, 2
s_add_u32 s{sYO}, s{sYO}, s{sW}           ; tokblk32
s_lshl_b32 s{sT}, s{sYO}, 11
s_lshl_b32 s{sYO}, s{sYO}, 15
v_and_b32 v{vT}, 31, v0
v_lshlrev_b32 v{vT}, 6, v{vT}
s_mul_i32 s{sWO}, s{sW}, {16*2752}
s_mul_i32 s{sT2}, s{sNT}, 192
s_add_u32 s{sWO}, s{sWO}, s{sT2}
s_mul_i32 s{sM0}, s{sW}, 3072
""")
    for i in range(4): A(f"buffer_load_dwordx4 {v(STT+4*i,4)}, v{vT}, s[{S_ST}:{S_ST+3}], s{sT} offen offset:{16*i} ;@ST")
    A(f"""
s_mul_i32 s{sT}, s{sW}, {1376*4}
s_mul_i32 s{sT2}, s{sNT}, 384
s_add_u32 s{sT}, s{sT}, s{sT2}
s_lshl_b32 s{sT2}, s{sW}, 10
s_add_u32 m0, s{sT2}, {LDS_UB}
s_nop 0
buffer_load_dwordx4 v{vL16}, s[{S_UB}:{S_UB+3}], s{sT} offen lds ;@UB
""")
    def loadY(ks):
        r = YF + (ks % 16)*4
        return [[f"s_add_u32 s{sT2}, s{sYO}, {(ks // 4)*4096}",
                 f"buffer_load_dwordx4 v[{r}:{r+3}], v{vL16}, s[{S_Y}:{S_Y+3}], s{sT2} offen offset:{(ks % 4)*1024} ;@Y{ks}"]]
    def dmaW(n):
        out = []
        for mat in range(2):
            sr = S_WG if mat == 0 else S_WU
            for i in range(3):
                out.append([f"s_add_u32 m0, s{sM0}, {(n % RING)*SLOT + mat*12288 + i*1024}",
                            f"s_add_u32 s{sT}, s{sWO}, {n*64*2752}",
                            f"buffer_load_dwordx4 v{vWD+i}, s[{sr}:{sr+3}], s{sT} offen lds ;@W{n}"])
        return out
    def flat(x): return [y for z in x for y in (z if isinstance(z, list) else [z])]
    def readW(ks):
        n = ks // 4; sl = n % RING
        out = []
        for ct in range(6):
            for rd in range(2):
                r = WF + (ks % 2)*24 + ct*4 + rd*2
                off = (sl % 2)*SLOT + (ct // 3)*12288 + ((ks % 4)*16 + rd*4)*192 + (ct % 3)*64
                out.append(f"ds_read_b64_tr_b16 v[{r}:{r+1}], v{vWR + sl//2} offset:{off} ;@RW{ks}_{ct}")
        return out
    A.extend(flat(dmaW(0)))
    for ks in range(4): A.extend(flat(loadY(ks)))
    A.extend(flat(dmaW(1)))
    for ks in range(4, 8): A.extend(flat(loadY(ks)))
    A("@wait vm W0\ns_barrier")
    stamp(A, 1)
    A.extend(readW(0))
    pend = {0: dmaW(2), 1: loadY(8) + loadY(9) + loadY(10) + loadY(11), 2: dmaW(3), 3: loadY(12) + loadY(13) + loadY(14) + loadY(15),
            4: dmaW(4), 6: dmaW(5), 8: dmaW(6), 12: dmaW(7)}
    for ks in range(32):
        pre = []
        if ks % 4 == 3 and ks < 31:
            pre += [f"@wait vm W{(ks+1)//4}", "s_barrier"]
        pre.append(f"@wait vm Y{ks}")
        mf = []
        for ct in range(6):
            cin = "0" if ks == 0 else v(ACC + ct*16, 16)
            mf.append([f"@wait lgkm RW{ks}_{ct}", f"{M32} {v(ACC+ct*16,16)}, {v(WF+(ks%2)*24+ct*4,4)}, {v(YF+(ks%16)*4,4)}, {cin}"])
        fill = (readW(ks + 1) if ks < 31 else []) + pend.get(ks, [])
        if 5 <= ks <= 20: fill += loadY(ks + 11)
        A.extend(pre)
        out = []
        per = -(-len(fill) // 6)
        for i, m in enumerate(mf):
            out += m + flat(fill[i*per:(i+1)*per])
        A.extend(out)
    stamp(A, 2)
    A(f"v_add_f32 v{vMU}, v{STT}, v{STT+2}")
    for i in range(2, 8): A(f"v_add_f32 v{vMU}, v{vMU}, v{STT+2*i}")
    A(f"v_mul_f32 v{vMU}, 0x3e000000, v{vMU}")
    A(f"v_add_f32 v{vRS}, v{STT+1}, v{STT+3}")
    for i in range(2, 8): A(f"v_add_f32 v{vRS}, v{vRS}, v{STT+2*i+1}")
    A(f"v_mov_b32 v{vT2}, 0")
    for i in range(8):
        A(f"v_sub_f32 v{vT}, v{STT+2*i}, v{vMU}")
        A(f"v_fmac_f32 v{vT2}, v{vT}, v{vT}")
    A(f"""
v_fmac_f32 v{vRS}, 0x42800000, v{vT2}
v_mov_b32 v{vT}, 0x3727c5ac
v_fmac_f32 v{vT}, 0x3b000000, v{vRS}
v_rsq_f32 v{vRS}, v{vT}
s_lshl_b32 s{sT}, s{sMT}, 3
s_lshl_b32 s{sT2}, s{sW}, 1
s_add_u32 s{sT}, s{sT}, s{sT2}
s_lshl_b32 s{sT}, s{sT}, 10               ; tokblk16*1024
s_mul_i32 s{sT2}, s{sNT}, {3*131072}
s_add_u32 s{sYO}, s{sT}, s{sT2}
v_mul_f32 v{vMU}, v{vMU}, v{vRS}          ; r*mu
s_mov_b32 s56, 0xc0135761                 ; -2*log2e*sqrt(2/pi)
s_mov_b32 s57, 0xbdd2d3e8                 ; that * 0.044715
""")
    U = YF
    for tl in range(3):
        for vec in range(4):
            for q in range(4):
                A(f"ds_read_b128 {v(U+vec*16+q*4,4)}, v{vUB} offset:{vec*1024 + tl*128 + q*32} ;@U{tl}")
        A(f"@wait lgkm U{tl}")
        g0 = ACC + tl*16; u0 = ACC + (3 + tl)*16
        TT = WF
        for r in range(16):
            A(f"v_fma_f32 v{U+32+r}, -v{vMU}, v{U+r}, v{U+32+r}")
            A(f"v_fma_f32 v{U+48+r}, -v{vMU}, v{U+16+r}, v{U+48+r}")
        for r in range(16):
            A(f"v_fma_f32 v{g0+r}, v{g0+r}, v{vRS}, v{U+32+r}")
            A(f"v_fma_f32 v{u0+r}, v{u0+r}, v{vRS}, v{U+48+r}")
        for r in range(16): A(f"v_mul_f32 v{TT+r}, v{g0+r}, v{g0+r}")
        A(f"v_mov_b32 v{vT}, s56")
        for r in range(16): A(f"v_fma_f32 v{TT+r}, v{TT+r}, s57, v{vT}")
        for r in range(16): A(f"v_mul_f32 v{TT+r}, v{TT+r}, v{g0+r}")
        for r in range(16): A(f"v_exp_f32 v{TT+r}, v{TT+r}")
        for r in range(16): A(f"v_mul_f32 v{g0+r}, v{g0+r}, v{u0+r}")
        for r in range(16): A(f"v_add_f32 v{TT+r}, 1.0, v{TT+r}")
        for r in range(16): A(f"v_rcp_f32 v{TT+r}, v{TT+r}")
        A("s_nop 0")
        for r in range(16): A(f"v_mul_f32 v{g0+r}, v{g0+r}, v{TT+r}")
        for r in range(8): A(f"v_cvt_pk_bf16_f32 v{u0+r}, v{g0+2*r}, v{g0+2*r+1}")
        A(f"s_add_u32 s{sT}, s{sYO}, {tl*131072}")
        for sp in range(2):
            A(f"buffer_store_dwordx4 {v(u0+4*sp,4)}, v{vGO}, s[{S_G}:{S_G+3}], s{sT} offen offset:{sp*512} sc1")
    stamp_flush(A, 3, 4, sW)
    A.label(f"{name}_end")
    A("s_endpgm")
    A.lines = resolve_waits(A.lines)
    return name, A, desc(name, 256, 256), (240, 256, RING*SLOT + 4096)

KERNELS = [k1, k2, k3, k4, k5]

def build(kernels=None):
    ks = [k() for k in (kernels or KERNELS)]
    hdr = open("cdna_kernels/" + NAME + ".s.ref").read().split("; Override launch")[0]
    out = hdr
    for name, A, d, (grid, blk, lds) in ks:
        out += f"; @launch kernel={name} grid=({grid},1,1) block=({blk},1,1) lds={lds}\n"
    out += '.amdgcn_target "amdgcn-amd-amdhsa--gfx950"\n.text\n'
    wsb = [int(x[2:]) for x in ABL if x.startswith("ws")]
    for name, A, d, _ in ks:
        if wsb:
            import re
            reg = None
            for i, l in enumerate(A.lines):
                m = re.match(r"s_load_dwordx2 s\[(\d+):\d+\], s\[0:1\], 112", l)
                if m and reg is None: reg = int(m.group(1))
                if reg is not None and l.startswith("s_waitcnt lgkmcnt(0)"):
                    A.lines[i+1:i+1] = [f"s_add_u32 s{reg}, s{reg}, {wsb[0]*MB}", f"s_addc_u32 s{reg+1}, s{reg+1}, 0"]
                    break
        pr = check_hazards(A.lines)
        out += A.text()
    out += '.section .rodata,"a"\n'
    for name, A, d, _ in ks:
        out += d
    return out

if __name__ == "__main__":
    if "diag" in sys.argv[2:]: DIAG = True
    if "cyc" in sys.argv[2:]: CLK = "s_memtime"
    ABL = {x[4:] for x in sys.argv[2:] if x.startswith("abl:")}
    txt = build()
    path = sys.argv[1] if len(sys.argv) > 1 else "cdna_kernels/" + NAME + ".s"
    open(path, "w").write(txt)
    print("wrote", path, len(txt))
```

```python
import sys
from asmlib import *

NAME = "adaLN_cond__compressed_kv_cla__geglu_ffn__prompt"
MB = 1 << 20
WS_KF, WS_VF, WS_CTX, WS_XH, WS_X1, WS_G, WS_MOD, WS_STAT = 0, 16*MB, 32*MB, 48*MB, 50*MB, 52*MB, 58*MB, 58*MB + 65536
WS_CNT, WS_PART = 58*MB + 32768, 64*MB
WS_MODB, WS_UB, WS_Y = 58*MB + 16384, 58*MB + 32768, 62*MB
ARG = dict(x=0, ckv=8, wq=16, wuk=24, wuv=32, wo=40, bx=48, wg=56, wu=64, wd=72, c=80, wmod=88, out=96, dbg=104, ws=112)
M16 = "v_mfma_f32_16x16x32_bf16"
M32 = "v_mfma_f32_32x32x16_bf16"
LOG2E = 0x3fb8aa3b

def srd(A, d, base, size, off=0):
    if off:
        A(f"s_add_u32 s{d}, s{base}, {off}")
        A(f"s_addc_u32 s{d+1}, s{base+1}, 0")
    else:
        A(f"s_mov_b32 s{d}, s{base}")
        A(f"s_mov_b32 s{d+1}, s{base+1}")
    A(f"s_mov_b32 s{d+2}, {size}")
    A(f"s_mov_b32 s{d+3}, 0x20000")

def allreduce64(A, regs, t0, op="v_add_f32"):
    n = len(regs)
    for pat in ("quad_perm:[1,0,3,2]", "quad_perm:[2,3,0,1]", "row_half_mirror", "row_mirror"):
        if n < 3: A(f"s_nop {2 - n}" if n < 3 else "")
        for r in regs:
            A(f"{op}_dpp v{r}, v{r}, v{r} {pat} row_mask:0xf bank_mask:0xf")
    for sw in ("v_permlane16_swap_b32", "v_permlane32_swap_b32"):
        for i, r in enumerate(regs): A(f"v_mov_b32 v{t0+i}, v{r}")
        A("s_nop 1")
        for i, r in enumerate(regs): A(f"{sw} v{t0+i}, v{r}")
        A("s_nop 0")
        for i, r in enumerate(regs): A(f"{op} v{r}, v{r}, v{t0+i}")

DIAG = False
ABL = set()
CLK = "s_memrealtime"
WS_DIAG = 60*MB
def stamp(A, i):
    if DIAG: A(f"{CLK} s[{86+2*i}:{87+2*i}]")
def stamp_flush(A, kidx, n, swave):
    if not DIAG: return
    A(f"""
s_waitcnt vmcnt(0)
{CLK} s[{86+2*(n-1)}:{87+2*(n-1)}]
s_load_dwordx2 s[4:5], s[0:1], 112
s_waitcnt lgkmcnt(0)
s_add_u32 s4, s4, {WS_DIAG + kidx*65536}
s_addc_u32 s5, s5, 0
s_mov_b32 s6, 65536
s_mov_b32 s7, 0x20000
s_lshl_b32 s3, s2, 8
s_lshl_b32 s2, s{swave}, 5
s_add_u32 s3, s3, s2
v_mov_b32 v8, 0
""")
    for i in range(8): A(f"v_mov_b32 v{i}, s{86+2*i}" if i < n else f"v_mov_b32 v{i}, 0")
    A("""s_mov_b64 exec, 1
buffer_store_dwordx4 v[0:3], v8, s[4:7], s3 offen
buffer_store_dwordx4 v[4:7], v8, s[4:7], s3 offen offset:16""")

def header(A, name):
    A(f".globl {name}\n.p2align 8\n.type {name},@function\n{name}:")

def desc(name, vgpr, accum, sgpr=102):
    return f""".p2align 6
.amdhsa_kernel {name}
  .amdhsa_next_free_vgpr {vgpr}
  .amdhsa_next_free_sgpr {sgpr}
  .amdhsa_accum_offset {accum}
  .amdhsa_group_segment_fixed_size 0
  .amdhsa_kernarg_size 120
  .amdhsa_user_sgpr_count 2
  .amdhsa_user_sgpr_kernarg_segment_ptr 1
  .amdhsa_system_sgpr_workgroup_id_x 1
  .amdhsa_float_denorm_mode_32 3
.end_amdhsa_kernel
"""

def flat(x): return [y for z in x for y in (flat(z) if isinstance(z, list) else [z])]

def allreduce64_list(regs, tmps, op="v_add_f32"):
    out = []
    for pat in ("quad_perm:[1,0,3,2]", "quad_perm:[2,3,0,1]", "row_half_mirror", "row_mirror"):
        out.append("s_nop 1" if len(regs) == 1 else "s_nop 0")
        for r in regs: out.append(f"{op}_dpp v{r}, v{r}, v{r} {pat} row_mask:0xf bank_mask:0xf")
    for sw in ("v_permlane16_swap_b32", "v_permlane32_swap_b32"):
        for r, t in zip(regs, tmps): out.append(f"v_mov_b32 v{t}, v{r}")
        out.append("s_nop 1")
        for r, t in zip(regs, tmps): out.append(f"{sw} v{t}, v{r}")
        out.append("s_nop 0")
        for r, t in zip(regs, tmps): out.append(f"{op} v{r}, v{r}, v{t}")
    return out

def k1():
    A = Asm()
    name = "k1_kernel"
    header(A, name)
    S_CKV, S_WUK, S_WUV, S_KV, S_X, S_XH, S_WMOD, S_C, S_MOD, S_DBG, S_WQ = 8, 12, 16, 20, 24, 28, 32, 36, 40, 44, 48
    sW, sHEAD, sKB, sAB, sWB = 52, 53, 54, 55, 56
    sT, sT2, sOK, sOV, sLA, sW10, sTOK, sCOL, sSD, sE = 64, 65, 66, 67, 68, 69, 70, 71, 72, 73
    sJ1, sJ2, sJ3 = 74, 75, 76
    K1S = "k1start" in ABL
    A(f"""
s_cmp_ge_u32 s2, 256
s_cbranch_scc1 {name}_end
""")
    stamp(A, 0)
    vA0, vA1, vW, vAR0, vAR1, vOK, vOV, vT, vT2, vT3 = 2, 3, 4, 5, 6, 7, 8, 9, 10, 11
    vWR = 12
    A(f"""
s_load_dwordx2 s[{S_CKV}:{S_CKV+1}], s[0:1], {ARG['ckv']}
s_load_dwordx2 s[{S_WUK}:{S_WUK+1}], s[0:1], {ARG['wuk']}
s_load_dwordx2 s[{S_WUV}:{S_WUV+1}], s[0:1], {ARG['wuv']}
s_load_dwordx2 s[{S_X}:{S_X+1}], s[0:1], {ARG['x']}
s_load_dwordx2 s[{S_C}:{S_C+1}], s[0:1], {ARG['c']}
s_load_dwordx2 s[{S_WMOD}:{S_WMOD+1}], s[0:1], {ARG['wmod']}
s_load_dwordx2 s[{S_WQ}:{S_WQ+1}], s[0:1], {ARG['wq']}
s_load_dwordx2 s[{S_DBG}:{S_DBG+1}], s[0:1], {ARG['dbg']}
s_load_dwordx2 s[{S_KV}:{S_KV+1}], s[0:1], {ARG['ws']}
v_lshrrev_b32 v1, 6, v0
v_and_b32 v0, 63, v0
s_and_b32 s{sT}, s2, 7
v_readfirstlane_b32 s{sW}, v1
s_lshr_b32 s{sT2}, s2, 3
s_lshl_b32 s{sHEAD}, s{sT}, 2
s_and_b32 s{sKB}, s{sT2}, 3
s_add_u32 s{sHEAD}, s{sHEAD}, s{sKB}
s_lshr_b32 s{sKB}, s{sT2}, 2
s_mov_b32 s{S_CKV+2}, {2*MB}
s_mov_b32 s{S_CKV+3}, 0x20000
s_mov_b32 s{S_WUK+2}, {4*MB}
s_mov_b32 s{S_WUK+3}, 0x20000
s_lshl_b32 s{sAB}, s{sKB}, 18
s_lshl_b32 s{sT}, s{sW}, 16
s_add_u32 s{sAB}, s{sAB}, s{sT}
s_lshl_b32 s{sWB}, s{sHEAD}, 8
v_lshrrev_b32 v{vT}, 3, v0              ; l/8
v_and_b32 v{vT2}, 7, v0                 ; l%8
v_lshrrev_b32 v{vT3}, 1, v{vT}          ; (l/8)>>1  (0..3)
v_xor_b32 v{vA0}, v{vT2}, v{vT3}
v_lshlrev_b32 v{vA0}, 4, v{vA0}
v_lshl_add_u32 v{vA0}, v{vT}, 10, v{vA0}   ; A dma voffset, rows with bit4=0
v_xor_b32 v{vA1}, 64, v{vA0}
v_and_b32 v{vT3}, 1, v{vT3}
s_and_b32 s{sT}, s{sW}, 1
s_lshl_b32 s{sT}, s{sT}, 1
v_or_b32 v{vT3}, s{sT}, v{vT3}
v_lshlrev_b32 v{vT3}, 1, v{vT3}            ; swz
v_xor_b32 v{vW}, v{vT2}, v{vT3}
v_lshlrev_b32 v{vW}, 4, v{vW}
v_lshl_add_u32 v{vW}, v{vT}, 13, v{vW}
s_lshl_b32 s{sT}, s{sW}, 16
v_add_u32 v{vW}, s{sT}, v{vW}              ; + wave*8 rows
s_lshl_b32 s{sLA}, s{sW}, 14
s_lshl_b32 s{sW10}, s{sW}, 10
s_waitcnt lgkmcnt(0)
""")
    HI = 64*1024; SIDE = 144*1024
    SEQ = [(c, q) for q in range(4) for c in range(2)] + [(c, q) for c in (2, 3) for q in range(4)]
    WLOC = {n: HI + (n % 5)*16384 for n in range(10)}
    WLOC.update({10: 0, 11: 16384, 12: 32768, 13: 49152, 14: HI + 0*16384, 15: HI + 1*16384})
    def dmaA(i):
        return [[f"s_add_u32 m0, s{sLA}, {(i % 2)*8192 + ii*1024}",
                 f"s_add_u32 s{sT}, s{sAB}, {ii*8192 + i*128}",
                 f"buffer_load_dwordx4 v{vA1 if ii & 2 else vA0}, s[{S_CKV}:{S_CKV+3}], s{sT} offen lds ;@A{i}"] for ii in range(8)]
    def dmaW(n):
        c, q = SEQ[n]
        sr = S_WUK if c < 2 else S_WUV
        return [[f"s_add_u32 m0, s{sW10}, {WLOC[n] + m*4096}",
                 f"s_add_u32 s{sT}, s{sWB}, {q*128*8192 + m*32*8192 + (c % 2)*128}",
                 f"buffer_load_dwordx4 v{vW}, s[{sr}:{sr+3}], s{sT} offen lds ;@W{n}"] for m in range(4)]
    for x in (dmaW(0), dmaA(0)):
        A.extend(flat(x))
    if "nocpf" not in ABL:
        A(f"""
s_getpc_b64 s[80:81]
k1_pc:
s_sub_u32 s80, s80, k1_pc-k1_kernel
s_subb_u32 s81, s81, 0
s_mov_b32 s82, text_end-k1_kernel
s_mov_b32 s83, 0x20000
s_lshr_b32 s{sT}, s2, 3
s_lshl_b32 s{sT}, s{sT}, 2
s_add_u32 s{sT}, s{sT}, s{sW}
s_lshl_b32 s{sT}, s{sT}, 10
v_lshlrev_b32 v1, 7, v0
s_mov_b64 exec, 0xff
buffer_load_dword v255, v1, s[80:83], s{sT} offen
s_mov_b64 exec, -1
""")
    A(f"""
v_and_b32 v{vT}, 15, v0                 ; n
v_lshrrev_b32 v{vT2}, 4, v0             ; g
v_lshrrev_b32 v{vT3}, 1, v{vT}
v_xor_b32 v{vAR0}, v{vT2}, v{vT3}
v_lshlrev_b32 v{vAR0}, 4, v{vAR0}
v_and_b32 v{vT3}, 8, v{vT}
v_add_u32 v{vT3}, v{vT3}, v{vT}         ; rho0 = 16(n>>3)+(n&7)
v_lshl_add_u32 v{vAR0}, v{vT3}, 7, v{vAR0}
v_add_u32 v{vAR0}, s{sLA}, v{vAR0}
v_xor_b32 v{vAR1}, 64, v{vAR0}
v_and_b32 v{vOK}, 1, v{vT2}
v_lshlrev_b32 v{vOK}, 9, v{vOK}
v_lshrrev_b32 v{vOV}, 1, v{vT2}
v_lshl_add_u32 v{vOK}, v{vOV}, 10, v{vOK}
v_lshl_add_u32 v{vOV}, v{vT}, 4, v{vOK}
v_lshl_add_u32 v{vOK}, v{vT3}, 4, v{vOK}
v_lshrrev_b32 v{vT3}, 2, v{vT}          ; r
v_lshl_add_u32 v{vWR}, v{vT2}, 3, v{vT3}   ; row
v_lshlrev_b32 v{vWR}, 7, v{vWR}
v_and_b32 v{vT}, 3, v0
v_lshl_add_u32 v{vWR}, v{vT}, 3, v{vWR}    ; + c*8
v_lshrrev_b32 v{vT3}, 1, v{vT3}
v_and_b32 v{vT2}, 1, v{vT2}
v_lshl_or_b32 v{vT3}, v{vT2}, 1, v{vT3}
v_lshl_add_u32 v{vWR}, v{vT3}, 5, v{vWR}   ; + swz*16
""")
    for t in range(1, 4): A(f"v_xor_b32 v{vWR+t}, {t*32}, v{vWR}")
    for b in range(1, 3):
        for t in range(4): A(f"v_add_u32 v{vWR+4*b+t}, {b*65536}, v{vWR+t}")
    for d, size in ((S_WUV, 4*MB), (S_X, 2*MB), (S_C, 1024), (S_WMOD, 512*3072*2), (S_WQ, 4*MB), (S_DBG, 256), (S_KV, 32*MB)):
        A(f"s_mov_b32 s{d+2}, {size}\ns_mov_b32 s{d+3}, 0x20000")
    srd(A, S_XH, S_KV, 2*MB, WS_XH); srd(A, S_MOD, S_KV, 65536, WS_MOD)
    A(f"""
s_lshl_b32 s{sOK}, s{sHEAD}, 19
s_lshl_b32 s{sT}, s{sKB}, 16
s_add_u32 s{sOK}, s{sOK}, s{sT}
s_lshl_b32 s{sT}, s{sW}, 14
s_add_u32 s{sOK}, s{sOK}, s{sT}
s_add_u32 s{sOV}, s{sOK}, {16*MB}
s_lshl_b32 s{sTOK}, s2, 3
s_and_b32 s{sT}, s2, 7
s_lshl_b32 s{sT}, s{sT}, 3
s_bfe_u32 s{sT2}, s2, 0x30003
s_add_u32 s{sCOL}, s{sT}, s{sT2}
s_and_b32 s{sT}, s2, 0xc0
s_add_u32 s{sCOL}, s{sCOL}, s{sT}
s_lshl_b32 s{sSD}, s{sW}, 12
s_add_u32 s{sSD}, s{sSD}, {SIDE}
""")
    A.extend(flat(dmaA(1))); A.extend(flat(dmaW(1)))

    def readA(i):
        out = []
        for kk in range(2):
            for T in range(4):
                r = ((2*i + kk)*4 + T)*4
                out.append(f"ds_read_b128 a[{r}:{r+3}], v{vAR1 if kk else vAR0} offset:{(i % 2)*8192 + (T//2)*4096 + (T % 2)*1024} ;@RA{i}")
        return out
    WF = 64
    def gfrags(G):
        k = G % 4
        if G < 4: return [(2*(k % 2) + i // 2, 2*(k // 2) + i % 2) for i in range(4)]
        return [(k, ks) for ks in range(4)]
    def readW(G):
        n = G // 4
        out = []
        for i, (t, ks) in enumerate(gfrags(G)):
            for rd in range(2):
                r = WF + (G % 3)*16 + i*4 + rd*2
                off = WLOC[n] + ks*4096 + rd*512
                out.append(f"ds_read_b64_tr_b16 v[{r}:{r+1}], v{vWR + 4*(off//65536) + t} offset:{off % 65536} ;@RW{G}")
        return out

    A("@wait vm A0")
    A.extend(readA(0))
    A("s_barrier")
    stamp(A, 1)
    A.extend(readW(0)); A.extend(readW(1))
    ACC = [128, 192]; OUT = 32
    def acc(c, t, T): return ACC[c % 2] + (t*4 + T)*4
    def epilogue(c):
        out = []
        k = 0
        if c < 2:
            for b in range(2):
                for T in range(4):
                    o = OUT + (k % 4)*4; k += 1
                    p = []
                    for tt in range(2):
                        r = acc(c, 2*b + tt, T)
                        p.append(f"v_cvt_pk_bf16_f32 v{o+2*tt}, v{r}, v{r+1}")
                        p.append(f"v_cvt_pk_bf16_f32 v{o+2*tt+1}, v{r+2}, v{r+3}")
                    p.append([f"s_add_u32 s{sE}, s{sOK}, {(T//2)*8192 + (c % 2)*4096}",
                              f"buffer_store_dwordx4 v[{o}:{o+3}], v{vOK}, s[{S_KV}:{S_KV+3}], s{sE} offen offset:{(T % 2)*128 + b*2048} sc1"])
                    out.append(p)
        else:
            for t in range(4):
                for b in range(2):
                    o = OUT + (k % 4)*4; k += 1
                    p = []
                    for aa in range(2):
                        r = acc(c, t, 2*b + aa)
                        p.append(f"v_cvt_pk_bf16_f32 v{o+2*aa}, v{r}, v{r+1}")
                        p.append(f"v_cvt_pk_bf16_f32 v{o+2*aa+1}, v{r+2}, v{r+3}")
                    p.append([f"s_add_u32 s{sE}, s{sOV}, {b*8192 + (c % 2)*4096}",
                              f"buffer_store_dwordx4 v[{o}:{o+3}], v{vOV}, s[{S_KV}:{S_KV+3}], s{sE} offen offset:{(t//2)*2048 + (t % 2)*256} sc1"])
                    out.append(p)
        return out
    extra = {G: [] for G in range(64)}
    for k, p in enumerate(epilogue(0)): extra[[27, 28, 28, 29, 30, 31, 32, 33][k]] += p
    for k, p in enumerate(epilogue(1)): extra[34 + (3*k) // 2] += p
    for k, p in enumerate(epilogue(2)): extra[46 + 2*k] += p
    ep3 = epilogue(3)
    for k in range(4): extra[62 + k // 2] += ep3[k]
    def slabjob(i): return [f"@wait vm A{i}"] + readA(i)
    waitRA = {0: 0, 2: 1}
    extra[0] += dmaA(2) + dmaW(2)
    extra[1] += slabjob(1) + dmaW(3)
    extra[2] += dmaA(3) + dmaW(4)
    for i in range(2, 8):
        g0 = 4 + (i - 2)*3
        extra[g0] += slabjob(i)
        extra[g0 + 1] += [f"@wait lgkm RA{i}"] + (dmaA(i + 2) if i + 2 < 8 else [])
    wsched = {6: 5, 10: 6, 15: 7, 18: 8, 22: 9, 23: 10, 24: 11, 25: 12, 26: 13, 27: 14, 30: 15}
    for G, w in wsched.items(): extra[G] = dmaW(w) + extra[G]
    def spread(lst, g0, g1, nm=""):
        if "noside" in ABL: return
        if "nowait" in ABL: lst = [[y for y in flat([x]) if not y.startswith("@wait vm")] for x in lst]
        if "novalu1" in ABL: lst = [[y for y in flat([x]) if not (y.startswith("v_") and not y.startswith(("v_lsh", "v_and_b32 v%d" % vT2, "v_mov_b32 v2", "v_readf")) or y.startswith("s_nop"))] for x in lst]
        if "nonop" in ABL: lst = [[y for y in flat([x]) if not y.startswith("s_nop")] for x in lst]
        if "nomem" in ABL: lst = [[y for y in flat([x]) if not y.startswith(("buffer_", "@wait vm", "s_cbranch"))] for x in lst]
        n = g1 - g0
        per = -(-len(lst) // n)
        for k in range(n): extra[g0 + k] += lst[k*per:(k+1)*per]

    F = 112; RAW = 48; SCL = 56; SHF = 24
    t0, t1, t2, t3 = vT2, vT3, 1, OUT + 15
    j1 = [f"v_lshrrev_b32 v{t0}, 1, v0", f"v_mul_u32_u24 v{t0}, 6144, v{t0}", f"v_and_b32 v{t1}, 1, v0",
          f"v_lshl_add_u32 v{t0}, v{t1}, 4, v{t0}",
          f"s_mul_i32 s{sJ2}, s{sW}, {128*6144}", f"s_lshl_b32 s{sJ1}, s{sCOL}, 5", f"s_add_u32 s{sJ2}, s{sJ2}, s{sJ1}",
          [f"s_cmp_lt_u32 s{sCOL}, 192", f"s_cselect_b32 s{sJ2}, s{sJ2}, 0x10000000"],
          f"v_and_b32 v{t1}, 3, v0", f"v_lshlrev_b32 v{t1}, 6, v{t1}", f"v_lshrrev_b32 v{vT}, 4, v0",
          f"v_lshl_add_u32 v{t1}, v{vT}, 4, v{t1}", f"s_lshl_b32 s{sJ1}, s{sW}, 8",
          f"buffer_load_dwordx4 {v(SCL,4)}, v{t1}, s[{S_C}:{S_C+3}], s{sJ1} offen ;@CV"]
    for m in range(4):
        j1.append([f"s_add_u32 m0, s{sSD}, {m*1024}", f"s_add_u32 s{sJ1}, s{sJ2}, {m*32*6144}",
                   f"buffer_load_dwordx4 v{t0}, s[{S_WMOD}:{S_WMOD+3}], s{sJ1} offen lds ;@WM"])
    spread(j1, 3, 4)
    j1b = [f"v_lshlrev_b32 v{t1}, 4, v0", f"v_add_u32 v{t3}, {SIDE}, v{t1}", f"v_add_u32 v{t1}, s{sSD}, v{t1}",
           f"v_and_b32 v{t0}, 15, v0", f"v_lshlrev_b32 v{t2}, 8, v{vT}", f"v_lshl_add_u32 v{t2}, v{t0}, 3, v{t2}",
           f"v_add_u32 v{t2}, s{sSD}, v{t2}", "@wait vm CV"]
    for j in range(4):
        j1b += [f"v_lshlrev_b32 v{RAW+2*j}, 16, v{SCL+j}", f"v_and_b32 v{RAW+2*j+1}, 0xffff0000, v{SCL+j}"]
    for j in range(8): j1b.append(f"v_mul_f32 v{SHF+j}, 0xbfb8aa3b, v{RAW+j}")
    for j in range(8): j1b.append(f"v_exp_f32 v{SHF+j}, v{SHF+j}")
    for j in range(8): j1b.append(f"v_add_f32 v{SHF+j}, 1.0, v{SHF+j}")
    for j in range(8): j1b.append(f"v_rcp_f32 v{SHF+j}, v{SHF+j}")
    for j in range(8): j1b.append(f"v_mul_f32 v{RAW+j}, v{RAW+j}, v{SHF+j}")
    for j in range(4): j1b.append(f"v_cvt_pk_bf16_f32 v{RAW+j}, v{RAW+2*j}, v{RAW+2*j+1}")
    j1b.append("@wait vm WM")
    MW = [SCL, SCL+4, SHF, SHF+4]
    for m in range(4):
        for rd in range(2): j1b.append(f"ds_read_b64_tr_b16 {v(MW[m]+2*rd,2)}, v{t2} offset:{m*1024 + rd*128} ;@MW")
    for m in range(4):
        for j in range(4):
            j1b.append(f"v_mov_b32_dpp v{F+4*m+j}, v{RAW+j} quad_perm:[{m},{m},{m},{m}] row_mask:0xf bank_mask:0xf")
    j1b += ["@wait lgkm MW", "s_nop 0"]
    for m in range(4): j1b.append(f"{M16} {v(RAW+4,4)}, {v(MW[m],4)}, {v(F+4*m,4)}, {'0' if m == 0 else v(RAW+4,4)}")
    j1b += ["s_nop 7", f"ds_write_b128 v{t1}, {v(RAW+4,4)} ;@MP", "@wait lgkm MP"]
    spread(j1b, 8, 18)
    j1c = [f"ds_read_b128 {v(F+4*w,4)}, v{t3} offset:{w*4096} ;@MR" for w in range(4)]
    j1c += [f"s_lshr_b32 s{sJ1}, s{sCOL}, 5", [f"s_cmp_eq_u32 s{sJ1}, 1", f"s_cselect_b32 s{sJ2}, 1.0, 0"],
            [f"s_cmp_eq_u32 s{sJ1}, 4", f"s_cselect_b32 s{sJ2}, 1.0, s{sJ2}"], "@wait lgkm MR"]
    for j in range(4): j1c += [f"v_add_f32 v{F+j}, v{F+j}, v{F+4+j}", f"v_add_f32 v{F+8+j}, v{F+8+j}, v{F+12+j}"]
    for j in range(4): j1c.append(f"v_add_f32 v{F+j}, v{F+j}, v{F+8+j}")
    for rnd in range(2):
        for h in range(2): j1c.append(f"v_cvt_pk_bf16_f32 v{F+4+h}, v{F+2*h}, v{F+2*h+1}")
        for h in range(2): j1c += [f"v_lshlrev_b32 v{F+2*h}, 16, v{F+4+h}", f"v_and_b32 v{F+2*h+1}, 0xffff0000, v{F+4+h}"]
        if rnd == 0:
            for e in range(4): j1c.append(f"v_add_f32 v{F+e}, s{sJ2}, v{F+e}")
    j1c += [f"v_lshlrev_b32 v{t0}, 4, v{vT}", f"v_lshlrev_b32 v{t1}, 3, v{vT}",
            f"s_lshl_b32 s{sJ1}, s{sCOL}, 6", f"s_lshl_b32 s{sJ2}, s{sCOL}, 5", f"s_add_u32 s{sJ2}, s{sJ2}, 16384",
            [f"s_cmp_lt_u32 s{sCOL}, 192", f"s_cselect_b32 s{sJ1}, s{sJ1}, 0x10000000", f"s_cselect_b32 s{sJ2}, s{sJ2}, 0x10000000"],
            [f"s_cmp_eq_u32 s{sW}, 0", f"s_cselect_b32 s{sJ1}, s{sJ1}, 0x10000000", f"s_cselect_b32 s{sJ2}, s{sJ2}, 0x10000000"],
            [f"s_mov_b32 exec_lo, 0x10001", f"s_mov_b32 exec_hi, 0x10001",
             f"buffer_store_dwordx4 {v(F,4)}, v{t0}, s[{S_MOD}:{S_MOD+3}], s{sJ1} offen sc1 ;@MS",
             f"buffer_store_dwordx2 {v(F+4,2)}, v{t1}, s[{S_MOD}:{S_MOD+3}], s{sJ2} offen sc1 ;@MS",
             "s_mov_b64 exec, -1"]]
    spread(j1c, 18, 22)
    t0, t1, t2, t3 = vA0, vA1, vAR0, vAR1
    j1d = [f"s_lshl_b32 s{sJ1}, s{sW}, 8", f"s_add_u32 s{sJ1}, s{sJ1}, s{sCOL}", [f"s_cmp_lt_u32 s{sJ1}, 64",
           f"s_cselect_b32 s{sJ1}, 0, 0x1000"], f"v_mov_b32 v{t0}, 0", f"v_mov_b32 v{t1}, 1",
           ["@wait vm MS", "s_mov_b64 exec, 1",
            f"buffer_atomic_add v{t1}, v{t0}, s[{S_DBG}:{S_DBG+3}], s{sJ1} offen sc1",
            f"s_lshl_b32 s{sJ1}, s2, 7", f"s_add_u32 s{sJ1}, s{sJ1}, 32768",
            f"buffer_store_dword v{t0}, v{t0}, s[{S_MOD}:{S_MOD+3}], s{sJ1} offen sc1",
            "s_mov_b64 exec, -1"]]
    spread(j1d, 26, 27)
    j2 = [f"v_lshlrev_b32 v{t2}, 4, v0", f"s_lshl_b32 s{sJ1}, s{sTOK}, 10", f"s_lshl_b32 s{sJ2}, s{sW}, 11", f"s_add_u32 s{sJ1}, s{sJ1}, s{sJ2}",
          f"buffer_load_dwordx4 {v(RAW,4)}, v{t2}, s[{S_X}:{S_X+3}], s{sJ1} offen ;@XR",
          f"buffer_load_dwordx4 {v(RAW+4,4)}, v{t2}, s[{S_X}:{S_X+3}], s{sJ1} offen offset:1024 ;@XR"]
    spread(j2, 22, 23)
    pf = [f"v_lshlrev_b32 v{t2}, 13, v{vT}", f"v_and_b32 v{t3}, 15, v0", f"v_lshl_add_u32 v{t2}, v{t3}, 4, v{t2}",
          f"s_lshl_b32 s{sJ2}, s{sKB}, 19", f"s_lshl_b32 s{sJ1}, s{sW}, 17", f"s_add_u32 s{sJ2}, s{sJ2}, s{sJ1}",
          f"s_add_u32 s{sJ2}, s{sJ2}, s{sWB}"]
    for m in range(4):
        pf.append([f"s_add_u32 m0, s{sSD}, {m*1024}", f"s_add_u32 s{sJ1}, s{sJ2}, {m*32768}",
                   f"buffer_load_dwordx4 v{t2}, s[{S_WQ}:{S_WQ+3}], s{sJ1} offen lds ;@PF"])
    spread(pf, 31, 33)
    S0, S1 = vT, vT2; TA, TB = vT3, t3
    j2b = ["@wait vm XR"]
    for r in range(2):
        for j in range(4):
            j2b += [f"v_lshlrev_b32 v{F+r*8+2*j}, 16, v{RAW+4*r+j}", f"v_and_b32 v{F+r*8+2*j+1}, 0xffff0000, v{RAW+4*r+j}"]
    for r, sr in enumerate((S0, S1)):
        j2b.append(f"v_add_f32 v{sr}, v{F+r*8}, v{F+r*8+1}")
        for j in range(2, 8): j2b.append(f"v_add_f32 v{sr}, v{sr}, v{F+r*8+j}")
    j2b += allreduce64_list([S0, S1], [TA, TB])
    for r, sr in enumerate((S0, S1)):
        j2b.append(f"v_mul_f32 v{sr}, 0x3b000000, v{sr}")
        for j in range(8): j2b.append(f"v_sub_f32 v{F+r*8+j}, v{F+r*8+j}, v{sr}")
    for r, sr in enumerate((S0, S1)):
        j2b.append(f"v_mul_f32 v{sr}, v{F+r*8}, v{F+r*8}")
        for j in range(1, 8): j2b.append(f"v_fmac_f32 v{sr}, v{F+r*8+j}, v{F+r*8+j}")
    j2b += allreduce64_list([S0, S1], [TA, TB])
    for sr in (S0, S1):
        j2b += [f"v_mov_b32 v{TA}, 0x3727c5ac", f"v_fmac_f32 v{TA}, 0x3b000000, v{sr}", f"v_rsq_f32 v{sr}, v{TA}", "s_nop 0",
                f"v_mul_f32 v{sr}, 0x3e0293ee, v{sr}"]
    for r, sr in enumerate((S0, S1)):
        for j in range(8): j2b.append(f"v_mul_f32 v{F+r*8+j}, v{F+r*8+j}, v{sr}")
    spread(j2b, 33, 48)
    poll = [f"buffer_load_dword v{t1}, v{t0}, s[{S_DBG}:{S_DBG+3}], 0 offen sc1 ;@PL"]
    spread(poll, 42, 43)
    chk = [["@wait vm PL", f"v_readfirstlane_b32 s{sJ1}, v{t1}", "s_nop 0", f"s_cmp_lt_u32 s{sJ1}, 64", f"s_cbranch_scc1 {name}_spin", f"{name}_go:"],
           f"v_lshlrev_b32 v{t2}, 5, v0",
           f"buffer_load_dwordx4 {v(SHF,4)}, v{t2}, s[{S_MOD}:{S_MOD+3}], 0 offen sc1 ;@ML",
           f"buffer_load_dwordx4 {v(SHF+4,4)}, v{t2}, s[{S_MOD}:{S_MOD+3}], 0 offen offset:16 sc1 ;@ML",
           f"buffer_load_dwordx4 {v(SCL,4)}, v{t2}, s[{S_MOD}:{S_MOD+3}], 0 offen offset:2048 sc1 ;@ML",
           f"buffer_load_dwordx4 {v(SCL+4,4)}, v{t2}, s[{S_MOD}:{S_MOD+3}], 0 offen offset:2064 sc1 ;@ML"]
    spread(chk, 48, 49)
    j2c = [f"v_lshlrev_b32 v{t2}, 7, v0", f"s_lshl_b32 s{sJ1}, s{sW}, 5", f"s_add_u32 s{sJ1}, s{sJ1}, {SIDE}", f"v_add_u32 v{t2}, s{sJ1}, v{t2}",
           "@wait vm ML"]
    for j in range(8): j2c.append(f"v_mul_f32 v{SHF+j}, 0x3e0293ee, v{SHF+j}")
    for r in range(2):
        for j in range(8): j2c.append(f"v_fma_f32 v{F+r*8+j}, v{F+r*8+j}, v{SCL+j}, v{SHF+j}")
        for j in range(4): j2c.append(f"v_cvt_pk_bf16_f32 v{RAW+4*r+j}, v{F+r*8+2*j}, v{F+r*8+2*j+1}")
        j2c.append(f"ds_write_b128 v{t2}, {v(RAW+4*r,4)} offset:{16*r} ;@HW")
    j2c.append("@wait lgkm HW")
    spread(j2c, 54, 58)
    j2d = [f"v_lshlrev_b32 v{t2}, 4, v0", f"s_lshl_b32 s{sJ1}, s{sW}, 11", f"s_add_u32 s{sJ1}, s{sJ1}, {SIDE}", f"v_add_u32 v{t2}, s{sJ1}, v{t2}",
           f"ds_read_b128 {v(RAW,4)}, v{t2} ;@HR", f"ds_read_b128 {v(RAW+4,4)}, v{t2} offset:1024 ;@HR",
           f"v_lshrrev_b32 v{t3}, 3, v0", f"v_lshlrev_b32 v{t3}, 9, v{t3}", f"v_and_b32 v{t0}, 7, v0", f"v_lshl_add_u32 v{t3}, v{t0}, 4, v{t3}",
           f"s_lshr_b32 s{sJ2}, s{sTOK}, 5", f"s_lshl_b32 s{sJ2}, s{sJ2}, 15", f"s_and_b32 s{sJ3}, s{sTOK}, 31", f"s_lshl_b32 s{sJ3}, s{sJ3}, 4",
           f"s_add_u32 s{sJ2}, s{sJ2}, s{sJ3}", f"s_lshl_b32 s{sJ3}, s{sW}, 13", f"s_add_u32 s{sJ2}, s{sJ2}, s{sJ3}", f"s_add_u32 s{sJ3}, s{sJ2}, 4096",
           "@wait lgkm HR",
           f"buffer_store_dwordx4 {v(RAW,4)}, v{t3}, s[{S_XH}:{S_XH+3}], s{sJ2} offen sc1",
           f"buffer_store_dwordx4 {v(RAW+4,4)}, v{t3}, s[{S_XH}:{S_XH+3}], s{sJ3} offen sc1"]
    spread(j2d, 58, 60)

    for G in range(64):
        n = G // 4
        c, q = SEQ[n]
        pre = []
        if (G + 2) % 4 == 0 and G + 2 < 64:
            pre += [f"@wait vm W{(G+2)//4}", "s_barrier"]
        pre.append(f"@wait lgkm RW{G}")
        if G in waitRA: pre.append(f"@wait lgkm RA{waitRA[G]}")
        if G == 8: pre.append("@wait lgkm RA3")
        mf = []
        fr = gfrags(G)
        ts = sorted({t for t, _ in fr})
        for t in ts:
            for T in range(4):
                for i, (tt, ks) in enumerate(fr):
                    if tt != t: continue
                    d = acc(c, t, T)
                    wf = v(WF + (G % 3)*16 + i*4, 4)
                    af = a(((q*4 + ks)*4 + T)*4, 4)
                    cin = "0" if (q == 0 and ks == 0) else v(d, 4)
                    if c < 2: mf.append(f"{M16} {v(d,4)}, {wf}, {af}, {cin}")
                    else:     mf.append(f"{M16} {v(d,4)}, {af}, {wf}, {cin}")
        rw = readW(G + 2) if G + 2 < 64 else []
        slots = [[] for _ in range(16)]
        for k, x in enumerate(rw): slots[2*k].append(x)
        ex = extra[G]
        order = [1, 3, 5, 7, 9, 11, 13, 15, 0, 2, 4, 6, 8, 10, 12, 14]
        cnt = [0]*16
        for k in range(len(ex)): cnt[order[k % 16]] += 1
        k = 0
        for gi in range(16):
            for _ in range(cnt[gi]):
                slots[gi].append(ex[k]); k += 1
        st = (2, 4, 8, 12, 16) if K1S else (8, 16, 32, 48)
        if G in st: stamp(A, 2 + st.index(G))
        A.extend(pre)
        for m, sl in zip(mf, slots):
            A(m); A.extend(flat(sl))
    if not K1S: stamp(A, 6)
    A.extend(flat(ep3[4:6]))
    A.extend(flat(ep3[6:]))
    stamp_flush(A, 0, 8, sW)
    A.label(f"{name}_end")
    A("s_endpgm")
    A.label(f"{name}_spin")
    if "noside" in ABL: A.label(f"{name}_go")
    A(f"""
s_mov_b32 s{sJ3}, 0x40000
{name}_spin2:
s_sleep 16
buffer_load_dword v{t1}, v{t0}, s[{S_DBG}:{S_DBG+3}], 0 offen sc1 ;@cond
s_waitcnt vmcnt(0)
v_readfirstlane_b32 s{sJ1}, v{t1}
s_sub_u32 s{sJ3}, s{sJ3}, 1
s_cbranch_scc1 {name}_go
s_cmp_lt_u32 s{sJ1}, 64
s_cbranch_scc1 {name}_spin2
s_branch {name}_go
""")
    A.lines = resolve_waits(A.lines)
    return name, A, desc(name, 512, 256), (256, 256, 160*1024)

def gaps(mf, fills):
    out = []
    for i, m in enumerate(mf):
        out.extend(m if isinstance(m, list) else [m])
        out.extend(fills.get(i, []))
    return out

def k2():
    A = Asm()
    name = "k2_kernel"
    header(A, name)
    S_WQ, S_KV, S_XH, S_CTX, S_PF, S_WO, S_CNT = 8, 12, 16, 20, 24, 64, 76
    sW, sG, sHEAD, sPAIR, sTB, sR, sNS, sT, sT2 = 28, 29, 30, 31, 32, 33, 34, 35, 36
    sSLOT, sDM0, sDK, sDJ, sTHR, sXB, sFAST, sJ, sW4 = 37, 38, 39, 40, 41, 42, 43, 44, 45
    sRET = 46
    sM0, sM1, sREDO, sLIM, sWOB = 48, 49, 50, 51, 62
    LDS_K0, LDS_FLAG, LDS_PF = 128*1024, 136*1024, 144*1024
    vL16, vWD, vWR, vFLG, vCUR, vMSK, vNINF, vL, vTS, vDEL, vF, vWOD = 1, 2, 3, 7, 8, 10, 11, 12, 13, 14, 15, 9
    O, QF, S, P, NEGM, FR, T = 16, 80, 112, 144, 160, 176, 208
    XR = 112
    WFR = 176
    A(f"""
s_cmp_ge_u32 s2, 256
s_cbranch_scc1 {name}_end
""")
    stamp(A, 0)
    A(f"""
s_load_dwordx2 s[{S_WQ}:{S_WQ+1}], s[0:1], {ARG['wq']}
s_load_dwordx2 s[{S_KV}:{S_KV+1}], s[0:1], {ARG['ws']}
s_load_dwordx2 s[64:65], s[0:1], {ARG['wo']}
s_load_dwordx4 s[68:71], s[0:1], {ARG['wg']}
s_load_dwordx2 s[72:73], s[0:1], {ARG['wd']}
v_lshrrev_b32 v1, 6, v0
v_and_b32 v0, 63, v0
s_and_b32 s{sT}, s2, 7
v_readfirstlane_b32 s{sW}, v1
s_lshr_b32 s{sT2}, s2, 3
s_lshl_b32 s{sHEAD}, s{sT}, 2
s_and_b32 s{sT}, s{sT2}, 3
s_add_u32 s{sHEAD}, s{sHEAD}, s{sT}
s_lshr_b32 s{sPAIR}, s{sT2}, 2
s_lshr_b32 s{sG}, s{sW}, 2
s_and_b32 s{sW4}, s{sW}, 3
s_sub_u32 s{sT}, 15, s{sPAIR}
s_cmp_eq_u32 s{sG}, 0
s_cselect_b32 s{sTB}, s{sT}, s{sPAIR}
s_lshl_b32 s{sTB}, s{sTB}, 2
s_add_u32 s{sTB}, s{sTB}, s{sW4}          ; tokblk32 = U
s_lshl_b32 s{sNS}, s{sT}, 1
s_add_u32 s{sNS}, s{sNS}, 2
v_lshlrev_b32 v{vL16}, 4, v0
; W dma voffset: (l/16)*8192 + ((l%16) ^ ((l/16)<<2))*16
v_lshrrev_b32 v{T}, 4, v0
v_and_b32 v{T+1}, 15, v0
v_lshlrev_b32 v{T+2}, 2, v{T}
v_xor_b32 v{vWD}, v{T+1}, v{T+2}
v_lshlrev_b32 v{vWD}, 4, v{vWD}
v_lshl_add_u32 v{vWD}, v{T}, 13, v{vWD}
s_mov_b32 s{S_WQ+2}, {4*MB}
s_mov_b32 s{S_WQ+3}, 0x20000
s_mov_b32 s{S_KV+2}, {32*MB}
s_mov_b32 s{S_KV+3}, 0x20000
s_lshl_b32 s{sXB}, s{sTB}, 15
s_lshl_b32 s{sM0}, s{sW}, 12
s_lshl_b32 s{sM1}, s{sW}, 17              ; rows: wave*16*8192
s_lshl_b32 s{sT}, s{sHEAD}, 8
s_add_u32 s{sM1}, s{sM1}, s{sT}
s_waitcnt lgkmcnt(0)
""")
    srd(A, S_XH, S_KV, 2*MB, WS_XH)
    def loadX(ks):
        r = XR + (ks % 16)*4
        return [f"s_add_u32 s{sT2}, s{sXB}, {(ks // 4)*4096}",
                f"buffer_load_dwordx4 v[{r}:{r+3}], v{vL16}, s[{S_XH}:{S_XH+3}], s{sT2} offen offset:{(ks % 4)*1024} ;@X{ks}"]
    def dmaWq(q, m):
        return [f"s_add_u32 m0, s{sM0}, {q*32768 + m*1024}",
                f"s_add_u32 s{sT}, s{sM1}, {q*128*8192 + m*4*8192}",
                f"buffer_load_dwordx4 v{vWD}, s[{S_WQ}:{S_WQ+3}], s{sT} offen lds ;@WQ{q}"]
    for m in range(4): A.extend(dmaWq(0, m))
    for ks in range(4): A.extend(loadX(ks))
    for m in range(4): A.extend(dmaWq(1, m))
    for ks in range(4, 10): A.extend(loadX(ks))
    A(f"""
; W tr read addr: h=l/32, half16=(l/16)&1, r=(l%16)/4, c=l%4: (8h+r)*256 + r*64 + 32(c>>1) + 16 half16 + 8(c&1)
v_lshrrev_b32 v{T+2}, 2, v{T+1}           ; r
v_lshrrev_b32 v{T+3}, 5, v0               ; h
v_lshl_add_u32 v{vWR}, v{T+3}, 3, v{T+2}
v_lshlrev_b32 v{vWR}, 8, v{vWR}
v_lshl_add_u32 v{vWR}, v{T+2}, 6, v{vWR}
v_and_b32 v{T+4}, 2, v0
v_lshl_add_u32 v{vWR}, v{T+4}, 4, v{vWR}
v_and_b32 v{T+4}, 1, v0
v_lshl_add_u32 v{vWR}, v{T+4}, 3, v{vWR}
v_and_b32 v{T+4}, 1, v{T}
v_lshl_add_u32 v{vWR}, v{T+4}, 4, v{vWR}
v_xor_b32 v{vWR+1}, 64, v{vWR}
v_xor_b32 v{vWR+2}, 128, v{vWR}
v_xor_b32 v{vWR+3}, 192, v{vWR}
v_and_b32 v{vMSK}, 31, v0
v_lshlrev_b32 v{T+4}, 2, v{T+3}
v_sub_u32 v{vMSK}, v{vMSK}, v{T+4}        ; q_local - 4h
v_mov_b32 v{vNINF}, 0xff800000
v_and_b32 v{vWOD}, 0xff, v{vWD}
v_lshl_add_u32 v{vWOD}, v{T}, 10, v{vWOD}
s_mov_b32 s{S_WO+2}, {4*MB}
s_mov_b32 s{S_WO+3}, 0x20000
s_lshr_b32 s{sT}, s{sHEAD}, 2
s_lshl_b32 s{sWOB}, s{sT}, 19             ; k rows x*512
s_and_b32 s{sT}, s{sHEAD}, 3
s_lshl_b32 s{sT}, s{sT}, 8
s_add_u32 s{sWOB}, s{sWOB}, s{sT}
s_lshl_b32 s{sT}, s{sW4}, 14
s_add_u32 s{sWOB}, s{sWOB}, s{sT}         ; + loader wave's 16 rows
v_mov_b32 v{vFLG}, {LDS_FLAG}
v_mov_b32 v{vF}, 0
ds_write_b32 v{vFLG}, v{vF}
s_mov_b32 s{sTHR}, 0x44800000             ; 1024.0
s_mov_b32 s{sLIM}, 0x4e800000             ; 2^30
s_mov_b32 s{sREDO}, 0
s_sub_u32 s{sFAST}, s{sTB}, 1
s_lshr_b32 s{sFAST}, s{sFAST}, 1
s_cmp_eq_u32 s{sTB}, 0
s_cselect_b32 s{sFAST}, 0, s{sFAST}       ; floor((U-1)/2)
""")
    srd(A, S_CTX, S_KV, 16*MB, WS_CTX)
    def dma_init():
        return [f"s_lshl_b32 s{sDK}, s{sHEAD}, 19", f"s_lshl_b32 s{sDM0}, s{sW4}, 12", f"s_add_u32 s{sDK}, s{sDK}, s{sDM0}",
                f"s_add_u32 s{sDK}, s{sDK}, 8192", f"s_mov_b32 s{sDJ}, 0"]
    A.extend(dma_init())
    def stage_parts():
        it = []
        for m in range(4):
            pre = [f"s_mov_b32 m0, s{sDM0}", f"s_add_u32 s{sT2}, s{sDK}, {16*MB - 8192}"] if m == 0 else []
            it.append(pre + [f"buffer_load_dwordx4 v{vL16}, s[{S_KV}:{S_KV+3}], s{sDK} offen offset:{m*1024} lds ;@cond"])
        for m in range(4):
            pre = [f"s_add_u32 m0, s{sDM0}, 16384", f"s_add_u32 s{sDJ}, s{sDJ}, 1"] if m == 0 else []
            post = [f"s_add_u32 s{sDK}, s{sDK}, 16384", f"s_add_u32 s{sDM0}, s{sDM0}, 32768", f"s_and_b32 s{sDM0}, s{sDM0}, 0x1ffff"] if m == 3 else []
            it.append(pre + [f"buffer_load_dwordx4 v{vL16}, s[{S_KV}:{S_KV+3}], s{sT2} offen offset:{m*1024} lds ;@cond"] + post)
        return it
    def wo_parts():
        out = [f"s_sub_u32 s{sT}, s{sDJ}, s{sNS}", f"s_lshl_b32 s{sT}, s{sT}, 17", f"s_add_u32 s{sT}, s{sT}, s{sWOB}"]
        for m in range(8):
            out += [f"s_add_u32 m0, s{sDM0}, {(m // 4)*16384 + (m % 4)*1024}", f"s_add_u32 s{sT2}, s{sT}, {(m // 4)*65536 + (m % 4)*4096}",
                    f"buffer_load_dwordx4 v{vWOD}, s[{S_WO}:{S_WO+3}], s{sT2} offen lds ;@cond"]
        out += [f"s_add_u32 s{sDJ}, s{sDJ}, 1", f"s_add_u32 s{sDM0}, s{sDM0}, 32768", f"s_and_b32 s{sDM0}, s{sDM0}, 0x1ffff"]
        return out
    def stage_dma(early=False):
        lab = A.newlabel("k2_nodma")
        if early:
            return [f"s_cmp_eq_u32 s{sG}, 0", f"s_cbranch_scc1 {lab}"] + flat(stage_parts()) + [lab + ":"]
        return [f"s_cmp_eq_u32 s{sG}, 0", f"s_cbranch_scc1 {lab}", f"s_call_b64 s[{sRET}:{sRET+1}], k2_stage", lab + ":"]
    dmaK0 = [f"s_lshl_b32 s{sT}, s{sW}, 10", f"s_add_u32 m0, s{sT}, {LDS_K0}", f"s_lshl_b32 s{sT2}, s{sHEAD}, 19",
             f"s_add_u32 s{sT2}, s{sT2}, s{sT}",
             f"buffer_load_dwordx4 v{vL16}, s[{S_KV}:{S_KV+3}], s{sT2} offen lds ;@K0"]

    def readWq(ks, dbs):
        out = []
        for db in dbs:
            for rd in range(2):
                r = WFR + (ks % 2)*16 + db*4 + rd*2
                out.append(f"ds_read_b64_tr_b16 v[{r}:{r+1}], v{vWR+db} offset:{(ks % 16)*4096 + rd*1024} ;@RW{ks}_{db}")
        return out
    queue = [("x", 10), ("x", 11), ("w", 2, 0), ("w", 2, 1), ("x", 12), ("x", 13), ("w", 2, 2), ("w", 2, 3), ("x", 14), ("x", 15),
             ("x", 16), ("x", 17), ("w", 3, 0), ("x", 18), ("w", 3, 1), ("x", 19), ("w", 3, 2), ("x", 20), ("w", 3, 3), ("x", 21), ("k",)]
    queue += [("x", n) for n in range(22, 32)]
    A("@wait vm WQ0\ns_barrier")
    stamp(A, 1)
    A.extend(readWq(0, range(4)))
    for ks in range(32):
        pre = []
        if ks % 8 == 7 and ks < 31:
            q = (ks + 1) // 8
            pre += [f"@wait vm WQ{q}", "s_barrier"]
            if q >= 2: pre += stage_dma(True)
        if ks == 27:
            pre += ["@wait vm K0", f"s_cmp_eq_u32 s{sG}, 0", "s_cbranch_scc1 k2_b0", "s_waitcnt vmcnt(8)", "k2_b0:", "s_barrier"] + stage_dma(True)
        if ks == 15:
            pre += [f"v_add_u32 v{vWR+db}, 0x10000, v{vWR+db}" for db in range(4)]
        pre.append(f"@wait vm X{ks}")
        x = XR + (ks % 16)*4
        mf = []
        for db in range(4):
            w = WFR + (ks % 2)*16 + db*4
            cin = "0" if ks == 0 else v(O + db*16, 16)
            mf.append([f"@wait lgkm RW{ks}_{db}", f"{M32} {v(O+db*16,16)}, {v(w,4)}, {v(x,4)}, {cin}"])
        fills = {0: [], 1: [], 2: [], 3: []}
        if ks < 31:
            for db in range(4): fills[min(db, 2)] += readWq(ks + 1, [db])
        for slot in (1, 3):
            if queue and not (queue[0][0] == "x" and queue[0][1] - 15 > ks):
                it = queue.pop(0)
                fills[slot] += loadX(it[1]) if it[0] == "x" else dmaWq(it[1], it[2]) if it[0] == "w" else dmaK0
        A.extend(pre)
        A.extend(gaps(mf, fills))
    assert not queue
    stamp(A, 2)
    A(f"""
s_cmp_lg_u32 s{sG}, 0
s_cbranch_scc1 k2_nopf
s_lshl_b32 s{sT}, s2, 2
s_add_u32 s{sT}, s{sT}, s{sW4}
s_lshl_b32 s{sT2}, s{sW4}, 12
s_add_u32 m0, s{sT2}, {LDS_PF}
s_lshl_b32 s{sT2}, s{sT}, 12
s_lshl_b32 s{sT}, s{sT}, 11
""")
    srd(A, S_PF, S_WO, 4*MB)
    for m in range(4): A(f"buffer_load_dwordx4 v{vL16}, s[{S_PF}:{S_PF+3}], s{sT2} offen offset:{m*1024} lds ;@cond")
    for base in (68, 70, 72):
        srd(A, S_PF, base, 512*1376*2)
        for m in range(2): A(f"buffer_load_dwordx4 v{vL16}, s[{S_PF}:{S_PF+3}], s{sT} offen offset:{m*1024} lds ;@cond")
    A.label("k2_nopf")
    A("s_nop 3")
    for db in range(4):
        for r in range(8): A(f"v_cvt_pk_bf16_f32 v{QF+db*8+r}, v{O+db*16+2*r}, v{O+db*16+2*r+1}")
    A.label("k2_att")
    A(f"v_add_u32 v{vCUR}, {LDS_K0}, v{vL16}")
    for i in range(8): A(f"ds_read_b128 {v(FR+4*i,4)}, v{vCUR} offset:{i*1024} ;@K0_{i}")
    A(f"s_mov_b32 s{sR}, s{sTB}\ns_mov_b64 s[60:61], 0")
    for r in range(16): A(f"v_mov_b32 v{NEGM+r}, 0")
    def apply_mask():
        out = []
        for r in range(16):
            out.append(f"v_cmp_gt_i32 s[{52+2*(r%4)}:{53+2*(r%4)}], {8*(r//4) + r % 4}, v{vMSK}")
            if r % 4 == 3:
                for rr in range(r - 3, r + 1):
                    out.append(f"v_cndmask_b32 v{NEGM+rr}, v{NEGM+rr}, v{vNINF}, s[{52+2*(rr%4)}:{53+2*(rr%4)}]")
        return out
    A(f"s_cmp_lg_u32 s{sR}, 0\ns_cbranch_scc1 k2_nomask0")
    A.extend(apply_mask())
    A.label("k2_nomask0")
    A("s_nop 1")
    mf = []
    for i in range(8):
        cin = v(NEGM, 16) if i == 0 else v(S, 16)
        mf.append([f"@wait lgkm K0_{i}", f"{M32} {v(S,16)}, {v(FR+4*i,4)}, {v(QF+4*i,4)}, {cin}"])
    zero = [f"v_mov_b32 v{O+r}, 0" for r in range(64)]
    A.extend(gaps(mf, {i: zero[i*7:(i+1)*7] for i in range(7)} | {7: zero[49:]}))
    A(f"v_mov_b32 v{vL}, 0\nv_mov_b32 v{vCUR}, v{vL16}\ns_mov_b32 s{sSLOT}, 0")
    D = 6
    def fragoff(i):
        part, k = i // 8, i % 8
        if part == 0: return k*1024
        if part == 2: return 8192 + k*1024
        vb = 16384 + (part // 2)*8192
        return vb + ((k % 4)*2 + k // 4)*1024
    def rdfrag(i, addr):
        return f"ds_read_b128 {v(FR+4*(i%8),4)}, v{addr} offset:{fragoff(i % 32)} ;@F{i % 32}"
    for i in range(D): A(rdfrag(i, vCUR))
    def rowmax(p, dst):
        s0 = S + 16*p
        out = [f"v_max3_f32 v{dst}, v{s0}, v{s0+1}, v{s0+2}"]
        for r in range(3, 15, 2): out.append(f"v_max3_f32 v{dst}, v{dst}, v{s0+r}, v{s0+r+1}")
        out += [f"v_max_f32 v{dst}, v{dst}, v{s0+15}", f"v_mov_b32 v{vF}, v{dst}", "s_nop 1",
                f"v_permlane32_swap_b32 v{vF}, v{dst}", "s_nop 0", f"v_max_f32 v{dst}, v{dst}, v{vF}"]
        return out
    A.extend(rowmax(0, vDEL))
    for r in range(16): A(f"v_sub_f32 v{NEGM+r}, v{NEGM+r}, v{vDEL}")
    for r in range(16): A(f"v_sub_f32 v{S+r}, v{S+r}, v{vDEL}")
    def sm_elem(p, e):
        s0 = S + 16*p; pp = P + 8*p
        out = [f"v_exp_f32 v{T + e % 4}, v{s0+e}"]
        k = e % 8
        if k >= 1:
            pe = e - 1
            if k == 2: out.append(f"v_add_f32 v{vTS}, v{T + (e-2) % 4}, v{T + pe % 4}")
            elif k > 2: out.append(f"v_add_f32 v{vTS}, v{vTS}, v{T + pe % 4}")
            if pe % 2 == 1: out.append(f"v_cvt_pk_bf16_f32 v{pp + pe//2}, v{T + (pe-1) % 4}, v{T + pe % 4}")
        return out
    slow_sites = []
    def sm_fin(p, unit, site=None):
        pp = P + 8*p; e = unit*8 + 7
        out = [f"v_add_f32 v{vTS}, v{vTS}, v{T + e % 4}",
               f"v_cvt_pk_bf16_f32 v{pp + e//2}, v{T + (e-1) % 4}, v{T + e % 4}"]
        if site:
            lab = f"k2_slow_{site}"; ret = f"k2_ret_{site}"
            slow_sites.append((p, unit, lab, ret))
            out += [f"v_cmp_lt_f32 vcc, s{sTHR}, v{vTS}", f"s_cbranch_vccnz {lab}", ret + ":"]
        return out + [f"v_add_f32 v{vL}, v{vL}, v{vTS}"]
    for e in range(4): A.extend(sm_elem(0, e))
    stamp(A, 3)
    A(f"""
s_cmp_eq_u32 s{sFAST}, 0
s_cbranch_scc1 k2_loop
s_lshl_b32 s{sT}, s{sFAST}, 1
s_sub_u32 s{sR}, s{sR}, s{sT}
s_mov_b32 s{sJ}, s{sFAST}
s_cmp_eq_u32 s{sG}, 0
s_cbranch_scc1 k2_fast0
s_branch k2_fast1
""")
    def step_mf(p):
        base = 16*p
        mf = []
        for i in range(8):
            cin = v(NEGM, 16) if i == 0 else v(S + 16*(1-p), 16)
            mf.append(f"{M32} {v(S+16*(1-p),16)}, {v(FR+4*((base+i)%8),4)}, {v(QF+4*i,4)}, {cin}")
        for i in range(8):
            sp, db = i // 4, i % 4
            mf.append(f"{M32} {v(O+16*db,16)}, {v(FR+4*((base+8+i)%8),4)}, {v(P+8*p+4*sp,4)}, {v(O+16*db,16)}")
        for i in range(0, 16, 2): mf[i] = [f"@wait lgkm F{base+i+1}", mf[i]]
        return mf
    slot_adv = [f"s_add_u32 s{sSLOT}, s{sSLOT}, 32768", f"s_and_b32 s{sSLOT}, s{sSLOT}, 0x1ffff"]
    for grp in range(2):
        A(".p2align 6")
        A(f"@loop_begin fast{grp}")
        A.label(f"k2_fast{grp}")
        for p in range(2):
            base = 16*p
            mf = step_mf(p); fills = {i: [] for i in range(16)}
            for i in range(16):
                nxt = base + i + D
                if p == 1 and nxt == 32:
                    fills[i] += (["s_waitcnt vmcnt(8)"] if grp == 1 else []) + ["s_barrier"]
                fills[i].append(rdfrag(nxt, vCUR))
            for g in range(4): fills[g] += sm_elem(p, 4 + g)
            fills[4] += sm_fin(p, 0) + sm_elem(p, 8)
            if p == 0:
                for g in range(5, 11): fills[g] += sm_elem(p, 4 + g)
                fills[5] += slot_adv
                fills[10] += sm_elem(p, 15)[:1]
                fills[11] += sm_elem(p, 15)[1:] + sm_fin(p, 1)
                for g in range(12, 16): fills[g] += sm_elem(1 - p, g - 12)
            else:
                fills[5] += sm_elem(p, 9) + sm_elem(p, 10)
                for g in range(6, 10): fills[g] += sm_elem(p, 5 + g)
                fills[9] += [f"v_add_u32 v{vCUR}, s{sSLOT}, v{vL16}"]
                fills[11] += sm_elem(p, 15) + ["s_nop 0"] + sm_fin(p, 1)
                fills[12] += sm_elem(0, 0) + sm_elem(0, 1)
                fills[13] += sm_elem(0, 2)
                fills[14] += sm_elem(0, 3)
                if grp == 1:
                    sp_ = stage_parts()
                    for k, it in enumerate(sp_): fills[11 + k // 2] += it
                fills[14] += [f"s_sub_u32 s{sJ}, s{sJ}, 1", f"s_cmp_lg_u32 s{sJ}, 0"]
                fills[15] += [f"s_cbranch_scc1 k2_fast{grp}"]
            body = gaps(mf, fills)
            if "halfds" in ABL: body = [x for x in body if not (x.startswith("ds_read") and int(x.split(";@F")[1]) % 2 == 0)]
            if "nods" in ABL: body = [x for x in body if not x.startswith("ds_read") and not x.startswith("@wait")]
            if "novalu" in ABL: body = [x for x in body if not x.startswith(("v_exp", "v_add_f32", "v_cvt"))]
            if "noexp" in ABL: body = [x.replace("v_exp_f32", "v_mov_b32") for x in body]
            if "noadd" in ABL: body = [x for x in body if not x.startswith("v_add_f32")]
            if "nodma" in ABL: body = [x for x in body if not x.startswith("buffer_load")]
            A.extend(body)
        A(f"@loop_end fast{grp}")
        A(f"v_cmp_nge_f32 s[60:61], s{sLIM}, v{vL}")
        A("s_branch k2_loop")
    def step_ctl(p):
        return [f"s_cmp_lt_u32 s{sR}, 2", f"s_cbranch_scc1 k2_special{p}", f"k2_back{p}:", f"s_sub_u32 s{sR}, s{sR}, 1"]
    A("@loop_begin kv")
    A.label("k2_loop")
    A.extend(step_ctl(0))
    for p in range(2):
        base = 16*p
        mf = step_mf(p); fills = {i: [] for i in range(16)}
        for i in range(16):
            nxt = base + i + D
            if p == 1 and nxt == 32:
                fills[i] += ["s_waitcnt vmcnt(8)", "s_barrier"] + slot_adv + [f"v_add_u32 v{vCUR}, s{sSLOT}, v{vL16}"]
            fills[i].append(rdfrag(nxt, vCUR))
        for g in range(4): fills[g] += sm_elem(p, 4 + g)
        fills[4] = sm_fin(p, 0, f"f{p}0") + fills[4] + sm_elem(p, 8)
        for g in range(5, 12): fills[g] += sm_elem(p, 4 + g)
        fills[11] += ["s_nop 0"] + sm_fin(p, 1, f"f{p}1")
        for g in range(12, 16): fills[g] += sm_elem(1 - p, g - 12)
        if p == 1:
            fills[12] += stage_dma()
            fills[15] += ["s_branch k2_loop"]
        else:
            fills[15] += step_ctl(1)
        A.extend(gaps(mf, fills))
    A("@loop_end kv")
    for p in range(2):
        A.label(f"k2_special{p}")
        A(f"s_cmp_eq_u32 s{sR}, 0\ns_cbranch_scc1 k2_tail{p}")
        A.extend(apply_mask())
        A(f"s_nop 1\ns_branch k2_back{p}")
    for p in range(2):
        A.label(f"k2_tail{p}")
        for i in range(8):
            A(f"ds_read_b128 {v(FR+4*i,4)}, v{vCUR} offset:{fragoff(16*p + 8 + i)} ;@TV{p}_{i}")
        for e in range(4, 8): A.extend(sm_elem(p, e))
        A("s_nop 0")
        A.extend(sm_fin(p, 0, f"t{p}0"))
        mf = []; fills = {i: [] for i in range(8)}
        for i in range(8):
            sp, db = i // 4, i % 4
            mf.append([f"@wait lgkm TV{p}_{i}", f"{M32} {v(O+16*db,16)}, {v(FR+4*i,4)}, {v(P+8*p+4*sp,4)}, {v(O+16*db,16)}"])
        for g in range(4): fills[g] += sm_elem(p, 8 + 2*g) + sm_elem(p, 9 + 2*g)
        fills[3] += ["s_nop 0"] + sm_fin(p, 1, f"t{p}1")
        A.extend(gaps(mf, fills))
        if p == 0: A("s_branch k2_done")
    A.label("k2_done")
    stamp(A, 4)
    A(f"""
s_lshr_b32 s{sJ}, s{sTB}, 1
s_add_u32 s{sJ}, s{sJ}, 1
s_cmp_ge_u32 s{sJ}, s{sNS}
s_cbranch_scc1 k2_epi
s_waitcnt vmcnt(8)
s_barrier
""")
    A.extend(stage_dma())
    A.label("k2_epi")
    A(f"""
v_mov_b32 v{vF}, v{vL}
s_nop 1
v_permlane32_swap_b32 v{vF}, v{vL}
s_nop 0
v_add_f32 v{vL}, v{vL}, v{vF}
v_rcp_f32 v{vL}, v{vL}
s_cmp_eq_u64 s[60:61], {"0" if not (ABL & {"halfds", "nods", "novalu", "noexp", "noadd", "nodma"}) else "s[60:61]"}
s_cbranch_scc1 k2_noflag
v_mov_b32 v{vF}, 1
ds_write_b32 v{vFLG}, v{vF}
k2_noflag:
s_lshl_b32 s{sT}, s{sTB}, 18
s_lshl_b32 s{sT2}, s{sHEAD}, 13
s_add_u32 s{sXB}, s{sT}, s{sT2}
s_add_u32 s{sM1}, s{sXB}, 4096
s_nop 2
""")
    for db in range(4):
        for sp in range(2):
            o = O + db*16 + sp*8; d = FR + (db*2 + sp)*4
            for r in range(8): A(f"v_mul_f32 v{o+r}, v{o+r}, v{vL}")
            for r in range(4): A(f"v_cvt_pk_bf16_f32 v{d+r}, v{o+2*r}, v{o+2*r+1}")
            A(f"buffer_store_dwordx4 {v(d,4)}, v{vL16}, s[{S_CTX}:{S_CTX+3}], s{sXB if db < 2 else sM1} offen offset:{((db % 2)*2 + sp)*1024} sc1")
    A.label("k2_idle")
    A(f"""
s_add_u32 s{sJ}, s{sJ}, 1
s_cmp_ge_u32 s{sJ}, s{sNS}
s_cbranch_scc1 k2_vote
s_waitcnt vmcnt(8)
s_barrier
""")
    A.extend(stage_dma())
    A("s_branch k2_idle")
    A.label("k2_vote")
    A(f"""
s_waitcnt vmcnt(0) lgkmcnt(0)
s_barrier
s_cmp_lg_u32 s{sREDO}, 0
s_cbranch_scc1 k2_p3
ds_read_b32 v{vF}, v{vFLG}
s_waitcnt lgkmcnt(0)
v_readfirstlane_b32 s{sT}, v{vF}
s_cmp_eq_u32 s{sT}, 0
s_cbranch_scc1 k2_p3
s_mov_b32 s{sREDO}, 1
s_mov_b32 s{sFAST}, 0
""")
    A.extend(dma_init())
    A.extend(stage_dma()); A.extend(stage_dma())
    A("s_waitcnt vmcnt(8)\ns_barrier")
    A.extend(stage_dma())
    A("s_branch k2_att")
    A.label("k2_p3")
    stamp(A, 5)
    srd(A, S_CNT, S_KV, 32768, WS_CNT)
    A(f"""
s_lshr_b32 s{sT}, s{sHEAD}, 2
s_lshl_b32 s{sT}, s{sT}, 3
s_add_u32 s{sT}, s{sT}, s{sPAIR}
s_lshl_b32 s{sJ}, s{sT}, 7
v_mov_b32 v{vTS}, 0
v_mov_b32 v{vF}, 1
s_cmp_lg_u32 s{sW}, 0
s_cbranch_scc1 k2_nosig
s_mov_b64 exec, 1
buffer_atomic_add v{vF}, v{vTS}, s[{S_CNT}:{S_CNT+3}], s{sJ} offen sc1
s_mov_b64 exec, -1
k2_nosig:
""")
    A.extend(stage_dma()); A.extend(stage_dma())
    A(f"""
v_and_b32 v{T}, 15, v0
v_lshrrev_b32 v{T}, 2, v{T}               ; r
v_lshrrev_b32 v{T+1}, 5, v0               ; h
v_lshl_add_u32 v{vWR}, v{T+1}, 2, v{T}
v_lshlrev_b32 v{vWR}, 8, v{vWR}
v_lshl_add_u32 v{vWR}, v{T}, 6, v{vWR}
v_and_b32 v{T+2}, 16, v0
v_lshl_add_u32 v{vWR}, v{T+2}, 1, v{vWR}
v_and_b32 v{T+2}, 3, v0
v_lshl_add_u32 v{vWR}, v{T+2}, 3, v{vWR}
s_and_b32 s{sT}, s{sNS}, 2
s_lshl_b32 s{sT}, s{sT}, 15
v_add_u32 v{vWR}, s{sT}, v{vWR}
v_xor_b32 v{vWR+1}, 64, v{vWR}
v_xor_b32 v{vWR+2}, 128, v{vWR}
v_xor_b32 v{vWR+3}, 192, v{vWR}
s_lshl_b32 s{sXB}, s{sTB}, 18
s_lshr_b32 s{sT}, s{sHEAD}, 2
s_lshl_b32 s{sT}, s{sT}, 15
s_add_u32 s{sXB}, s{sXB}, s{sT}
s_cmp_lg_u32 s{sW}, 0
s_cbranch_scc1 k2_polled
s_mov_b32 s{sT2}, 0x40000
k2_poll:
buffer_load_dword v{vF}, v{vTS}, s[{S_CNT}:{S_CNT+3}], s{sJ} offen sc1 ;@cond
s_waitcnt vmcnt(0)
v_readfirstlane_b32 s{sT}, v{vF}
s_sub_u32 s{sT2}, s{sT2}, 1
s_cbranch_scc1 k2_polled
s_cmp_lt_u32 s{sT}, 4
s_cbranch_scc1 k2_poll
k2_polled:
s_barrier
""")
    def loadC(ks):
        r = XR + (ks % 16)*4
        return [f"s_add_u32 s{sT2}, s{sXB}, {(ks // 4)*4096}",
                f"buffer_load_dwordx4 v[{r}:{r+3}], v{vL16}, s[{S_CTX}:{S_CTX+3}], s{sT2} offen offset:{(ks % 4)*1024} sc1 ;@C{ks}"]
    def readWo(ks, dbs):
        out = []
        for db in dbs:
            for rd in range(2):
                r = WFR + (ks % 2)*16 + db*4 + rd*2
                out.append(f"ds_read_b64_tr_b16 v[{r}:{r+1}], v{vWR+db} offset:{(ks % 16)*4096 + rd*2048} ;@RO{ks}_{db}")
        return out
    for ks in range(12): A.extend(loadC(ks))
    A.extend(readWo(0, range(4)))
    srd(A, S_PF, S_KV, 16*MB, WS_PART)
    nxt = 12
    for ks in range(32):
        pre = []
        if ks == 15:
            pre += ["s_barrier"] + [f"v_xor_b32 v{vWR+db}, 0x10000, v{vWR+db}" for db in range(4)]
        pre.append(f"@wait vm C{ks}")
        x = XR + (ks % 16)*4
        mf = []
        for db in range(4):
            w = WFR + (ks % 2)*16 + db*4
            cin = "0" if ks == 0 else v(O + db*16, 16)
            mf.append([f"@wait lgkm RO{ks}_{db}", f"{M32} {v(O+db*16,16)}, {v(w,4)}, {v(x,4)}, {cin}"])
        fills = {0: [], 1: [], 2: [], 3: []}
        if ks < 31:
            for db in range(4): fills[min(db, 2)] += readWo(ks + 1, [db])
        for slot in (1, 3):
            if nxt < 32 and nxt - 15 <= ks:
                fills[slot] += loadC(nxt); nxt += 1
        A.extend(pre)
        A.extend(gaps(mf, fills))
    A(f"""
s_lshr_b32 s{sT}, s{sHEAD}, 2
s_lshl_b32 s{sT}, s{sT}, 21
s_lshl_b32 s{sT2}, s{sTB}, 15
s_add_u32 s{sT}, s{sT}, s{sT2}
s_and_b32 s{sT2}, s{sHEAD}, 3
s_lshl_b32 s{sT2}, s{sT2}, 13
s_add_u32 s{sT}, s{sT}, s{sT2}
s_add_u32 s{sT2}, s{sT}, 4096
s_nop 1
""")
    for db in range(4):
        for sp in range(2):
            o = O + db*16 + sp*8; d = QF + (db*2 + sp)*4
            for r in range(4): A(f"v_cvt_pk_bf16_f32 v{d+r}, v{o+2*r}, v{o+2*r+1}")
            A(f"buffer_store_dwordx4 {v(d,4)}, v{vL16}, s[{S_PF}:{S_PF+3}], s{sT if db < 2 else sT2} offen offset:{((db % 2)*2 + sp)*1024} sc1")
    A("s_branch k2_fin")
    A.label("k2_stage")
    A(f"s_cmp_ge_u32 s{sDJ}, s{sNS}\ns_cbranch_scc1 k2_stage_wo")
    A.extend(flat(stage_parts()))
    A(f"s_setpc_b64 s[{sRET}:{sRET+1}]")
    A.label("k2_stage_wo")
    A.extend(wo_parts())
    A(f"s_setpc_b64 s[{sRET}:{sRET+1}]")
    for (p, unit, lab, ret) in slow_sites:
        A.label(lab)
        A("s_nop 7\ns_nop 7")
        A.extend(rowmax(p, vDEL))
        A(f"s_call_b64 s[{sRET}:{sRET+1}], k2_rescale")
        for e in range(unit*8, unit*8 + 8): A.extend(sm_elem(p, e))
        A("s_nop 0")
        e = unit*8 + 7
        A(f"v_add_f32 v{vTS}, v{vTS}, v{T + e % 4}")
        A(f"v_cvt_pk_bf16_f32 v{P + 8*p + e//2}, v{T + (e-1) % 4}, v{T + e % 4}")
        A(f"s_nop 1\ns_branch {ret}")
    A.label("k2_rescale")
    A(f"""
v_max_f32 v{vDEL}, 0, v{vDEL}
v_sub_f32 v{vF}, 0, v{vDEL}
v_exp_f32 v{vF}, v{vF}
""")
    for r in range(32): A(f"v_sub_f32 v{S+r}, v{S+r}, v{vDEL}")
    for r in range(16): A(f"v_sub_f32 v{NEGM+r}, v{NEGM+r}, v{vDEL}")
    for r in range(64): A(f"v_mul_f32 v{O+r}, v{O+r}, v{vF}")
    A(f"v_mul_f32 v{vL}, v{vL}, v{vF}\ns_nop 1\ns_setpc_b64 s[{sRET}:{sRET+1}]")
    A.label("k2_fin")
    stamp_flush(A, 1, 7, sW)
    A.label(f"{name}_end")
    A("s_endpgm")
    A.lines = resolve_waits(A.lines)
    return name, A, desc(name, 256, 256), (256, 512, 160*1024)

def k35(which):
    A = Asm()
    name = f"k{which}_kernel"
    header(A, name)
    K3 = which == 3
    NSTEP = 32 if K3 else 11
    S_ACT, S_W, S_RES, S_MOD, S_O1, S_O2, S_ST, S_WG, S_WU, S_UB = 8, 12, 16, 20, 24, 28, 32, 36, 40, 44
    sW, sMT, sNT, sT, sT2, sAO, sWO, sLB, sCNT, sM0 = 48, 49, 50, 51, 52, 53, 54, 55, 56, 57
    vL16, vWD, vWR, vT, vT2, vT3, vTID = 1, 2, 3, 7, 8, 9, 10
    ACC, AF, WF = 16, 80, 160
    R = 4
    A(f"""
s_cmp_ge_u32 s2, 256
s_cbranch_scc1 {name}_end
""")
    stamp(A, 0)
    A(f"""
s_load_dwordx2 s[64:65], s[0:1], {ARG['wo'] if K3 else ARG['wd']}
s_load_dwordx2 s[66:67], s[0:1], 112
s_load_dwordx2 s[68:69], s[0:1], {ARG['x'] if K3 else ARG['out']}
s_load_dwordx4 s[72:75], s[0:1], {ARG['wg']}
v_mov_b32 v{vTID}, v0
v_lshrrev_b32 v1, 6, v0
v_and_b32 v0, 63, v0
s_and_b32 s{sT}, s2, 7
v_readfirstlane_b32 s{sW}, v1
s_lshr_b32 s{sT2}, s2, 3
s_and_b32 s{sNT}, s{sT2}, 7
s_lshr_b32 s{sT2}, s{sT2}, 3
s_lshl_b32 s{sMT}, s{sT}, 2
s_add_u32 s{sMT}, s{sMT}, s{sT2}
v_lshlrev_b32 v{vL16}, 4, v0
; W dma voffset: (l/8)*1024 + ((l%8) ^ ((l>>4)<<1))*16
v_lshrrev_b32 v{vT}, 3, v0
v_and_b32 v{vT2}, 7, v0
v_lshrrev_b32 v{vT3}, 4, v0
v_lshlrev_b32 v{vWD}, 1, v{vT3}
v_xor_b32 v{vWD}, v{vWD}, v{vT2}
v_lshlrev_b32 v{vWD}, 4, v{vWD}
v_lshl_add_u32 v{vWD}, v{vT}, 10, v{vWD}
; tr read addr: g=l/16, r=(l%16)/4, c=l%4: row=16(g>>1)+4(g&1)+r ; swz=((row>>1)&3) ; addr=row*128 + swz*32 + c*8 + wave*ring
v_and_b32 v{vT}, 15, v0
v_lshrrev_b32 v{vT}, 2, v{vT}             ; r
v_and_b32 v{vT2}, 1, v{vT3}
v_lshl_add_u32 v{vT}, v{vT2}, 2, v{vT}    ; 4(g&1)+r
v_lshrrev_b32 v{vT2}, 1, v{vT}            ; swz
v_lshrrev_b32 v{vT3}, 1, v{vT3}
v_lshl_add_u32 v{vT}, v{vT3}, 4, v{vT}    ; row
v_lshlrev_b32 v{vWR}, 7, v{vT}
v_lshl_add_u32 v{vWR}, v{vT2}, 5, v{vWR}
v_and_b32 v{vT}, 3, v0
v_lshl_add_u32 v{vWR}, v{vT}, 3, v{vWR}
s_mul_i32 s{sLB}, s{sW}, {(R+1)*4096}
v_add_u32 v{vWR}, s{sLB}, v{vWR}
v_xor_b32 v{vWR+1}, 32, v{vWR}
v_xor_b32 v{vWR+2}, 64, v{vWR}
v_xor_b32 v{vWR+3}, 96, v{vWR}
s_waitcnt lgkmcnt(0)
""")
    if K3:
        srd(A, S_ACT, 66, 16*MB, WS_CTX); srd(A, S_W, 64, 4*MB); srd(A, S_RES, 68, 2*MB)
        srd(A, S_O1, 66, 2*MB, WS_X1); srd(A, S_O2, 66, 2*MB, WS_Y); srd(A, S_ST, 66, 131072, WS_STAT)
        srd(A, S_WG, 72, 512*1376*2); srd(A, S_WU, 74, 512*1376*2); srd(A, S_UB, 66, 2*1376*8, WS_UB)
        TSTR, KSTR = 131072, 1024
    else:
        srd(A, S_ACT, 66, 43*131072, WS_G); srd(A, S_W, 64, 1376*512*2); srd(A, S_RES, 66, 2*MB, WS_X1)
        srd(A, S_O1, 68, 2*MB)
        TSTR, KSTR = 1024, 131072
    srd(A, S_MOD, 66, 16384 + 6144, WS_MOD)
    A(f"""
s_mul_i32 s{sAO}, s{sMT}, {4*TSTR}
s_mul_i32 s{sT}, s{sW}, {NSTEP*KSTR}
s_add_u32 s{sAO}, s{sAO}, s{sT}
s_mul_i32 s{sWO}, s{sW}, {NSTEP*32*1024}
s_lshl_b32 s{sT}, s{sNT}, 7
s_add_u32 s{sWO}, s{sWO}, s{sT}
""")
    def issue(st):
        out = []
        slot = st % (R + 1)
        for m in range(4):
            out.append([f"s_add_u32 m0, s{sLB}, {slot*4096 + m*1024}",
                        f"s_add_u32 s{sT}, s{sWO}, {st*32768 + m*8192}",
                        f"buffer_load_dwordx4 v{vWD}, s[{S_W}:{S_W+3}], s{sT} offen lds ;@W{st}"])
        for T in range(4):
            r = AF + slot*16 + T*4
            out.append([f"s_add_u32 s{sT2}, s{sAO}, {st*KSTR + T*TSTR}",
                        f"buffer_load_dwordx4 v[{r}:{r+3}], v{vL16}, s[{S_ACT}:{S_ACT+3}], s{sT2} offen ;@A{st}"])
        return out
    def readW(st):
        out = []
        for t in range(4):
            for rd in range(2):
                r = WF + (st % 2)*16 + t*4 + rd*2
                out.append(f"ds_read_b64_tr_b16 v[{r}:{r+1}], v{vWR+t} offset:{(st % (R+1))*4096 + rd*1024} ;@RW{st}")
        return out
    def flat(x): return [y for z in x for y in (z if isinstance(z, list) else [z])]
    for st in range(R): A.extend(flat(issue(st)))
    A("@wait vm W0")
    stamp(A, 1)
    A.extend(readW(0))
    for st in range(NSTEP):
        mf = []
        for t in range(4):
            for T in range(4):
                d = ACC + (t*4 + T)*4
                cin = "0" if st == 0 else v(d, 4)
                mf.append(f"{M16} {v(d,4)}, {v(WF+(st%2)*16+t*4,4)}, {v(AF+(st%(R+1))*16+T*4,4)}, {cin}")
        fill = []
        if st + R < NSTEP: fill += issue(st + R)
        if st + 1 < NSTEP: fill += [f"@wait vm W{st+1}"] + readW(st + 1)
        A(f"@wait vm A{st} lgkm RW{st}")
        A.extend(interleave(mf, fill) if fill else mf)
    stamp(A, 2)
    RES, GA, SC = 80, 88, 96
    vRO, vMO, vRD, vWRr = 11, 12, 13, 14
    A(f"""
v_lshrrev_b32 v{vT}, 3, v{vTID}           ; token (0..31)
v_and_b32 v{vT2}, 7, v{vTID}
v_lshlrev_b32 v{vRO}, 10, v{vT}
v_lshl_add_u32 v{vRO}, v{vT2}, 4, v{vRO}
v_lshlrev_b32 v{vMO}, 5, v{vT2}
s_lshl_b32 s{sAO}, s{sMT}, 16
s_lshl_b32 s{sT}, s{sNT}, 7
s_add_u32 s{sAO}, s{sAO}, s{sT}
s_add_u32 s{sWO}, s{sAO}, 32768
s_lshl_b32 s{sT}, s{sNT}, 8
s_add_u32 s{sT2}, s{sT}, {(2 if K3 else 5)*2048}
v_lshrrev_b32 v{vT3}, 1, v{vT2}
v_lshlrev_b32 v{vRD}, 10, v{vT3}
v_lshl_add_u32 v{vRD}, v{vT}, 4, v{vRD}
v_and_b32 v{vT3}, 1, v{vT2}
v_lshl_add_u32 v{vRD}, v{vT3}, 3, v{vRD}
s_lshl_b32 s{sCNT}, s{sMT}, 16
s_lshl_b32 s{sM0}, s{sNT}, 12
s_add_u32 s{sCNT}, s{sCNT}, s{sM0}
s_add_u32 s{sM0}, s{sCNT}, 32768
buffer_load_dwordx2 v[{RES}:{RES+1}], v{vRD}, s[{S_RES}:{S_RES+3}], s{sCNT} offen
buffer_load_dwordx2 v[{RES+2}:{RES+3}], v{vRD}, s[{S_RES}:{S_RES+3}], s{sCNT} offen offset:512
buffer_load_dwordx2 v[{RES+4}:{RES+5}], v{vRD}, s[{S_RES}:{S_RES+3}], s{sM0} offen
buffer_load_dwordx2 v[{RES+6}:{RES+7}], v{vRD}, s[{S_RES}:{S_RES+3}], s{sM0} offen offset:512
buffer_load_dwordx4 v[{GA}:{GA+3}], v{vMO}, s[{S_MOD}:{S_MOD+3}], s{sT2} offen
buffer_load_dwordx4 v[{GA+4}:{GA+7}], v{vMO}, s[{S_MOD}:{S_MOD+3}], s{sT2} offen offset:16
""")
    if K3:
        A(f"""
s_add_u32 s{sT2}, s{sT}, {4*2048}
buffer_load_dwordx4 v[{SC}:{SC+3}], v{vMO}, s[{S_MOD}:{S_MOD+3}], s{sT2} offen
buffer_load_dwordx4 v[{SC+4}:{SC+7}], v{vMO}, s[{S_MOD}:{S_MOD+3}], s{sT2} offen offset:16
""")
    PITCH = 272; PART = 64*PITCH; RB = 4*(R+1)*4096
    A(f"""
v_and_b32 v{vT3}, 15, v0
v_mul_u32_u24 v{vWRr}, {PITCH}, v{vT3}
v_lshrrev_b32 v{vT3}, 4, v0
v_lshl_add_u32 v{vWRr}, v{vT3}, 4, v{vWRr}
s_mul_i32 s{sT}, s{sW}, {PART}
s_add_u32 s{sT}, s{sT}, {RB}
v_add_u32 v{vWRr}, s{sT}, v{vWRr}
v_mul_u32_u24 v{vRD}, {PITCH}, v{vT}
v_lshl_add_u32 v{vRD}, v{vT2}, 5, v{vRD}
v_add_u32 v{vRD}, {RB}, v{vRD}
""")
    for t in range(4):
        for T in range(4):
            A(f"ds_write_b128 v{vWRr}, {v(ACC+(t*4+T)*4,4)} offset:{T*16*PITCH + t*64}")
    A("s_waitcnt lgkmcnt(0)\ns_barrier")
    PR = 16
    for ps in range(2):
        for w in range(4):
            for hh in range(2):
                r = PR + (ps*4 + w)*8 + hh*4
                A(f"ds_read_b128 {v(r,4)}, v{vRD} offset:{w*PART + ps*32*PITCH + hh*16} ;@P{ps}")
    A("s_waitcnt vmcnt(0)")
    X = 104; Y = 120; ST = 136; TM = 140
    for ps in range(2):
        A(f"@wait lgkm P{ps}")
        b = PR + ps*32
        for j in range(8):
            A(f"v_add_f32 v{b+j}, v{b+j}, v{b+8+j}")
            A(f"v_add_f32 v{b+16+j}, v{b+16+j}, v{b+24+j}")
        for j in range(8): A(f"v_add_f32 v{b+j}, v{b+j}, v{b+16+j}")
        x = X + ps*8
        for j in range(4):
            A(f"v_lshlrev_b32 v{x+2*j}, 16, v{RES+ps*4+j}")
            A(f"v_and_b32 v{x+2*j+1}, 0xffff0000, v{RES+ps*4+j}")
        for j in range(8): A(f"v_fmac_f32 v{x+j}, v{b+j}, v{GA+j}")
        for j in range(4): A(f"v_cvt_pk_bf16_f32 v{RES+ps*4+j}, v{x+2*j}, v{x+2*j+1}")
        A(f"buffer_store_dwordx4 {v(RES+ps*4,4)}, v{vRO}, s[{S_O1}:{S_O1+3}], s{sAO if ps == 0 else sWO} offen" + (" sc1" if K3 else ""))
    if K3:
        for ps in range(2):
            x = X + ps*8
            for j in range(4):
                A(f"v_lshlrev_b32 v{x+2*j}, 16, v{RES+ps*4+j}")
                A(f"v_and_b32 v{x+2*j+1}, 0xffff0000, v{RES+ps*4+j}")
            y = Y + ps*8
            for j in range(8): A(f"v_mul_f32 v{y+j}, v{x+j}, v{SC+j}")
            for j in range(4): A(f"v_cvt_pk_bf16_f32 v{y+j}, v{y+2*j}, v{y+2*j+1}")
            A(f"v_add_f32 v{ST+2*ps}, v{x}, v{x+1}")
            for j in range(2, 8): A(f"v_add_f32 v{ST+2*ps}, v{ST+2*ps}, v{x+j}")
        A(f"""
v_lshrrev_b32 v{vT3}, 1, v{vT2}
v_lshlrev_b32 v{vMO}, 10, v{vT3}
v_and_b32 v{vT3}, 1, v{vT2}
v_lshl_add_u32 v{vMO}, v{vT3}, 9, v{vMO}
v_lshl_add_u32 v{vMO}, v{vT}, 4, v{vMO}
s_lshl_b32 s{sT}, s{sMT}, 16
s_lshl_b32 s{sT2}, s{sNT}, 12
s_add_u32 s{sT}, s{sT}, s{sT2}
s_add_u32 s{sT2}, s{sT}, 32768
buffer_store_dwordx4 {v(Y,4)}, v{vMO}, s[{S_O2}:{S_O2+3}], s{sT} offen
buffer_store_dwordx4 {v(Y+8,4)}, v{vMO}, s[{S_O2}:{S_O2+3}], s{sT2} offen
""")
        def red8(regs):
            for pat in ("quad_perm:[1,0,3,2]", "quad_perm:[2,3,0,1]", "row_half_mirror"):
                A("s_nop 0")
                for r in regs: A(f"v_add_f32_dpp v{r}, v{r}, v{r} {pat} row_mask:0xf bank_mask:0xf")
        red8([ST, ST+2])
        for ps in range(2):
            x = X + ps*8
            A(f"v_mul_f32 v{ST+2*ps}, {0x3c800000}, v{ST+2*ps}")
            for j in range(8): A(f"v_sub_f32 v{x+j}, v{x+j}, v{ST+2*ps}")
            A(f"v_mul_f32 v{ST+2*ps+1}, v{x}, v{x}")
            for j in range(1, 8): A(f"v_fmac_f32 v{ST+2*ps+1}, v{x+j}, v{x+j}")
        red8([ST+1, ST+3])
        A(f"""
v_lshlrev_b32 v{vMO}, 6, v{vT}
v_cmp_eq_u32 vcc, 0, v{vT2}
s_lshl_b32 s{sT}, s{sMT}, 12
s_lshl_b32 s{sT2}, s{sNT}, 3
s_add_u32 s{sT}, s{sT}, s{sT2}
s_mov_b64 exec, vcc
buffer_store_dwordx2 {v(ST,2)}, v{vMO}, s[{S_ST}:{S_ST+3}], s{sT} offen
buffer_store_dwordx2 {v(ST+2,2)}, v{vMO}, s[{S_ST}:{S_ST+3}], s{sT} offen offset:2048
s_mov_b64 exec, -1
""")
        BF, UA, UW = 144, 160, 164
        A(f"""
s_cmp_ge_u32 s2, 172
s_cbranch_scc1 {name}_noub
s_cmp_ge_u32 s2, 86
s_cselect_b32 s{S_WG}, s{S_WU}, s{S_WG}
s_cselect_b32 s{S_WG+1}, s{S_WU+1}, s{S_WG+1}
s_cselect_b32 s{sT2}, 86, 0
s_sub_u32 s{sT2}, s2, s{sT2}
v_lshrrev_b32 v{vT}, 1, v0
v_mul_u32_u24 v{vT}, 2752, v{vT}
v_and_b32 v{vT2}, 1, v0
v_lshl_add_u32 v{vT}, v{vT2}, 4, v{vT}
s_mul_i32 s{sT}, s{sW}, {128*2752}
s_lshl_b32 s{sCNT}, s{sT2}, 5
s_add_u32 s{sT}, s{sT}, s{sCNT}
""")
        for m in range(4):
            A(f"s_add_u32 m0, s{sLB}, {m*1024}")
            A(f"s_add_u32 s{sCNT}, s{sT}, {m*32*2752}")
            A(f"buffer_load_dwordx4 v{vT}, s[{S_WG}:{S_WG+3}], s{sCNT} offen lds")
        A(f"""
v_and_b32 v{vT2}, 15, v0
v_lshrrev_b32 v{vT3}, 4, v0
v_lshlrev_b32 v{vT3}, 4, v{vT3}
v_lshlrev_b32 v{vMO}, 10, v{vT2}
v_sub_u32 v{vT3}, v{vT3}, v{vMO}
v_add_u32 v{vT3}, {16384 + 4*1024}, v{vT3}
v_mov_b32 v{vMO}, 0x100000
v_cmp_gt_u32 vcc, 2, v{vT2}
s_lshl_b32 s{sCNT}, s{sW}, 8
s_nop 0
v_cndmask_b32 v{vT3}, v{vMO}, v{vT3}, vcc
""")
        for m in range(4):
            A(f"buffer_load_dwordx4 {v(BF+4*m,4)}, v{vT3}, s[{S_MOD}:{S_MOD+3}], s{sCNT} offen offset:{m*64}")
        A(f"""
v_lshrrev_b32 v{vT}, 4, v0
v_lshlrev_b32 v{vT}, 8, v{vT}
v_lshl_add_u32 v{vT}, v{vT2}, 3, v{vT}    ; g*256 + (r*4+c)*8 = g*256 + r*32 + c*8
v_add_u32 v{vT}, s{sLB}, v{vT}
s_waitcnt vmcnt(0)
""")
        for m in range(4):
            for rd in range(2):
                A(f"ds_read_b64_tr_b16 {v(UW+4*m+2*rd,2)}, v{vT} offset:{m*1024 + rd*128}")
        A("s_waitcnt lgkmcnt(0)")
        for m in range(4):
            A(f"{M16} {v(UA,4)}, {v(UW+4*m,4)}, {v(BF+4*m,4)}, {'0' if m == 0 else v(UA,4)}")
        RB2 = RB + 4*PART
        A(f"""
s_lshl_b32 s{sT}, s{sW}, 10
s_add_u32 s{sT}, s{sT}, {RB2}
v_add_u32 v{vT}, s{sT}, v{vL16}
v_add_u32 v{vT3}, {RB2}, v{vL16}
s_nop 4
ds_write_b128 v{vT}, {v(UA,4)}
s_waitcnt lgkmcnt(0)
s_barrier
""")
        for w in range(4): A(f"ds_read_b128 {v(UW+4*w,4)}, v{vT3} offset:{w*1024}")
        A("s_waitcnt lgkmcnt(0)")
        for j in range(4):
            A(f"v_add_f32 v{UW+j}, v{UW+j}, v{UW+4+j}")
            A(f"v_add_f32 v{UW+8+j}, v{UW+8+j}, v{UW+12+j}")
        for j in range(4): A(f"v_add_f32 v{UW+j}, v{UW+j}, v{UW+8+j}")
        A(f"""
v_mul_u32_u24 v{vT}, {2*1376*4}, v{vT2}
v_lshrrev_b32 v{vT3}, 4, v0
v_lshl_add_u32 v{vT}, v{vT3}, 4, v{vT}
v_cndmask_b32 v{vT}, v{vMO}, v{vT}, vcc
s_lshl_b32 s{sT}, s2, 6
s_cmp_lg_u32 s{sW}, 0
s_cbranch_scc1 {name}_noub
buffer_store_dwordx4 {v(UW,4)}, v{vT}, s[{S_UB}:{S_UB+3}], s{sT} offen
""")
        A.label(f"{name}_noub")
    stamp_flush(A, which - 1, 4, sW)
    A.label(f"{name}_end")
    A("s_endpgm")
    A.lines = resolve_waits(A.lines)
    return name, A, desc(name, 256, 256), (256, 256, 4*(R+1)*4096 + 4*64*272 + 4096)


def k3():
    A = Asm()
    name = "k3_kernel"
    header(A, name)
    S_P, S_X, S_MOD, S_X1, S_H = 8, 12, 16, 20, 24
    sW, sT, sT2, sPO = 28, 29, 30, 31
    vPO, vXO, vMO, vT, vT2, vS, vQ, vLW, vLR = 1, 2, 3, 4, 5, 6, 7, 8, 9
    PP, XR, GA, SC, SH, F, ST = 12, 44, 48, 56, 64, 72, 80
    A(f"""
s_cmp_ge_u32 s2, 256
s_cbranch_scc1 {name}_end
""")
    stamp(A, 0)
    A(f"""
s_load_dwordx2 s[{S_X}:{S_X+1}], s[0:1], {ARG['x']}
s_load_dwordx2 s[32:33], s[0:1], 112
v_lshrrev_b32 v{vT}, 3, v0                ; piece 0..63
v_and_b32 v{vT2}, 7, v0                   ; token 0..7
v_lshlrev_b32 v{vPO}, 9, v{vT}
v_lshl_add_u32 v{vPO}, v{vT2}, 4, v{vPO}
v_lshrrev_b32 v{vS}, 1, v{vT}
v_lshlrev_b32 v{vS}, 4, v{vS}
v_and_b32 v{vQ}, 1, v{vT}
v_lshl_add_u32 v{vS}, v{vQ}, 2, v{vS}
v_lshlrev_b32 v{vMO}, 2, v{vS}
v_lshlrev_b32 v{vXO}, 10, v{vT2}
v_lshl_add_u32 v{vXO}, v{vS}, 1, v{vXO}
v_lshrrev_b32 v{vQ}, 6, v0
s_lshr_b32 s{sPO}, s2, 2
s_lshl_b32 s{sPO}, s{sPO}, 15
v_readfirstlane_b32 s{sW}, v{vQ}
s_and_b32 s{sT}, s2, 3
s_lshl_b32 s{sT}, s{sT}, 7
s_add_u32 s{sPO}, s{sPO}, s{sT}           ; tokblk*32K + (tok0%32)*16
v_lshlrev_b32 v{vLR}, 6, v{vT2}
v_lshl_add_u32 v{vLW}, v{vQ}, 3, v{vLR}
s_mov_b32 s{S_X+2}, {2*MB}
s_mov_b32 s{S_X+3}, 0x20000
s_waitcnt lgkmcnt(0)
""")
    srd(A, S_P, 32, 16*MB, WS_PART)
    for x in range(8):
        A(f"s_add_u32 s{sT}, s{sPO}, {x*2*MB}")
        A(f"buffer_load_dwordx4 {v(PP+4*x,4)}, v{vPO}, s[{S_P}:{S_P+3}], s{sT} offen ;@P{x}")
    srd(A, S_MOD, 32, 12288, WS_MOD)
    A(f"""
s_lshl_b32 s{sT}, s2, 13
buffer_load_dwordx2 {v(XR,2)}, v{vXO}, s[{S_X}:{S_X+3}], s{sT} offen
buffer_load_dwordx2 {v(XR+2,2)}, v{vXO}, s[{S_X}:{S_X+3}], s{sT} offen offset:16
s_movk_i32 s{sT}, 4096
s_movk_i32 s{sT2}, 8192
buffer_load_dwordx4 {v(GA,4)}, v{vMO}, s[{S_MOD}:{S_MOD+3}], s{sT} offen
buffer_load_dwordx4 {v(GA+4,4)}, v{vMO}, s[{S_MOD}:{S_MOD+3}], s{sT} offen offset:32 ;@GA
buffer_load_dwordx4 {v(SH,4)}, v{vMO}, s[{S_MOD}:{S_MOD+3}], s{sT} offen offset:2048
buffer_load_dwordx4 {v(SH+4,4)}, v{vMO}, s[{S_MOD}:{S_MOD+3}], s{sT} offen offset:2080
buffer_load_dwordx4 {v(SC,4)}, v{vMO}, s[{S_MOD}:{S_MOD+3}], s{sT2} offen
buffer_load_dwordx4 {v(SC+4,4)}, v{vMO}, s[{S_MOD}:{S_MOD+3}], s{sT2} offen offset:32 ;@SC
""")
    srd(A, S_X1, 32, 2*MB, WS_X1); srd(A, S_H, 32, 2*MB, WS_Y)
    for x in range(8):
        A(f"@wait vm P{x}")
        if x == 0: stamp(A, 1)
        for j in range(4):
            if x == 0:
                A(f"v_lshlrev_b32 v{F+2*j}, 16, v{PP+j}\nv_and_b32 v{F+2*j+1}, 0xffff0000, v{PP+j}")
            else:
                r = PP + 4*x + j
                A(f"v_lshlrev_b32 v{vT}, 16, v{r}\nv_and_b32 v{r}, 0xffff0000, v{r}\nv_add_f32 v{F+2*j}, v{F+2*j}, v{vT}\nv_add_f32 v{F+2*j+1}, v{F+2*j+1}, v{r}")
    A("@wait vm GA")
    X = PP
    for j in range(4): A(f"v_lshlrev_b32 v{X+2*j}, 16, v{XR+j}\nv_and_b32 v{X+2*j+1}, 0xffff0000, v{XR+j}")
    for j in range(8): A(f"v_fmac_f32 v{X+j}, v{F+j}, v{GA+j}")
    for j in range(4): A(f"v_cvt_pk_bf16_f32 v{XR+j}, v{X+2*j}, v{X+2*j+1}")
    A(f"buffer_store_dwordx4 {v(XR,4)}, v{vPO}, s[{S_X1}:{S_X1+3}], s{sPO} offen sc1")
    for j in range(4): A(f"v_lshlrev_b32 v{X+2*j}, 16, v{XR+j}\nv_and_b32 v{X+2*j+1}, 0xffff0000, v{XR+j}")
    def red(r):
        A(f"""s_nop 1
v_add_f32_dpp v{r}, v{r}, v{r} row_ror:8 row_mask:0xf bank_mask:0xf
v_mov_b32 v{vT}, v{r}
s_nop 1
v_permlane16_swap_b32 v{vT}, v{r}
s_nop 0
v_add_f32 v{r}, v{r}, v{vT}
v_mov_b32 v{vT}, v{r}
s_nop 1
v_permlane32_swap_b32 v{vT}, v{r}
s_nop 0
v_add_f32 v{r}, v{r}, v{vT}""")
    A(f"v_add_f32 v{vS}, v{X}, v{X+1}")
    for j in range(2, 8): A(f"v_add_f32 v{vS}, v{vS}, v{X+j}")
    red(vS)
    A(f"v_mul_f32 v{vS}, 0x3c800000, v{vS}")
    for j in range(8): A(f"v_sub_f32 v{F+j}, v{X+j}, v{vS}")
    A(f"v_mul_f32 v{vQ}, v{F}, v{F}")
    for j in range(1, 8): A(f"v_fmac_f32 v{vQ}, v{F+j}, v{F+j}")
    red(vQ)
    A(f"""
ds_write_b64 v{vLW}, v[{vS}:{vQ}]
s_waitcnt lgkmcnt(0)
s_barrier
""")
    for i in range(4): A(f"ds_read_b128 {v(ST+4*i,4)}, v{vLR} offset:{16*i}")
    A("s_waitcnt lgkmcnt(0)")
    A(f"v_add_f32 v{vS}, v{ST}, v{ST+2}")
    for i in range(2, 8): A(f"v_add_f32 v{vS}, v{vS}, v{ST+2*i}")
    A(f"v_mul_f32 v{vS}, 0x3e000000, v{vS}")
    A(f"v_add_f32 v{vQ}, v{ST+1}, v{ST+3}")
    for i in range(2, 8): A(f"v_add_f32 v{vQ}, v{vQ}, v{ST+2*i+1}")
    A(f"v_mov_b32 v{vT2}, 0")
    for i in range(8): A(f"v_sub_f32 v{vT}, v{ST+2*i}, v{vS}\nv_fmac_f32 v{vT2}, v{vT}, v{vT}")
    A(f"""
v_fmac_f32 v{vQ}, 0x42800000, v{vT2}
v_mov_b32 v{vT}, 0x3727c5ac
v_fmac_f32 v{vT}, 0x3b000000, v{vQ}
v_rsq_f32 v{vQ}, v{vT}
@wait vm SC
""")
    for j in range(8): A(f"v_sub_f32 v{X+j}, v{X+j}, v{vS}")
    for j in range(8): A(f"v_mul_f32 v{X+j}, v{X+j}, v{vQ}")
    for j in range(8): A(f"v_fma_f32 v{X+j}, v{X+j}, v{SC+j}, v{SH+j}")
    for j in range(4): A(f"v_cvt_pk_bf16_f32 v{F+j}, v{X+2*j}, v{X+2*j+1}")
    A(f"buffer_store_dwordx4 {v(F,4)}, v{vPO}, s[{S_H}:{S_H+3}], s{sPO} offen sc1")
    stamp_flush(A, 2, 3, sW)
    A.label(f"{name}_end")
    A("s_endpgm")
    A.lines = resolve_waits(A.lines)
    return name, A, desc(name, 96, 96), (256, 512, 1024)
def k5(): return k35(5)

def k4():
    A = Asm()
    name = "k4_kernel"
    header(A, name)
    S_Y, S_WG, S_WU, S_ST, S_UB, S_G = 8, 12, 16, 20, 24, 28
    sW, sMT, sNT, sT, sT2, sYO, sWO, sM0 = 48, 49, 50, 51, 52, 53, 54, 55
    vL16, vWD, vWR, vT, vT2, vT3, vMU, vRS, vUB, vGO = 1, 2, 5, 8, 9, 10, 11, 12, 13, 14
    ACC, YF, WF, STT = 16, 112, 176, 224
    NSL, RING, SLOT = 8, 6, 24576
    LDS_UB = RING*SLOT
    A(f"""
s_cmp_ge_u32 s2, 240
s_cbranch_scc1 {name}_end
""")
    stamp(A, 0)
    A(f"""
s_load_dwordx4 s[64:67], s[0:1], {ARG['wg']}
s_load_dwordx2 s[68:69], s[0:1], 112
v_lshrrev_b32 v1, 6, v0
v_and_b32 v0, 63, v0
s_and_b32 s{sT}, s2, 7
v_readfirstlane_b32 s{sW}, v1
s_lshr_b32 s{sT2}, s2, 3                  ; 0..29
s_and_b32 s{sMT}, s{sT2}, 1
s_lshl_b32 s{sT}, s{sT}, 1
s_add_u32 s{sMT}, s{sMT}, s{sT}
s_lshr_b32 s{sNT}, s{sT2}, 1
v_lshlrev_b32 v{vL16}, 4, v0
""")
    for i in range(3):
        A(f"""
v_add_u32 v{vT}, {i*64}, v0
v_mul_u32_u24 v{vT2}, 43691, v{vT}
v_lshrrev_b32 v{vT2}, 19, v{vT2}          ; /12
v_mul_u32_u24 v{vT3}, 12, v{vT2}
v_sub_u32 v{vT3}, v{vT}, v{vT3}
v_mul_u32_u24 v{vWD+i}, 2752, v{vT2}
v_lshl_add_u32 v{vWD+i}, v{vT3}, 4, v{vWD+i}
""")
    A(f"""
v_lshrrev_b32 v{vT}, 5, v0
v_and_b32 v{vT2}, 15, v0
v_lshrrev_b32 v{vT3}, 2, v{vT2}
v_lshl_add_u32 v{vT3}, v{vT}, 2, v{vT3}
v_mul_u32_u24 v{vWR}, 192, v{vT3}
v_and_b32 v{vT3}, 16, v0
v_lshl_add_u32 v{vWR}, v{vT3}, 1, v{vWR}
v_and_b32 v{vT3}, 3, v0
v_lshl_add_u32 v{vWR}, v{vT3}, 3, v{vWR}
v_add_u32 v{vWR+1}, {2*SLOT}, v{vWR}
v_add_u32 v{vWR+2}, {4*SLOT}, v{vWR}
v_lshlrev_b32 v{vUB}, 4, v{vT}
v_add_u32 v{vUB}, {LDS_UB}, v{vUB}
; G store voffset: ((l>>4)&1)*1024 + h*256 + (l%16)*16
v_and_b32 v{vT3}, 16, v0
v_lshlrev_b32 v{vGO}, 6, v{vT3}
v_lshl_add_u32 v{vGO}, v{vT}, 8, v{vGO}
v_lshl_add_u32 v{vGO}, v{vT2}, 4, v{vGO}
s_waitcnt lgkmcnt(0)
""")
    srd(A, S_WG, 64, 512*1376*2); srd(A, S_WU, 66, 512*1376*2)
    srd(A, S_Y, 68, 2*MB, WS_Y); srd(A, S_ST, 68, 131072, WS_STAT); srd(A, S_UB, 68, 2*1376*8, WS_UB); srd(A, S_G, 68, 43*131072, WS_G)
    A(f"""
s_lshl_b32 s{sYO}, s{sMT}, 2
s_add_u32 s{sYO}, s{sYO}, s{sW}           ; tokblk32
s_lshl_b32 s{sT}, s{sYO}, 11
s_lshl_b32 s{sYO}, s{sYO}, 15
v_and_b32 v{vT}, 31, v0
v_lshlrev_b32 v{vT}, 6, v{vT}
s_mul_i32 s{sWO}, s{sW}, {16*2752}
s_mul_i32 s{sT2}, s{sNT}, 192
s_add_u32 s{sWO}, s{sWO}, s{sT2}
s_mul_i32 s{sM0}, s{sW}, 3072
""")
    def loadY(ks):
        r = YF + (ks % 16)*4
        return [[f"s_add_u32 s{sT2}, s{sYO}, {(ks // 4)*4096}",
                 f"buffer_load_dwordx4 v[{r}:{r+3}], v{vL16}, s[{S_Y}:{S_Y+3}], s{sT2} offen offset:{(ks % 4)*1024} ;@Y{ks}"]]
    def dmaW(n):
        out = []
        for mat in range(2):
            sr = S_WG if mat == 0 else S_WU
            for i in range(3):
                out.append([f"s_add_u32 m0, s{sM0}, {(n % RING)*SLOT + mat*12288 + i*1024}",
                            f"s_add_u32 s{sT}, s{sWO}, {n*64*2752}",
                            f"buffer_load_dwordx4 v{vWD+i}, s[{sr}:{sr+3}], s{sT} offen lds ;@W{n}"])
        return out
    def flat(x): return [y for z in x for y in (z if isinstance(z, list) else [z])]
    def readW(ks):
        n = ks // 4; sl = n % RING
        out = []
        for ct in range(6):
            for rd in range(2):
                r = WF + (ks % 2)*24 + ct*4 + rd*2
                off = (sl % 2)*SLOT + (ct // 3)*12288 + ((ks % 4)*16 + rd*8)*192 + (ct % 3)*64
                out.append(f"ds_read_b64_tr_b16 v[{r}:{r+1}], v{vWR + sl//2} offset:{off} ;@RW{ks}_{ct}")
        return out
    A.extend(flat(dmaW(0)))
    for ks in range(4): A.extend(flat(loadY(ks)))
    A.extend(flat(dmaW(1)))
    for ks in range(4, 8): A.extend(flat(loadY(ks)))
    A("@wait vm W0\ns_barrier")
    stamp(A, 1)
    A.extend(readW(0))
    pend = {0: dmaW(2), 1: loadY(8) + loadY(9) + loadY(10) + loadY(11), 2: dmaW(3), 3: loadY(12) + loadY(13) + loadY(14) + loadY(15),
            4: dmaW(4), 6: dmaW(5), 8: dmaW(6), 12: dmaW(7)}
    for ks in range(32):
        pre = []
        if ks % 4 == 3 and ks < 31:
            pre += [f"@wait vm W{(ks+1)//4}", "s_barrier"]
        pre.append(f"@wait vm Y{ks}")
        mf = []
        for ct in range(6):
            cin = "0" if ks == 0 else v(ACC + ct*16, 16)
            mf.append([f"@wait lgkm RW{ks}_{ct}", f"{M32} {v(ACC+ct*16,16)}, {v(WF+(ks%2)*24+ct*4,4)}, {v(YF+(ks%16)*4,4)}, {cin}"])
        fill = (readW(ks + 1) if ks < 31 else []) + pend.get(ks, [])
        if 5 <= ks <= 20: fill += loadY(ks + 11)
        A.extend(pre)
        out = []
        per = -(-len(fill) // 6)
        for i, m in enumerate(mf):
            out += m + flat(fill[i*per:(i+1)*per])
        A.extend(out)
    stamp(A, 2)
    A(f"""
s_lshl_b32 s{sT}, s{sMT}, 3
s_lshl_b32 s{sT2}, s{sW}, 1
s_add_u32 s{sT}, s{sT}, s{sT2}
s_lshl_b32 s{sT}, s{sT}, 10               ; tokblk16*1024
s_mul_i32 s{sT2}, s{sNT}, {3*131072}
s_add_u32 s{sYO}, s{sT}, s{sT2}
s_nop 3
s_mov_b32 s56, 0xc0135761                 ; -2*log2e*sqrt(2/pi)
s_mov_b32 s57, 0xbdd2d3e8                 ; that * 0.044715
""")
    U = YF
    for tl in range(3):
        g0 = ACC + tl*16; u0 = ACC + (3 + tl)*16
        TT = WF
        for r in range(16): A(f"v_mul_f32 v{TT+r}, v{g0+r}, v{g0+r}")
        A(f"v_mov_b32 v{vT}, s56")
        for r in range(16): A(f"v_fma_f32 v{TT+r}, v{TT+r}, s57, v{vT}")
        for r in range(16): A(f"v_mul_f32 v{TT+r}, v{TT+r}, v{g0+r}")
        for r in range(16): A(f"v_exp_f32 v{TT+r}, v{TT+r}")
        for r in range(16): A(f"v_mul_f32 v{g0+r}, v{g0+r}, v{u0+r}")
        for r in range(16): A(f"v_add_f32 v{TT+r}, 1.0, v{TT+r}")
        for r in range(16): A(f"v_rcp_f32 v{TT+r}, v{TT+r}")
        A("s_nop 0")
        for r in range(16): A(f"v_mul_f32 v{g0+r}, v{g0+r}, v{TT+r}")
        for r in range(8): A(f"v_cvt_pk_bf16_f32 v{u0+r}, v{g0+2*r}, v{g0+2*r+1}")
        A(f"s_add_u32 s{sT}, s{sYO}, {tl*131072}")
        for sp in range(2):
            A(f"buffer_store_dwordx4 {v(u0+4*sp,4)}, v{vGO}, s[{S_G}:{S_G+3}], s{sT} offen offset:{sp*512} sc1")
    stamp_flush(A, 3, 4, sW)
    A.label(f"{name}_end")
    A("s_endpgm")
    A.lines = resolve_waits(A.lines)
    return name, A, desc(name, 256, 256), (240, 256, RING*SLOT + 4096)

KERNELS = [k1, k2, k3, k4, k5]

def build(kernels=None):
    ks = [k() for k in (kernels or KERNELS)]
    hdr = open("cdna_kernels/" + NAME + ".s.ref").read().split("; Override launch")[0]
    out = hdr
    for name, A, d, (grid, blk, lds) in ks:
        out += f"; @launch kernel={name} grid=({grid},1,1) block=({blk},1,1) lds={lds}\n"
    out += '.amdgcn_target "amdgcn-amd-amdhsa--gfx950"\n.text\n'
    wsb = [int(x[2:]) for x in ABL if x.startswith("ws")]
    for name, A, d, _ in ks:
        if wsb:
            import re
            reg = None
            for i, l in enumerate(A.lines):
                m = re.match(r"s_load_dwordx2 s\[(\d+):\d+\], s\[0:1\], 112", l)
                if m and reg is None: reg = int(m.group(1))
                if reg is not None and l.startswith("s_waitcnt lgkmcnt(0)"):
                    A.lines[i+1:i+1] = [f"s_add_u32 s{reg}, s{reg}, {wsb[0]*MB}", f"s_addc_u32 s{reg+1}, s{reg+1}, 0"]
                    break
        pr = check_hazards(A.lines)
        out += A.text()
    out += 'text_end:\n.section .rodata,"a"\n'
    for name, A, d, _ in ks:
        out += d
    return out

if __name__ == "__main__":
    if "diag" in sys.argv[2:]: DIAG = True
    if "cyc" in sys.argv[2:]: CLK = "s_memtime"
    ABL = {x[4:] for x in sys.argv[2:] if x.startswith("abl:")}
    txt = build()
    path = sys.argv[1] if len(sys.argv) > 1 else "cdna_kernels/" + NAME + ".s"
    open(path, "w").write(txt)
    print("wrote", path, len(txt))
```

```python
import sys
from asmlib import *

NAME = "adaLN_cond__compressed_kv_cla__geglu_ffn__prompt"
MB = 1 << 20
WS_KF, WS_VF, WS_CTX, WS_XH, WS_X1, WS_G, WS_MOD, WS_STAT = 0, 16*MB, 32*MB, 48*MB, 50*MB, 52*MB, 58*MB, 58*MB + 65536
WS_CNT, WS_PART = 58*MB + 32768, 64*MB
WS_MODB, WS_UB, WS_Y = 58*MB + 16384, 58*MB + 32768, 62*MB
ARG = dict(x=0, ckv=8, wq=16, wuk=24, wuv=32, wo=40, bx=48, wg=56, wu=64, wd=72, c=80, wmod=88, out=96, dbg=104, ws=112)
M16 = "v_mfma_f32_16x16x32_bf16"
M32 = "v_mfma_f32_32x32x16_bf16"
LOG2E = 0x3fb8aa3b

def srd(A, d, base, size, off=0):
    if off:
        A(f"s_add_u32 s{d}, s{base}, {off}")
        A(f"s_addc_u32 s{d+1}, s{base+1}, 0")
    else:
        A(f"s_mov_b32 s{d}, s{base}")
        A(f"s_mov_b32 s{d+1}, s{base+1}")
    A(f"s_mov_b32 s{d+2}, {size}")
    A(f"s_mov_b32 s{d+3}, 0x20000")

def allreduce64(A, regs, t0, op="v_add_f32"):
    n = len(regs)
    for pat in ("quad_perm:[1,0,3,2]", "quad_perm:[2,3,0,1]", "row_half_mirror", "row_mirror"):
        if n < 3: A(f"s_nop {2 - n}" if n < 3 else "")
        for r in regs:
            A(f"{op}_dpp v{r}, v{r}, v{r} {pat} row_mask:0xf bank_mask:0xf")
    for sw in ("v_permlane16_swap_b32", "v_permlane32_swap_b32"):
        for i, r in enumerate(regs): A(f"v_mov_b32 v{t0+i}, v{r}")
        A("s_nop 1")
        for i, r in enumerate(regs): A(f"{sw} v{t0+i}, v{r}")
        A("s_nop 0")
        for i, r in enumerate(regs): A(f"{op} v{r}, v{r}, v{t0+i}")

DIAG = False
ABL = set()
CLK = "s_memrealtime"
WS_DIAG = 60*MB
STAMPMAP = None
def stamp(A, i):
    if STAMPMAP is not None:
        if i not in STAMPMAP: return
        i = STAMPMAP.index(i)
    if DIAG: A(f"{CLK} s[{86+2*i}:{87+2*i}]")
def stamp_flush(A, kidx, n, swave):
    if not DIAG: return
    A(f"""
s_waitcnt vmcnt(0)
{CLK} s[{86+2*(n-1)}:{87+2*(n-1)}]
s_load_dwordx2 s[4:5], s[0:1], 112
s_waitcnt lgkmcnt(0)
s_add_u32 s4, s4, {WS_DIAG + kidx*65536}
s_addc_u32 s5, s5, 0
s_mov_b32 s6, 65536
s_mov_b32 s7, 0x20000
s_lshl_b32 s3, s2, 8
s_lshl_b32 s2, s{swave}, 5
s_add_u32 s3, s3, s2
v_mov_b32 v8, 0
""")
    for i in range(8): A(f"v_mov_b32 v{i}, s{86+2*i}" if i < n else f"v_mov_b32 v{i}, 0")
    A("""s_mov_b64 exec, 1
buffer_store_dwordx4 v[0:3], v8, s[4:7], s3 offen
buffer_store_dwordx4 v[4:7], v8, s[4:7], s3 offen offset:16""")

def header(A, name):
    A(f".globl {name}\n.p2align 8\n.type {name},@function\n{name}:")

def desc(name, vgpr, accum, sgpr=102):
    return f""".p2align 6
.amdhsa_kernel {name}
  .amdhsa_next_free_vgpr {vgpr}
  .amdhsa_next_free_sgpr {sgpr}
  .amdhsa_accum_offset {accum}
  .amdhsa_group_segment_fixed_size 0
  .amdhsa_kernarg_size 120
  .amdhsa_user_sgpr_count 2
  .amdhsa_user_sgpr_kernarg_segment_ptr 1
  .amdhsa_system_sgpr_workgroup_id_x 1
  .amdhsa_float_denorm_mode_32 3
.end_amdhsa_kernel
"""

def flat(x): return [y for z in x for y in (flat(z) if isinstance(z, list) else [z])]

def allreduce64_list(regs, tmps, op="v_add_f32"):
    out = []
    for pat in ("quad_perm:[1,0,3,2]", "quad_perm:[2,3,0,1]", "row_half_mirror", "row_mirror"):
        out.append("s_nop 1" if len(regs) == 1 else "s_nop 0")
        for r in regs: out.append(f"{op}_dpp v{r}, v{r}, v{r} {pat} row_mask:0xf bank_mask:0xf")
    for sw in ("v_permlane16_swap_b32", "v_permlane32_swap_b32"):
        for r, t in zip(regs, tmps): out.append(f"v_mov_b32 v{t}, v{r}")
        out.append("s_nop 1")
        for r, t in zip(regs, tmps): out.append(f"{sw} v{t}, v{r}")
        out.append("s_nop 0")
        for r, t in zip(regs, tmps): out.append(f"{op} v{r}, v{r}, v{t}")
    return out

def k1():
    A = Asm()
    name = "k1_kernel"
    header(A, name)
    S_CKV, S_WUK, S_WUV, S_KV, S_X, S_XH, S_WMOD, S_C, S_MOD, S_DBG, S_WQ = 8, 12, 16, 20, 24, 28, 32, 36, 40, 44, 48
    sW, sHEAD, sKB, sAB, sWB = 52, 53, 54, 55, 56
    sT, sT2, sOK, sOV, sLA, sW10, sTOK, sCOL, sSD, sE = 64, 65, 66, 67, 68, 69, 70, 71, 72, 73
    sJ1, sJ2, sJ3 = 74, 75, 76
    K1S = "k1start" in ABL
    A(f"""
s_cmp_ge_u32 s2, 256
s_cbranch_scc1 {name}_end
""")
    stamp(A, 0)
    vA0, vA1, vW, vAR0, vAR1, vOK, vOV, vT, vT2, vT3 = 2, 3, 4, 5, 6, 7, 8, 9, 10, 11
    vWR = 12
    A(f"""
s_load_dwordx2 s[{S_CKV}:{S_CKV+1}], s[0:1], {ARG['ckv']}
s_load_dwordx2 s[{S_WUK}:{S_WUK+1}], s[0:1], {ARG['wuk']}
s_load_dwordx2 s[{S_WUV}:{S_WUV+1}], s[0:1], {ARG['wuv']}
s_load_dwordx2 s[{S_X}:{S_X+1}], s[0:1], {ARG['x']}
s_load_dwordx2 s[{S_C}:{S_C+1}], s[0:1], {ARG['c']}
s_load_dwordx2 s[{S_WMOD}:{S_WMOD+1}], s[0:1], {ARG['wmod']}
s_load_dwordx2 s[{S_WQ}:{S_WQ+1}], s[0:1], {ARG['wq']}
s_load_dwordx2 s[{S_DBG}:{S_DBG+1}], s[0:1], {ARG['dbg']}
s_load_dwordx2 s[{S_KV}:{S_KV+1}], s[0:1], {ARG['ws']}
v_lshrrev_b32 v1, 6, v0
v_and_b32 v0, 63, v0
s_and_b32 s{sT}, s2, 7
v_readfirstlane_b32 s{sW}, v1
s_lshr_b32 s{sT2}, s2, 3
s_lshl_b32 s{sHEAD}, s{sT}, 2
s_and_b32 s{sKB}, s{sT2}, 3
s_add_u32 s{sHEAD}, s{sHEAD}, s{sKB}
s_lshr_b32 s{sKB}, s{sT2}, 2
s_mov_b32 s{S_CKV+2}, {2*MB}
s_mov_b32 s{S_CKV+3}, 0x20000
s_mov_b32 s{S_WUK+2}, {4*MB}
s_mov_b32 s{S_WUK+3}, 0x20000
s_lshl_b32 s{sAB}, s{sKB}, 18
s_lshl_b32 s{sT}, s{sW}, 16
s_add_u32 s{sAB}, s{sAB}, s{sT}
s_lshl_b32 s{sWB}, s{sHEAD}, 8             ; head col byte offset
v_lshrrev_b32 v{vT}, 3, v0              ; l/8
v_and_b32 v{vT2}, 7, v0                 ; l%8
v_lshrrev_b32 v{vT3}, 1, v{vT}          ; (l/8)>>1  (0..3)
v_xor_b32 v{vA0}, v{vT2}, v{vT3}
v_lshlrev_b32 v{vA0}, 4, v{vA0}
v_lshl_add_u32 v{vA0}, v{vT}, 10, v{vA0}   ; A dma voffset, rows with bit4=0
v_xor_b32 v{vA1}, 64, v{vA0}
v_and_b32 v{vT3}, 1, v{vT3}
s_and_b32 s{sT}, s{sW}, 1
s_lshl_b32 s{sT}, s{sT}, 1
v_or_b32 v{vT3}, s{sT}, v{vT3}
v_lshlrev_b32 v{vT3}, 1, v{vT3}            ; swz
v_xor_b32 v{vW}, v{vT2}, v{vT3}
v_lshlrev_b32 v{vW}, 4, v{vW}
v_lshl_add_u32 v{vW}, v{vT}, 13, v{vW}
s_lshl_b32 s{sT}, s{sW}, 16
v_add_u32 v{vW}, s{sT}, v{vW}              ; + wave*8 rows
s_lshl_b32 s{sLA}, s{sW}, 14
s_lshl_b32 s{sW10}, s{sW}, 10
s_waitcnt lgkmcnt(0)
""")
    HI = 64*1024; SIDE = 144*1024
    SEQ = [(c, q) for q in range(4) for c in range(2)] + [(c, q) for c in (2, 3) for q in range(4)]
    WLOC = {n: HI + (n % 5)*16384 for n in range(10)}
    WLOC.update({10: 0, 11: 16384, 12: 32768, 13: 49152, 14: HI + 0*16384, 15: HI + 1*16384})
    def dmaA(i):
        return [[f"s_add_u32 m0, s{sLA}, {(i % 2)*8192 + ii*1024}",
                 f"s_add_u32 s{sT}, s{sAB}, {ii*8192 + i*128}",
                 f"buffer_load_dwordx4 v{vA1 if ii & 2 else vA0}, s[{S_CKV}:{S_CKV+3}], s{sT} offen lds ;@A{i}"] for ii in range(8)]
    def dmaW(n):
        c, q = SEQ[n]
        sr = S_WUK if c < 2 else S_WUV
        return [[f"s_add_u32 m0, s{sW10}, {WLOC[n] + m*4096}",
                 f"s_add_u32 s{sT}, s{sWB}, {q*128*8192 + m*32*8192 + (c % 2)*128}",
                 f"buffer_load_dwordx4 v{vW}, s[{sr}:{sr+3}], s{sT} offen lds ;@W{n}"] for m in range(4)]
    for x in (dmaW(0), dmaA(0)):
        A.extend(flat(x))
    if "nocpf" not in ABL:
        A(f"""
s_getpc_b64 s[80:81]
k1_pc:
s_sub_u32 s80, s80, k1_pc-k1_kernel
s_subb_u32 s81, s81, 0
s_mov_b32 s82, text_end-k1_kernel
s_mov_b32 s83, 0x20000
s_lshr_b32 s{sT}, s2, 3
s_lshl_b32 s{sT}, s{sT}, 2
s_add_u32 s{sT}, s{sT}, s{sW}
s_lshl_b32 s{sT}, s{sT}, 10
v_lshlrev_b32 v1, 7, v0
s_mov_b64 exec, 0xff
buffer_load_dword v255, v1, s[80:83], s{sT} offen
s_mov_b64 exec, -1
""")
    A(f"""
v_and_b32 v{vT}, 15, v0                 ; n
v_lshrrev_b32 v{vT2}, 4, v0             ; g
v_lshrrev_b32 v{vT3}, 1, v{vT}
v_xor_b32 v{vAR0}, v{vT2}, v{vT3}
v_lshlrev_b32 v{vAR0}, 4, v{vAR0}
v_and_b32 v{vT3}, 8, v{vT}
v_add_u32 v{vT3}, v{vT3}, v{vT}         ; rho0 = 16(n>>3)+(n&7)
v_lshl_add_u32 v{vAR0}, v{vT3}, 7, v{vAR0}
v_add_u32 v{vAR0}, s{sLA}, v{vAR0}
v_xor_b32 v{vAR1}, 64, v{vAR0}
v_and_b32 v{vOK}, 1, v{vT2}
v_lshlrev_b32 v{vOK}, 9, v{vOK}
v_lshrrev_b32 v{vOV}, 1, v{vT2}
v_lshl_add_u32 v{vOK}, v{vOV}, 10, v{vOK}
v_lshl_add_u32 v{vOV}, v{vT}, 4, v{vOK}
v_lshl_add_u32 v{vOK}, v{vT3}, 4, v{vOK}
v_lshrrev_b32 v{vT3}, 2, v{vT}          ; r
v_lshl_add_u32 v{vWR}, v{vT2}, 3, v{vT3}   ; row
v_lshlrev_b32 v{vWR}, 7, v{vWR}
v_and_b32 v{vT}, 3, v0
v_lshl_add_u32 v{vWR}, v{vT}, 3, v{vWR}    ; + c*8
v_lshrrev_b32 v{vT3}, 1, v{vT3}
v_and_b32 v{vT2}, 1, v{vT2}
v_lshl_or_b32 v{vT3}, v{vT2}, 1, v{vT3}
v_lshl_add_u32 v{vWR}, v{vT3}, 5, v{vWR}   ; + swz*16
""")
    for t in range(1, 4): A(f"v_xor_b32 v{vWR+t}, {t*32}, v{vWR}")
    for b in range(1, 3):
        for t in range(4): A(f"v_add_u32 v{vWR+4*b+t}, {b*65536}, v{vWR+t}")
    for d, size in ((S_WUV, 4*MB), (S_X, 2*MB), (S_C, 1024), (S_WMOD, 512*3072*2), (S_WQ, 4*MB), (S_DBG, 256), (S_KV, 32*MB)):
        A(f"s_mov_b32 s{d+2}, {size}\ns_mov_b32 s{d+3}, 0x20000")
    srd(A, S_XH, S_KV, 2*MB, WS_XH); srd(A, S_MOD, S_KV, 65536, WS_MOD)
    A(f"""
s_lshl_b32 s{sOK}, s{sHEAD}, 19
s_lshl_b32 s{sT}, s{sKB}, 16
s_add_u32 s{sOK}, s{sOK}, s{sT}
s_lshl_b32 s{sT}, s{sW}, 14
s_add_u32 s{sOK}, s{sOK}, s{sT}            ; KF offset: head*512K + (kb*8+wave*2)*8K
s_add_u32 s{sOV}, s{sOK}, {16*MB}
s_lshl_b32 s{sTOK}, s2, 3
s_and_b32 s{sT}, s2, 7
s_lshl_b32 s{sT}, s{sT}, 3
s_bfe_u32 s{sT2}, s2, 0x30003
s_add_u32 s{sCOL}, s{sT}, s{sT2}
s_and_b32 s{sT}, s2, 0xc0
s_add_u32 s{sCOL}, s{sCOL}, s{sT}
s_lshl_b32 s{sSD}, s{sW}, 12
s_add_u32 s{sSD}, s{sSD}, {SIDE}
""")
    A.extend(flat(dmaA(1))); A.extend(flat(dmaW(1)))

    def readA(i):
        out = []
        for kk in range(2):
            for T in range(4):
                r = ((2*i + kk)*4 + T)*4
                out.append(f"ds_read_b128 a[{r}:{r+3}], v{vAR1 if kk else vAR0} offset:{(i % 2)*8192 + (T//2)*4096 + (T % 2)*1024} ;@RA{i}")
        return out
    WF = 64
    def gfrags(G):
        k = G % 4
        if G < 4: return [(2*(k % 2) + i // 2, 2*(k // 2) + i % 2) for i in range(4)]
        return [(k, ks) for ks in range(4)]
    def readW(G):
        n = G // 4
        out = []
        for i, (t, ks) in enumerate(gfrags(G)):
            for rd in range(2):
                r = WF + (G % 3)*16 + i*4 + rd*2
                off = WLOC[n] + ks*4096 + rd*512
                out.append(f"ds_read_b64_tr_b16 v[{r}:{r+1}], v{vWR + 4*(off//65536) + t} offset:{off % 65536} ;@RW{G}")
        return out

    A("@wait vm A0")
    A.extend(readA(0))
    A("s_barrier")
    stamp(A, 1)
    A.extend(readW(0)); A.extend(readW(1))
    ACC = [128, 192]; OUT = 32
    def acc(c, t, T): return ACC[c % 2] + (t*4 + T)*4
    def epilogue(c):
        out = []
        k = 0
        if c < 2:
            for b in range(2):
                for T in range(4):
                    o = OUT + (k % 4)*4; k += 1
                    p = []
                    for tt in range(2):
                        r = acc(c, 2*b + tt, T)
                        p.append(f"v_cvt_pk_bf16_f32 v{o+2*tt}, v{r}, v{r+1}")
                        p.append(f"v_cvt_pk_bf16_f32 v{o+2*tt+1}, v{r+2}, v{r+3}")
                    p.append([f"s_add_u32 s{sE}, s{sOK}, {(T//2)*8192 + (c % 2)*4096}",
                              f"buffer_store_dwordx4 v[{o}:{o+3}], v{vOK}, s[{S_KV}:{S_KV+3}], s{sE} offen offset:{(T % 2)*128 + b*2048} sc1"])
                    out.append(p)
        else:
            for t in range(4):
                for b in range(2):
                    o = OUT + (k % 4)*4; k += 1
                    p = []
                    for aa in range(2):
                        r = acc(c, t, 2*b + aa)
                        p.append(f"v_cvt_pk_bf16_f32 v{o+2*aa}, v{r}, v{r+1}")
                        p.append(f"v_cvt_pk_bf16_f32 v{o+2*aa+1}, v{r+2}, v{r+3}")
                    p.append([f"s_add_u32 s{sE}, s{sOV}, {b*8192 + (c % 2)*4096}",
                              f"buffer_store_dwordx4 v[{o}:{o+3}], v{vOV}, s[{S_KV}:{S_KV+3}], s{sE} offen offset:{(t//2)*2048 + (t % 2)*256} sc1"])
                    out.append(p)
        return out
    extra = {G: [] for G in range(64)}
    for k, p in enumerate(epilogue(0)): extra[[27, 28, 28, 29, 30, 31, 32, 33][k]] += p
    for k, p in enumerate(epilogue(1)): extra[34 + (3*k) // 2] += p
    for k, p in enumerate(epilogue(2)): extra[46 + 2*k] += p
    ep3 = epilogue(3)
    for k in range(4): extra[62 + k // 2] += ep3[k]
    def slabjob(i): return [f"@wait vm A{i}"] + readA(i)
    waitRA = {0: 0, 2: 1}
    extra[0] += dmaA(2) + dmaW(2)
    extra[1] += slabjob(1) + dmaW(3)
    extra[2] += dmaA(3) + dmaW(4)
    for i in range(2, 8):
        g0 = 4 + (i - 2)*3
        extra[g0] += slabjob(i)
        extra[g0 + 1] += [f"@wait lgkm RA{i}"] + (dmaA(i + 2) if i + 2 < 8 else [])
    wsched = {6: 5, 10: 6, 15: 7, 18: 8, 22: 9, 23: 10, 24: 11, 25: 12, 26: 13, 27: 14, 30: 15}
    for G, w in wsched.items(): extra[G] = dmaW(w) + extra[G]
    def spread(lst, g0, g1, nm=""):
        if "noside" in ABL: return
        if "nowait" in ABL: lst = [[y for y in flat([x]) if not y.startswith("@wait vm")] for x in lst]
        if "novalu1" in ABL: lst = [[y for y in flat([x]) if not (y.startswith("v_") and not y.startswith(("v_lsh", "v_and_b32 v%d" % vT2, "v_mov_b32 v2", "v_readf")) or y.startswith("s_nop"))] for x in lst]
        if "nonop" in ABL: lst = [[y for y in flat([x]) if not y.startswith("s_nop")] for x in lst]
        if "nomem" in ABL: lst = [[y for y in flat([x]) if not y.startswith(("buffer_", "@wait vm", "s_cbranch"))] for x in lst]
        n = g1 - g0
        per = -(-len(lst) // n)
        for k in range(n): extra[g0 + k] += lst[k*per:(k+1)*per]

    F = 112; RAW = 48; SCL = 56; SHF = 24
    t0, t1, t2, t3 = vT2, vT3, 1, OUT + 15
    j1 = [f"v_lshrrev_b32 v{t0}, 1, v0", f"v_mul_u32_u24 v{t0}, 6144, v{t0}", f"v_and_b32 v{t1}, 1, v0",
          f"v_lshl_add_u32 v{t0}, v{t1}, 4, v{t0}",
          f"s_mul_i32 s{sJ2}, s{sW}, {128*6144}", f"s_lshl_b32 s{sJ1}, s{sCOL}, 5", f"s_add_u32 s{sJ2}, s{sJ2}, s{sJ1}",
          [f"s_cmp_lt_u32 s{sCOL}, 192", f"s_cselect_b32 s{sJ2}, s{sJ2}, 0x10000000"],
          f"v_and_b32 v{t1}, 3, v0", f"v_lshlrev_b32 v{t1}, 6, v{t1}", f"v_lshrrev_b32 v{vT}, 4, v0",
          f"v_lshl_add_u32 v{t1}, v{vT}, 4, v{t1}", f"s_lshl_b32 s{sJ1}, s{sW}, 8",
          f"buffer_load_dwordx4 {v(SCL,4)}, v{t1}, s[{S_C}:{S_C+3}], s{sJ1} offen ;@CV"]
    for m in range(4):
        j1.append([f"s_add_u32 m0, s{sSD}, {m*1024}", f"s_add_u32 s{sJ1}, s{sJ2}, {m*32*6144}",
                   f"buffer_load_dwordx4 v{t0}, s[{S_WMOD}:{S_WMOD+3}], s{sJ1} offen lds ;@WM"])
    spread(j1, 3, 4)
    j1b = [f"v_lshlrev_b32 v{t1}, 4, v0", f"v_add_u32 v{t3}, {SIDE}, v{t1}", f"v_add_u32 v{t1}, s{sSD}, v{t1}",
           f"v_and_b32 v{t0}, 15, v0", f"v_lshlrev_b32 v{t2}, 8, v{vT}", f"v_lshl_add_u32 v{t2}, v{t0}, 3, v{t2}",
           f"v_add_u32 v{t2}, s{sSD}, v{t2}", "@wait vm CV"]
    for j in range(4):
        j1b += [f"v_lshlrev_b32 v{RAW+2*j}, 16, v{SCL+j}", f"v_and_b32 v{RAW+2*j+1}, 0xffff0000, v{SCL+j}"]
    for j in range(8): j1b.append(f"v_mul_f32 v{SHF+j}, 0xbfb8aa3b, v{RAW+j}")
    for j in range(8): j1b.append(f"v_exp_f32 v{SHF+j}, v{SHF+j}")
    for j in range(8): j1b.append(f"v_add_f32 v{SHF+j}, 1.0, v{SHF+j}")
    for j in range(8): j1b.append(f"v_rcp_f32 v{SHF+j}, v{SHF+j}")
    for j in range(8): j1b.append(f"v_mul_f32 v{RAW+j}, v{RAW+j}, v{SHF+j}")
    for j in range(4): j1b.append(f"v_cvt_pk_bf16_f32 v{RAW+j}, v{RAW+2*j}, v{RAW+2*j+1}")
    j1b.append("@wait vm WM")
    MW = [SCL, SCL+4, SHF, SHF+4]
    for m in range(4):
        for rd in range(2): j1b.append(f"ds_read_b64_tr_b16 {v(MW[m]+2*rd,2)}, v{t2} offset:{m*1024 + rd*128} ;@MW")
    for m in range(4):
        for j in range(4):
            j1b.append(f"v_mov_b32_dpp v{F+4*m+j}, v{RAW+j} quad_perm:[{m},{m},{m},{m}] row_mask:0xf bank_mask:0xf")
    j1b += ["@wait lgkm MW", "s_nop 0"]
    for m in range(4): j1b.append(f"{M16} {v(RAW+4,4)}, {v(MW[m],4)}, {v(F+4*m,4)}, {'0' if m == 0 else v(RAW+4,4)}")
    j1b += ["s_nop 7", f"ds_write_b128 v{t1}, {v(RAW+4,4)} ;@MP", "@wait lgkm MP"]
    spread(j1b, 8, 18)
    j1c = [f"ds_read_b128 {v(F+4*w,4)}, v{t3} offset:{w*4096} ;@MR" for w in range(4)]
    j1c += [f"s_lshr_b32 s{sJ1}, s{sCOL}, 5", [f"s_cmp_eq_u32 s{sJ1}, 1", f"s_cselect_b32 s{sJ2}, 1.0, 0"],
            [f"s_cmp_eq_u32 s{sJ1}, 4", f"s_cselect_b32 s{sJ2}, 1.0, s{sJ2}"], "@wait lgkm MR"]
    for j in range(4): j1c += [f"v_add_f32 v{F+j}, v{F+j}, v{F+4+j}", f"v_add_f32 v{F+8+j}, v{F+8+j}, v{F+12+j}"]
    for j in range(4): j1c.append(f"v_add_f32 v{F+j}, v{F+j}, v{F+8+j}")
    for rnd in range(2):
        for h in range(2): j1c.append(f"v_cvt_pk_bf16_f32 v{F+4+h}, v{F+2*h}, v{F+2*h+1}")
        for h in range(2): j1c += [f"v_lshlrev_b32 v{F+2*h}, 16, v{F+4+h}", f"v_and_b32 v{F+2*h+1}, 0xffff0000, v{F+4+h}"]
        if rnd == 0:
            for e in range(4): j1c.append(f"v_add_f32 v{F+e}, s{sJ2}, v{F+e}")
    j1c += [f"v_lshlrev_b32 v{t0}, 4, v{vT}", f"v_lshlrev_b32 v{t1}, 3, v{vT}",
            f"s_lshl_b32 s{sJ1}, s{sCOL}, 6", f"s_lshl_b32 s{sJ2}, s{sCOL}, 5", f"s_add_u32 s{sJ2}, s{sJ2}, 16384",
            [f"s_cmp_lt_u32 s{sCOL}, 192", f"s_cselect_b32 s{sJ1}, s{sJ1}, 0x10000000", f"s_cselect_b32 s{sJ2}, s{sJ2}, 0x10000000"],
            [f"s_cmp_eq_u32 s{sW}, 0", f"s_cselect_b32 s{sJ1}, s{sJ1}, 0x10000000", f"s_cselect_b32 s{sJ2}, s{sJ2}, 0x10000000"],
            [f"s_mov_b32 exec_lo, 0x10001", f"s_mov_b32 exec_hi, 0x10001",
             f"buffer_store_dwordx4 {v(F,4)}, v{t0}, s[{S_MOD}:{S_MOD+3}], s{sJ1} offen sc1 ;@MS",
             f"buffer_store_dwordx2 {v(F+4,2)}, v{t1}, s[{S_MOD}:{S_MOD+3}], s{sJ2} offen sc1 ;@MS",
             "s_mov_b64 exec, -1"]]
    spread(j1c, 18, 22)
    t0, t1, t2, t3 = vA0, vA1, vAR0, vAR1
    j1d = [f"s_lshl_b32 s{sJ1}, s{sW}, 8", f"s_add_u32 s{sJ1}, s{sJ1}, s{sCOL}", [f"s_cmp_lt_u32 s{sJ1}, 64",
           f"s_cselect_b32 s{sJ1}, 0, 0x1000"], f"v_mov_b32 v{t0}, 0", f"v_mov_b32 v{t1}, 1",
           ["@wait vm MS", "s_mov_b64 exec, 1",
            f"buffer_atomic_add v{t1}, v{t0}, s[{S_DBG}:{S_DBG+3}], s{sJ1} offen sc1",
            f"s_lshl_b32 s{sJ1}, s2, 7", f"s_add_u32 s{sJ1}, s{sJ1}, 32768",
            f"buffer_store_dword v{t0}, v{t0}, s[{S_MOD}:{S_MOD+3}], s{sJ1} offen sc1",
            "s_mov_b64 exec, -1"]]
    spread(j1d, 26, 27)
    j2 = [f"v_lshlrev_b32 v{t2}, 4, v0", f"s_lshl_b32 s{sJ1}, s{sTOK}, 10", f"s_lshl_b32 s{sJ2}, s{sW}, 11", f"s_add_u32 s{sJ1}, s{sJ1}, s{sJ2}",
          f"buffer_load_dwordx4 {v(RAW,4)}, v{t2}, s[{S_X}:{S_X+3}], s{sJ1} offen ;@XR",
          f"buffer_load_dwordx4 {v(RAW+4,4)}, v{t2}, s[{S_X}:{S_X+3}], s{sJ1} offen offset:1024 ;@XR"]
    spread(j2, 22, 23)
    pf = [f"v_lshlrev_b32 v{t2}, 13, v{vT}", f"v_and_b32 v{t3}, 15, v0", f"v_lshl_add_u32 v{t2}, v{t3}, 4, v{t2}",
          f"s_lshl_b32 s{sJ2}, s{sKB}, 19", f"s_lshl_b32 s{sJ1}, s{sW}, 17", f"s_add_u32 s{sJ2}, s{sJ2}, s{sJ1}",
          f"s_add_u32 s{sJ2}, s{sJ2}, s{sWB}"]
    for m in range(4):
        pf.append([f"s_add_u32 m0, s{sSD}, {m*1024}", f"s_add_u32 s{sJ1}, s{sJ2}, {m*32768}",
                   f"buffer_load_dwordx4 v{t2}, s[{S_WQ}:{S_WQ+3}], s{sJ1} offen lds ;@PF"])
    spread(pf, 31, 33)
    S0, S1 = vT, vT2; TA, TB = vT3, t3
    j2b = ["@wait vm XR"]
    for r in range(2):
        for j in range(4):
            j2b += [f"v_lshlrev_b32 v{F+r*8+2*j}, 16, v{RAW+4*r+j}", f"v_and_b32 v{F+r*8+2*j+1}, 0xffff0000, v{RAW+4*r+j}"]
    for r, sr in enumerate((S0, S1)):
        j2b.append(f"v_add_f32 v{sr}, v{F+r*8}, v{F+r*8+1}")
        for j in range(2, 8): j2b.append(f"v_add_f32 v{sr}, v{sr}, v{F+r*8+j}")
    j2b += allreduce64_list([S0, S1], [TA, TB])
    for r, sr in enumerate((S0, S1)):
        j2b.append(f"v_mul_f32 v{sr}, 0x3b000000, v{sr}")
        for j in range(8): j2b.append(f"v_sub_f32 v{F+r*8+j}, v{F+r*8+j}, v{sr}")
    for r, sr in enumerate((S0, S1)):
        j2b.append(f"v_mul_f32 v{sr}, v{F+r*8}, v{F+r*8}")
        for j in range(1, 8): j2b.append(f"v_fmac_f32 v{sr}, v{F+r*8+j}, v{F+r*8+j}")
    j2b += allreduce64_list([S0, S1], [TA, TB])
    for sr in (S0, S1):
        j2b += [f"v_mov_b32 v{TA}, 0x3727c5ac", f"v_fmac_f32 v{TA}, 0x3b000000, v{sr}", f"v_rsq_f32 v{sr}, v{TA}", "s_nop 0",
                f"v_mul_f32 v{sr}, 0x3e0293ee, v{sr}"]
    for r, sr in enumerate((S0, S1)):
        for j in range(8): j2b.append(f"v_mul_f32 v{F+r*8+j}, v{F+r*8+j}, v{sr}")
    spread(j2b, 33, 48)
    poll = [f"buffer_load_dword v{t1}, v{t0}, s[{S_DBG}:{S_DBG+3}], 0 offen sc1 ;@PL"]
    spread(poll, 42, 43)
    chk = [["@wait vm PL", f"v_readfirstlane_b32 s{sJ1}, v{t1}", "s_nop 0", f"s_cmp_lt_u32 s{sJ1}, 64", f"s_cbranch_scc1 {name}_spin", f"{name}_go:"],
           f"v_lshlrev_b32 v{t2}, 5, v0",
           f"buffer_load_dwordx4 {v(SHF,4)}, v{t2}, s[{S_MOD}:{S_MOD+3}], 0 offen sc1 ;@ML",
           f"buffer_load_dwordx4 {v(SHF+4,4)}, v{t2}, s[{S_MOD}:{S_MOD+3}], 0 offen offset:16 sc1 ;@ML",
           f"buffer_load_dwordx4 {v(SCL,4)}, v{t2}, s[{S_MOD}:{S_MOD+3}], 0 offen offset:2048 sc1 ;@ML",
           f"buffer_load_dwordx4 {v(SCL+4,4)}, v{t2}, s[{S_MOD}:{S_MOD+3}], 0 offen offset:2064 sc1 ;@ML"]
    spread(chk, 48, 49)
    j2c = [f"v_lshlrev_b32 v{t2}, 7, v0", f"s_lshl_b32 s{sJ1}, s{sW}, 5", f"s_add_u32 s{sJ1}, s{sJ1}, {SIDE}", f"v_add_u32 v{t2}, s{sJ1}, v{t2}",
           "@wait vm ML"]
    for j in range(8): j2c.append(f"v_mul_f32 v{SHF+j}, 0x3e0293ee, v{SHF+j}")
    for r in range(2):
        for j in range(8): j2c.append(f"v_fma_f32 v{F+r*8+j}, v{F+r*8+j}, v{SCL+j}, v{SHF+j}")
        for j in range(4): j2c.append(f"v_cvt_pk_bf16_f32 v{RAW+4*r+j}, v{F+r*8+2*j}, v{F+r*8+2*j+1}")
        j2c.append(f"ds_write_b128 v{t2}, {v(RAW+4*r,4)} offset:{16*r} ;@HW")
    j2c.append("@wait lgkm HW")
    spread(j2c, 54, 58)
    j2d = [f"v_lshlrev_b32 v{t2}, 4, v0", f"s_lshl_b32 s{sJ1}, s{sW}, 11", f"s_add_u32 s{sJ1}, s{sJ1}, {SIDE}", f"v_add_u32 v{t2}, s{sJ1}, v{t2}",
           f"ds_read_b128 {v(RAW,4)}, v{t2} ;@HR", f"ds_read_b128 {v(RAW+4,4)}, v{t2} offset:1024 ;@HR",
           f"v_lshrrev_b32 v{t3}, 3, v0", f"v_lshlrev_b32 v{t3}, 9, v{t3}", f"v_and_b32 v{t0}, 7, v0", f"v_lshl_add_u32 v{t3}, v{t0}, 4, v{t3}",
           f"s_lshr_b32 s{sJ2}, s{sTOK}, 5", f"s_lshl_b32 s{sJ2}, s{sJ2}, 15", f"s_and_b32 s{sJ3}, s{sTOK}, 31", f"s_lshl_b32 s{sJ3}, s{sJ3}, 4",
           f"s_add_u32 s{sJ2}, s{sJ2}, s{sJ3}", f"s_lshl_b32 s{sJ3}, s{sW}, 13", f"s_add_u32 s{sJ2}, s{sJ2}, s{sJ3}", f"s_add_u32 s{sJ3}, s{sJ2}, 4096",
           "@wait lgkm HR",
           f"buffer_store_dwordx4 {v(RAW,4)}, v{t3}, s[{S_XH}:{S_XH+3}], s{sJ2} offen sc1",
           f"buffer_store_dwordx4 {v(RAW+4,4)}, v{t3}, s[{S_XH}:{S_XH+3}], s{sJ3} offen sc1"]
    spread(j2d, 58, 60)

    for G in range(64):
        n = G // 4
        c, q = SEQ[n]
        pre = []
        if (G + 2) % 4 == 0 and G + 2 < 64:
            pre += [f"@wait vm W{(G+2)//4}", "s_barrier"]
        pre.append(f"@wait lgkm RW{G}")
        if G in waitRA: pre.append(f"@wait lgkm RA{waitRA[G]}")
        if G == 8: pre.append("@wait lgkm RA3")
        mf = []
        fr = gfrags(G)
        ts = sorted({t for t, _ in fr})
        for t in ts:
            for T in range(4):
                for i, (tt, ks) in enumerate(fr):
                    if tt != t: continue
                    d = acc(c, t, T)
                    wf = v(WF + (G % 3)*16 + i*4, 4)
                    af = a(((q*4 + ks)*4 + T)*4, 4)
                    cin = "0" if (q == 0 and ks == 0) else v(d, 4)
                    if c < 2: mf.append(f"{M16} {v(d,4)}, {wf}, {af}, {cin}")
                    else:     mf.append(f"{M16} {v(d,4)}, {af}, {wf}, {cin}")
        rw = readW(G + 2) if G + 2 < 64 else []
        slots = [[] for _ in range(16)]
        for k, x in enumerate(rw): slots[2*k].append(x)
        ex = extra[G]
        order = [1, 3, 5, 7, 9, 11, 13, 15, 0, 2, 4, 6, 8, 10, 12, 14]
        cnt = [0]*16
        for k in range(len(ex)): cnt[order[k % 16]] += 1
        k = 0
        for gi in range(16):
            for _ in range(cnt[gi]):
                slots[gi].append(ex[k]); k += 1
        st = (2, 4, 8, 12, 16) if K1S else (8, 16, 32, 48)
        if G in st: stamp(A, 2 + st.index(G))
        A.extend(pre)
        for m, sl in zip(mf, slots):
            A(m); A.extend(flat(sl))
    if not K1S: stamp(A, 6)
    A.extend(flat(ep3[4:6]))
    A.extend(flat(ep3[6:]))
    stamp_flush(A, 0, 8, sW)
    A.label(f"{name}_end")
    A("s_endpgm")
    A.label(f"{name}_spin")
    if "noside" in ABL: A.label(f"{name}_go")
    A(f"""
s_mov_b32 s{sJ3}, 0x40000
{name}_spin2:
s_sleep 16
buffer_load_dword v{t1}, v{t0}, s[{S_DBG}:{S_DBG+3}], 0 offen sc1 ;@cond
s_waitcnt vmcnt(0)
v_readfirstlane_b32 s{sJ1}, v{t1}
s_sub_u32 s{sJ3}, s{sJ3}, 1
s_cbranch_scc1 {name}_go
s_cmp_lt_u32 s{sJ1}, 64
s_cbranch_scc1 {name}_spin2
s_branch {name}_go
""")
    A.lines = resolve_waits(A.lines)
    return name, A, desc(name, 512, 256), (256, 256, 160*1024)

def gaps(mf, fills):
    out = []
    for i, m in enumerate(mf):
        out.extend(m if isinstance(m, list) else [m])
        out.extend(fills.get(i, []))
    return out

def k2():
    global STAMPMAP
    STAMPMAP = [0, 1, 2, 3, 4, 5, 6] if "head" in ABL else [0, 5, 6, 7, 8, 9, 10]
    A = Asm()
    name = "k2_kernel"
    header(A, name)
    S_WQ, S_KV, S_XH, S_CTX, S_PF, S_WO, S_CNT = 8, 12, 16, 20, 24, 64, 76
    sW, sG, sHEAD, sPAIR, sTB, sR, sNS, sT, sT2 = 28, 29, 30, 31, 32, 33, 34, 35, 36
    sSLOT, sDM0, sDK, sDJ, sTHR, sXB, sFAST, sJ, sW4 = 37, 38, 39, 40, 41, 42, 43, 44, 45
    sRET = 46
    sM0, sM1, sREDO, sLIM, sWOB = 48, 49, 50, 51, 62
    LDS_K0, LDS_FLAG, LDS_PF = 128*1024, 136*1024, 144*1024
    vL16, vWD, vWR, vFLG, vCUR, vMSK, vNINF, vL, vTS, vDEL, vF, vWOD = 1, 2, 3, 7, 8, 10, 11, 12, 13, 14, 15, 9
    O, QF, S, P, NEGM, FR, T = 16, 80, 112, 144, 160, 176, 208
    XR = 112
    WFR = 176
    A(f"""
s_cmp_ge_u32 s2, 256
s_cbranch_scc1 {name}_end
""")
    stamp(A, 0)
    A(f"""
s_load_dwordx2 s[{S_WQ}:{S_WQ+1}], s[0:1], {ARG['wq']}
s_load_dwordx2 s[{S_KV}:{S_KV+1}], s[0:1], {ARG['ws']}
s_load_dwordx2 s[64:65], s[0:1], {ARG['wo']}
s_load_dwordx4 s[68:71], s[0:1], {ARG['wg']}
s_load_dwordx2 s[72:73], s[0:1], {ARG['wd']}
v_lshrrev_b32 v1, 6, v0
v_and_b32 v0, 63, v0
s_and_b32 s{sT}, s2, 7
v_readfirstlane_b32 s{sW}, v1
s_lshr_b32 s{sT2}, s2, 3
s_lshl_b32 s{sHEAD}, s{sT}, 2
s_and_b32 s{sT}, s{sT2}, 3
s_add_u32 s{sHEAD}, s{sHEAD}, s{sT}
s_lshr_b32 s{sPAIR}, s{sT2}, 2
s_lshr_b32 s{sG}, s{sW}, 2
s_and_b32 s{sW4}, s{sW}, 3
s_sub_u32 s{sT}, 15, s{sPAIR}
s_cmp_eq_u32 s{sG}, 0
s_cselect_b32 s{sTB}, s{sT}, s{sPAIR}
s_lshl_b32 s{sTB}, s{sTB}, 2
s_add_u32 s{sTB}, s{sTB}, s{sW4}          ; tokblk32 = U
s_lshl_b32 s{sNS}, s{sT}, 1
s_add_u32 s{sNS}, s{sNS}, 2
v_lshlrev_b32 v{vL16}, 4, v0
; W dma voffset: (l/16)*8192 + ((l%16) ^ ((l/16)<<2))*16
v_lshrrev_b32 v{T}, 4, v0
v_and_b32 v{T+1}, 15, v0
v_lshlrev_b32 v{T+2}, 2, v{T}
v_xor_b32 v{vWD}, v{T+1}, v{T+2}
v_lshlrev_b32 v{vWD}, 4, v{vWD}
v_lshl_add_u32 v{vWD}, v{T}, 13, v{vWD}
s_mov_b32 s{S_WQ+2}, {4*MB}
s_mov_b32 s{S_WQ+3}, 0x20000
s_mov_b32 s{S_KV+2}, {32*MB}
s_mov_b32 s{S_KV+3}, 0x20000
s_lshl_b32 s{sXB}, s{sTB}, 15
s_lshl_b32 s{sM0}, s{sW}, 12
s_lshl_b32 s{sM1}, s{sW}, 17              ; rows: wave*16*8192
s_lshl_b32 s{sT}, s{sHEAD}, 8
s_add_u32 s{sM1}, s{sM1}, s{sT}
s_waitcnt lgkmcnt(0)
""")
    srd(A, S_XH, S_KV, 2*MB, WS_XH)
    def loadX(ks):
        r = XR + (ks % 16)*4
        return [f"s_add_u32 s{sT2}, s{sXB}, {(ks // 4)*4096}",
                f"buffer_load_dwordx4 v[{r}:{r+3}], v{vL16}, s[{S_XH}:{S_XH+3}], s{sT2} offen offset:{(ks % 4)*1024} ;@X{ks}"]
    def dmaWq(q, m):
        return [f"s_add_u32 m0, s{sM0}, {q*32768 + m*1024}",
                f"s_add_u32 s{sT}, s{sM1}, {q*128*8192 + m*4*8192}",
                f"buffer_load_dwordx4 v{vWD}, s[{S_WQ}:{S_WQ+3}], s{sT} offen lds ;@WQ{q}"]
    for m in range(4): A.extend(dmaWq(0, m))
    for ks in range(4): A.extend(loadX(ks))
    for m in range(4): A.extend(dmaWq(1, m))
    for ks in range(4, 10): A.extend(loadX(ks))
    A(f"""
; W tr read addr: h=l/32, half16=(l/16)&1, r=(l%16)/4, c=l%4: (8h+r)*256 + r*64 + 32(c>>1) + 16 half16 + 8(c&1)
v_lshrrev_b32 v{T+2}, 2, v{T+1}           ; r
v_lshrrev_b32 v{T+3}, 5, v0               ; h
v_lshl_add_u32 v{vWR}, v{T+3}, 3, v{T+2}
v_lshlrev_b32 v{vWR}, 8, v{vWR}
v_lshl_add_u32 v{vWR}, v{T+2}, 6, v{vWR}
v_and_b32 v{T+4}, 2, v0
v_lshl_add_u32 v{vWR}, v{T+4}, 4, v{vWR}
v_and_b32 v{T+4}, 1, v0
v_lshl_add_u32 v{vWR}, v{T+4}, 3, v{vWR}
v_and_b32 v{T+4}, 1, v{T}
v_lshl_add_u32 v{vWR}, v{T+4}, 4, v{vWR}
v_xor_b32 v{vWR+1}, 64, v{vWR}
v_xor_b32 v{vWR+2}, 128, v{vWR}
v_xor_b32 v{vWR+3}, 192, v{vWR}
v_and_b32 v{vMSK}, 31, v0
v_lshlrev_b32 v{T+4}, 2, v{T+3}
v_sub_u32 v{vMSK}, v{vMSK}, v{T+4}        ; q_local - 4h
v_mov_b32 v{vNINF}, 0xff800000
v_and_b32 v{vWOD}, 0xff, v{vWD}
v_lshl_add_u32 v{vWOD}, v{T}, 10, v{vWOD}
s_mov_b32 s{S_WO+2}, {4*MB}
s_mov_b32 s{S_WO+3}, 0x20000
s_lshr_b32 s{sT}, s{sHEAD}, 2
s_lshl_b32 s{sWOB}, s{sT}, 19             ; k rows x*512
s_and_b32 s{sT}, s{sHEAD}, 3
s_lshl_b32 s{sT}, s{sT}, 8
s_add_u32 s{sWOB}, s{sWOB}, s{sT}
s_lshl_b32 s{sT}, s{sW4}, 14
s_add_u32 s{sWOB}, s{sWOB}, s{sT}         ; + loader wave's 16 rows
v_mov_b32 v{vFLG}, {LDS_FLAG}
v_mov_b32 v{vF}, 0
ds_write_b32 v{vFLG}, v{vF}
s_mov_b32 s{sTHR}, 0x44800000             ; 1024.0
s_mov_b32 s{sLIM}, 0x4e800000             ; 2^30
s_mov_b32 s{sREDO}, 0
s_sub_u32 s{sFAST}, s{sTB}, 1
s_lshr_b32 s{sFAST}, s{sFAST}, 1
s_cmp_eq_u32 s{sTB}, 0
s_cselect_b32 s{sFAST}, 0, s{sFAST}       ; floor((U-1)/2)
""")
    srd(A, S_CTX, S_KV, 16*MB, WS_CTX)
    def dma_init():
        return [f"s_lshl_b32 s{sDK}, s{sHEAD}, 19", f"s_lshl_b32 s{sDM0}, s{sW4}, 12", f"s_add_u32 s{sDK}, s{sDK}, s{sDM0}",
                f"s_add_u32 s{sDK}, s{sDK}, 8192", f"s_mov_b32 s{sDJ}, 0"]
    A.extend(dma_init())
    def stage_parts():
        it = []
        for m in range(4):
            pre = [f"s_mov_b32 m0, s{sDM0}", f"s_add_u32 s{sT2}, s{sDK}, {16*MB - 8192}"] if m == 0 else []
            it.append(pre + [f"buffer_load_dwordx4 v{vL16}, s[{S_KV}:{S_KV+3}], s{sDK} offen offset:{m*1024} lds ;@cond"])
        for m in range(4):
            pre = [f"s_add_u32 m0, s{sDM0}, 16384", f"s_add_u32 s{sDJ}, s{sDJ}, 1"] if m == 0 else []
            post = [f"s_add_u32 s{sDK}, s{sDK}, 16384", f"s_add_u32 s{sDM0}, s{sDM0}, 32768", f"s_and_b32 s{sDM0}, s{sDM0}, 0x1ffff"] if m == 3 else []
            it.append(pre + [f"buffer_load_dwordx4 v{vL16}, s[{S_KV}:{S_KV+3}], s{sT2} offen offset:{m*1024} lds ;@cond"] + post)
        return it
    def wo_parts():
        out = [f"s_sub_u32 s{sT}, s{sDJ}, s{sNS}", f"s_lshl_b32 s{sT}, s{sT}, 17", f"s_add_u32 s{sT}, s{sT}, s{sWOB}"]
        for m in range(8):
            out += [f"s_add_u32 m0, s{sDM0}, {(m // 4)*16384 + (m % 4)*1024}", f"s_add_u32 s{sT2}, s{sT}, {(m // 4)*65536 + (m % 4)*4096}",
                    f"buffer_load_dwordx4 v{vWOD}, s[{S_WO}:{S_WO+3}], s{sT2} offen lds ;@cond"]
        out += [f"s_add_u32 s{sDJ}, s{sDJ}, 1", f"s_add_u32 s{sDM0}, s{sDM0}, 32768", f"s_and_b32 s{sDM0}, s{sDM0}, 0x1ffff"]
        return out
    def stage_dma(early=False):
        lab = A.newlabel("k2_nodma")
        if early:
            return [f"s_cmp_eq_u32 s{sG}, 0", f"s_cbranch_scc1 {lab}"] + flat(stage_parts()) + [lab + ":"]
        return [f"s_cmp_eq_u32 s{sG}, 0", f"s_cbranch_scc1 {lab}", f"s_call_b64 s[{sRET}:{sRET+1}], k2_stage", lab + ":"]
    dmaK0 = [f"s_lshl_b32 s{sT}, s{sW}, 10", f"s_add_u32 m0, s{sT}, {LDS_K0}", f"s_lshl_b32 s{sT2}, s{sHEAD}, 19",
             f"s_add_u32 s{sT2}, s{sT2}, s{sT}",
             f"buffer_load_dwordx4 v{vL16}, s[{S_KV}:{S_KV+3}], s{sT2} offen lds ;@K0"]

    def readWq(ks, dbs):
        out = []
        for db in dbs:
            for rd in range(2):
                r = WFR + (ks % 2)*16 + db*4 + rd*2
                out.append(f"ds_read_b64_tr_b16 v[{r}:{r+1}], v{vWR+db} offset:{(ks % 16)*4096 + rd*1024} ;@RW{ks}_{db}")
        return out
    queue = [("x", 10), ("x", 11), ("w", 2, 0), ("w", 2, 1), ("x", 12), ("x", 13), ("w", 2, 2), ("w", 2, 3), ("x", 14), ("x", 15),
             ("x", 16), ("x", 17), ("w", 3, 0), ("x", 18), ("w", 3, 1), ("x", 19), ("w", 3, 2), ("x", 20), ("w", 3, 3), ("x", 21), ("k",)]
    queue += [("x", n) for n in range(22, 32)]
    A("@wait vm WQ0\ns_barrier")
    stamp(A, 1)
    A.extend(readWq(0, range(4)))
    for ks in range(32):
        pre = []
        if ks % 8 == 7 and ks < 31:
            q = (ks + 1) // 8
            pre += [f"@wait vm WQ{q}", "s_barrier"]
            if q >= 2: pre += stage_dma(True)
        if ks == 27:
            pre += ["@wait vm K0", f"s_cmp_eq_u32 s{sG}, 0", "s_cbranch_scc1 k2_b0", "s_waitcnt vmcnt(8)", "k2_b0:", "s_barrier"] + stage_dma(True)
        if ks == 15:
            pre += [f"v_add_u32 v{vWR+db}, 0x10000, v{vWR+db}" for db in range(4)]
        pre.append(f"@wait vm X{ks}")
        x = XR + (ks % 16)*4
        mf = []
        for db in range(4):
            w = WFR + (ks % 2)*16 + db*4
            cin = "0" if ks == 0 else v(O + db*16, 16)
            mf.append([f"@wait lgkm RW{ks}_{db}", f"{M32} {v(O+db*16,16)}, {v(w,4)}, {v(x,4)}, {cin}"])
        fills = {0: [], 1: [], 2: [], 3: []}
        if ks < 31:
            for db in range(4): fills[min(db, 2)] += readWq(ks + 1, [db])
        for slot in (1, 3):
            if queue and not (queue[0][0] == "x" and queue[0][1] - 15 > ks):
                it = queue.pop(0)
                fills[slot] += loadX(it[1]) if it[0] == "x" else dmaWq(it[1], it[2]) if it[0] == "w" else dmaK0
        A.extend(pre)
        A.extend(gaps(mf, fills))
    assert not queue
    stamp(A, 2)
    A(f"""
s_cmp_lg_u32 s{sG}, 0
s_cbranch_scc1 k2_nopf
s_lshl_b32 s{sT}, s2, 2
s_add_u32 s{sT}, s{sT}, s{sW4}
s_lshl_b32 s{sT2}, s{sW4}, 12
s_add_u32 m0, s{sT2}, {LDS_PF}
s_lshl_b32 s{sT2}, s{sT}, 12
s_lshl_b32 s{sT}, s{sT}, 11
""")
    srd(A, S_PF, S_WO, 4*MB)
    for m in range(4): A(f"buffer_load_dwordx4 v{vL16}, s[{S_PF}:{S_PF+3}], s{sT2} offen offset:{m*1024} lds ;@cond")
    for base in (68, 70, 72):
        srd(A, S_PF, base, 512*1376*2)
        for m in range(2): A(f"buffer_load_dwordx4 v{vL16}, s[{S_PF}:{S_PF+3}], s{sT} offen offset:{m*1024} lds ;@cond")
    A.label("k2_nopf")
    A("s_nop 3")
    for db in range(4):
        for r in range(8): A(f"v_cvt_pk_bf16_f32 v{QF+db*8+r}, v{O+db*16+2*r}, v{O+db*16+2*r+1}")
    A.label("k2_att")
    A(f"v_add_u32 v{vCUR}, {LDS_K0}, v{vL16}")
    for i in range(8): A(f"ds_read_b128 {v(FR+4*i,4)}, v{vCUR} offset:{i*1024} ;@K0_{i}")
    A(f"s_mov_b32 s{sR}, s{sTB}\ns_mov_b64 s[60:61], 0")
    for r in range(16): A(f"v_mov_b32 v{NEGM+r}, 0")
    def apply_mask():
        out = []
        for r in range(16):
            out.append(f"v_cmp_gt_i32 s[{52+2*(r%4)}:{53+2*(r%4)}], {8*(r//4) + r % 4}, v{vMSK}")
            if r % 4 == 3:
                for rr in range(r - 3, r + 1):
                    out.append(f"v_cndmask_b32 v{NEGM+rr}, v{NEGM+rr}, v{vNINF}, s[{52+2*(rr%4)}:{53+2*(rr%4)}]")
        return out
    A(f"s_cmp_lg_u32 s{sR}, 0\ns_cbranch_scc1 k2_nomask0")
    A.extend(apply_mask())
    A.label("k2_nomask0")
    A("s_nop 1")
    mf = []
    for i in range(8):
        cin = v(NEGM, 16) if i == 0 else v(S, 16)
        mf.append([f"@wait lgkm K0_{i}", f"{M32} {v(S,16)}, {v(FR+4*i,4)}, {v(QF+4*i,4)}, {cin}"])
    zero = [f"v_mov_b32 v{O+r}, 0" for r in range(64)]
    A.extend(gaps(mf, {i: zero[i*7:(i+1)*7] for i in range(7)} | {7: zero[49:]}))
    A(f"v_mov_b32 v{vL}, 0\nv_mov_b32 v{vCUR}, v{vL16}\ns_mov_b32 s{sSLOT}, 0")
    D = 6
    def fragoff(i):
        part, k = i // 8, i % 8
        if part == 0: return k*1024
        if part == 2: return 8192 + k*1024
        vb = 16384 + (part // 2)*8192
        return vb + ((k % 4)*2 + k // 4)*1024
    def rdfrag(i, addr):
        return f"ds_read_b128 {v(FR+4*(i%8),4)}, v{addr} offset:{fragoff(i % 32)} ;@F{i % 32}"
    for i in range(D): A(rdfrag(i, vCUR))
    def rowmax(p, dst):
        s0 = S + 16*p
        out = [f"v_max3_f32 v{dst}, v{s0}, v{s0+1}, v{s0+2}"]
        for r in range(3, 15, 2): out.append(f"v_max3_f32 v{dst}, v{dst}, v{s0+r}, v{s0+r+1}")
        out += [f"v_max_f32 v{dst}, v{dst}, v{s0+15}", f"v_mov_b32 v{vF}, v{dst}", "s_nop 1",
                f"v_permlane32_swap_b32 v{vF}, v{dst}", "s_nop 0", f"v_max_f32 v{dst}, v{dst}, v{vF}"]
        return out
    A.extend(rowmax(0, vDEL))
    for r in range(16): A(f"v_sub_f32 v{NEGM+r}, v{NEGM+r}, v{vDEL}")
    for r in range(16): A(f"v_sub_f32 v{S+r}, v{S+r}, v{vDEL}")
    def sm_elem(p, e):
        s0 = S + 16*p; pp = P + 8*p
        out = [f"v_exp_f32 v{T + e % 4}, v{s0+e}"]
        k = e % 8
        if k >= 1:
            pe = e - 1
            if k == 2: out.append(f"v_add_f32 v{vTS}, v{T + (e-2) % 4}, v{T + pe % 4}")
            elif k > 2: out.append(f"v_add_f32 v{vTS}, v{vTS}, v{T + pe % 4}")
            if pe % 2 == 1: out.append(f"v_cvt_pk_bf16_f32 v{pp + pe//2}, v{T + (pe-1) % 4}, v{T + pe % 4}")
        return out
    slow_sites = []
    def sm_fin(p, unit, site=None):
        pp = P + 8*p; e = unit*8 + 7
        out = [f"v_add_f32 v{vTS}, v{vTS}, v{T + e % 4}",
               f"v_cvt_pk_bf16_f32 v{pp + e//2}, v{T + (e-1) % 4}, v{T + e % 4}"]
        if site:
            lab = f"k2_slow_{site}"; ret = f"k2_ret_{site}"
            slow_sites.append((p, unit, lab, ret))
            out += [f"v_cmp_lt_f32 vcc, s{sTHR}, v{vTS}", f"s_cbranch_vccnz {lab}", ret + ":"]
        return out + [f"v_add_f32 v{vL}, v{vL}, v{vTS}"]
    for e in range(4): A.extend(sm_elem(0, e))
    stamp(A, 3)
    A(f"""
s_cmp_eq_u32 s{sFAST}, 0
s_cbranch_scc1 k2_loop
s_lshl_b32 s{sT}, s{sFAST}, 1
s_sub_u32 s{sR}, s{sR}, s{sT}
s_mov_b32 s{sJ}, s{sFAST}
s_cmp_eq_u32 s{sG}, 0
s_cbranch_scc1 k2_fast0
s_branch k2_fast1
""")
    def step_mf(p):
        base = 16*p
        mf = []
        for i in range(8):
            cin = v(NEGM, 16) if i == 0 else v(S + 16*(1-p), 16)
            mf.append(f"{M32} {v(S+16*(1-p),16)}, {v(FR+4*((base+i)%8),4)}, {v(QF+4*i,4)}, {cin}")
        for i in range(8):
            sp, db = i // 4, i % 4
            mf.append(f"{M32} {v(O+16*db,16)}, {v(FR+4*((base+8+i)%8),4)}, {v(P+8*p+4*sp,4)}, {v(O+16*db,16)}")
        for i in range(0, 16, 2): mf[i] = [f"@wait lgkm F{base+i+1}", mf[i]]
        return mf
    slot_adv = [f"s_add_u32 s{sSLOT}, s{sSLOT}, 32768", f"s_and_b32 s{sSLOT}, s{sSLOT}, 0x1ffff"]
    for grp in range(2):
        A(".p2align 6")
        A(f"@loop_begin fast{grp}")
        A.label(f"k2_fast{grp}")
        for p in range(2):
            base = 16*p
            mf = step_mf(p); fills = {i: [] for i in range(16)}
            for i in range(16):
                nxt = base + i + D
                if p == 1 and nxt == 32:
                    fills[i] += (["s_waitcnt vmcnt(8)"] if grp == 1 else []) + ["s_barrier"]
                fills[i].append(rdfrag(nxt, vCUR))
            for g in range(4): fills[g] += sm_elem(p, 4 + g)
            fills[4] += sm_fin(p, 0) + sm_elem(p, 8)
            if p == 0:
                for g in range(5, 11): fills[g] += sm_elem(p, 4 + g)
                fills[5] += slot_adv
                fills[10] += sm_elem(p, 15)[:1]
                fills[11] += sm_elem(p, 15)[1:] + sm_fin(p, 1)
                for g in range(12, 16): fills[g] += sm_elem(1 - p, g - 12)
            else:
                fills[5] += sm_elem(p, 9) + sm_elem(p, 10)
                for g in range(6, 10): fills[g] += sm_elem(p, 5 + g)
                fills[9] += [f"v_add_u32 v{vCUR}, s{sSLOT}, v{vL16}"]
                fills[11] += sm_elem(p, 15) + ["s_nop 0"] + sm_fin(p, 1)
                fills[12] += sm_elem(0, 0) + sm_elem(0, 1)
                fills[13] += sm_elem(0, 2)
                fills[14] += sm_elem(0, 3)
                if grp == 1:
                    sp_ = stage_parts()
                    for k, it in enumerate(sp_): fills[11 + k // 2] += it
                fills[14] += [f"s_sub_u32 s{sJ}, s{sJ}, 1", f"s_cmp_lg_u32 s{sJ}, 0"]
                fills[15] += [f"s_cbranch_scc1 k2_fast{grp}"]
            body = gaps(mf, fills)
            if "halfds" in ABL: body = [x for x in body if not (x.startswith("ds_read") and int(x.split(";@F")[1]) % 2 == 0)]
            if "nods" in ABL: body = [x for x in body if not x.startswith("ds_read") and not x.startswith("@wait")]
            if "novalu" in ABL: body = [x for x in body if not x.startswith(("v_exp", "v_add_f32", "v_cvt"))]
            if "noexp" in ABL: body = [x.replace("v_exp_f32", "v_mov_b32") for x in body]
            if "noadd" in ABL: body = [x for x in body if not x.startswith("v_add_f32")]
            if "nodma" in ABL: body = [x for x in body if not x.startswith("buffer_load")]
            A.extend(body)
        A(f"@loop_end fast{grp}")
        A(f"v_cmp_nge_f32 s[60:61], s{sLIM}, v{vL}")
        A("s_branch k2_loop")
    def step_ctl(p):
        return [f"s_cmp_lt_u32 s{sR}, 2", f"s_cbranch_scc1 k2_special{p}", f"k2_back{p}:", f"s_sub_u32 s{sR}, s{sR}, 1"]
    A("@loop_begin kv")
    A.label("k2_loop")
    A.extend(step_ctl(0))
    for p in range(2):
        base = 16*p
        mf = step_mf(p); fills = {i: [] for i in range(16)}
        for i in range(16):
            nxt = base + i + D
            if p == 1 and nxt == 32:
                fills[i] += ["s_waitcnt vmcnt(8)", "s_barrier"] + slot_adv + [f"v_add_u32 v{vCUR}, s{sSLOT}, v{vL16}"]
            fills[i].append(rdfrag(nxt, vCUR))
        for g in range(4): fills[g] += sm_elem(p, 4 + g)
        fills[4] = sm_fin(p, 0, f"f{p}0") + fills[4] + sm_elem(p, 8)
        for g in range(5, 12): fills[g] += sm_elem(p, 4 + g)
        fills[11] += ["s_nop 0"] + sm_fin(p, 1, f"f{p}1")
        for g in range(12, 16): fills[g] += sm_elem(1 - p, g - 12)
        if p == 1:
            fills[12] += stage_dma()
            fills[15] += ["s_branch k2_loop"]
        else:
            fills[15] += step_ctl(1)
        A.extend(gaps(mf, fills))
    A("@loop_end kv")
    for p in range(2):
        A.label(f"k2_special{p}")
        A(f"s_cmp_eq_u32 s{sR}, 0\ns_cbranch_scc1 k2_tail{p}")
        A.extend(apply_mask())
        A(f"s_nop 1\ns_branch k2_back{p}")
    for p in range(2):
        A.label(f"k2_tail{p}")
        for i in range(8):
            A(f"ds_read_b128 {v(FR+4*i,4)}, v{vCUR} offset:{fragoff(16*p + 8 + i)} ;@TV{p}_{i}")
        for e in range(4, 8): A.extend(sm_elem(p, e))
        A("s_nop 0")
        A.extend(sm_fin(p, 0, f"t{p}0"))
        mf = []; fills = {i: [] for i in range(8)}
        for i in range(8):
            sp, db = i // 4, i % 4
            mf.append([f"@wait lgkm TV{p}_{i}", f"{M32} {v(O+16*db,16)}, {v(FR+4*i,4)}, {v(P+8*p+4*sp,4)}, {v(O+16*db,16)}"])
        for g in range(4): fills[g] += sm_elem(p, 8 + 2*g) + sm_elem(p, 9 + 2*g)
        fills[3] += ["s_nop 0"] + sm_fin(p, 1, f"t{p}1")
        A.extend(gaps(mf, fills))
        if p == 0: A("s_branch k2_done")
    A.label("k2_done")
    stamp(A, 4)
    A(f"""
s_lshr_b32 s{sJ}, s{sTB}, 1
s_add_u32 s{sJ}, s{sJ}, 1
s_cmp_ge_u32 s{sJ}, s{sNS}
s_cbranch_scc1 k2_epi
s_waitcnt vmcnt(8)
s_barrier
""")
    A.extend(stage_dma())
    A.label("k2_epi")
    A(f"""
v_mov_b32 v{vF}, v{vL}
s_nop 1
v_permlane32_swap_b32 v{vF}, v{vL}
s_nop 0
v_add_f32 v{vL}, v{vL}, v{vF}
v_rcp_f32 v{vL}, v{vL}
s_cmp_eq_u64 s[60:61], {"0" if not (ABL & {"halfds", "nods", "novalu", "noexp", "noadd", "nodma"}) else "s[60:61]"}
s_cbranch_scc1 k2_noflag
v_mov_b32 v{vF}, 1
ds_write_b32 v{vFLG}, v{vF}
k2_noflag:
s_lshl_b32 s{sT}, s{sTB}, 18
s_lshl_b32 s{sT2}, s{sHEAD}, 13
s_add_u32 s{sXB}, s{sT}, s{sT2}
s_add_u32 s{sM1}, s{sXB}, 4096
s_nop 2
""")
    for db in range(4):
        for sp in range(2):
            o = O + db*16 + sp*8; d = FR + (db*2 + sp)*4
            for r in range(8): A(f"v_mul_f32 v{o+r}, v{o+r}, v{vL}")
            for r in range(4): A(f"v_cvt_pk_bf16_f32 v{d+r}, v{o+2*r}, v{o+2*r+1}")
            A(f"buffer_store_dwordx4 {v(d,4)}, v{vL16}, s[{S_CTX}:{S_CTX+3}], s{sXB if db < 2 else sM1} offen offset:{((db % 2)*2 + sp)*1024} sc1")
    A.label("k2_idle")
    A(f"""
s_add_u32 s{sJ}, s{sJ}, 1
s_cmp_ge_u32 s{sJ}, s{sNS}
s_cbranch_scc1 k2_vote
s_waitcnt vmcnt(8)
s_barrier
""")
    A.extend(stage_dma())
    A("s_branch k2_idle")
    A.label("k2_vote")
    A(f"""
s_waitcnt vmcnt(0) lgkmcnt(0)
s_barrier
s_cmp_lg_u32 s{sREDO}, 0
s_cbranch_scc1 k2_p3
ds_read_b32 v{vF}, v{vFLG}
s_waitcnt lgkmcnt(0)
v_readfirstlane_b32 s{sT}, v{vF}
s_cmp_eq_u32 s{sT}, 0
s_cbranch_scc1 k2_p3
s_mov_b32 s{sREDO}, 1
s_mov_b32 s{sFAST}, 0
""")
    A.extend(dma_init())
    A.extend(stage_dma()); A.extend(stage_dma())
    A("s_waitcnt vmcnt(8)\ns_barrier")
    A.extend(stage_dma())
    A("s_branch k2_att")
    A.label("k2_p3")
    stamp(A, 5)
    srd(A, S_CNT, S_KV, 32768, WS_CNT)
    A(f"""
s_lshr_b32 s{sT}, s{sHEAD}, 2
s_lshl_b32 s{sT}, s{sT}, 3
s_add_u32 s{sT}, s{sT}, s{sPAIR}
s_lshl_b32 s{sJ}, s{sT}, 7
v_mov_b32 v{vTS}, 0
v_mov_b32 v{vF}, 1
s_cmp_lg_u32 s{sW}, 0
s_cbranch_scc1 k2_nosig
s_mov_b64 exec, 1
buffer_atomic_add v{vF}, v{vTS}, s[{S_CNT}:{S_CNT+3}], s{sJ} offen sc1
s_mov_b64 exec, -1
k2_nosig:
""")
    A.extend(stage_dma()); A.extend(stage_dma())
    A(f"""
v_and_b32 v{T}, 15, v0
v_lshrrev_b32 v{T}, 2, v{T}               ; r
v_lshrrev_b32 v{T+1}, 5, v0               ; h
v_lshl_add_u32 v{vWR}, v{T+1}, 2, v{T}
v_lshlrev_b32 v{vWR}, 8, v{vWR}
v_lshl_add_u32 v{vWR}, v{T}, 6, v{vWR}
v_and_b32 v{T+2}, 16, v0
v_lshl_add_u32 v{vWR}, v{T+2}, 1, v{vWR}
v_and_b32 v{T+2}, 3, v0
v_lshl_add_u32 v{vWR}, v{T+2}, 3, v{vWR}
s_and_b32 s{sT}, s{sNS}, 2
s_lshl_b32 s{sT}, s{sT}, 15
v_add_u32 v{vWR}, s{sT}, v{vWR}
v_xor_b32 v{vWR+1}, 64, v{vWR}
v_xor_b32 v{vWR+2}, 128, v{vWR}
v_xor_b32 v{vWR+3}, 192, v{vWR}
s_lshl_b32 s{sXB}, s{sTB}, 18
s_lshr_b32 s{sT}, s{sHEAD}, 2
s_lshl_b32 s{sT}, s{sT}, 15
s_add_u32 s{sXB}, s{sXB}, s{sT}
s_cmp_lg_u32 s{sW}, 0
s_cbranch_scc1 k2_polled
s_mov_b32 s{sT2}, 0x40000
k2_poll:
buffer_load_dword v{vF}, v{vTS}, s[{S_CNT}:{S_CNT+3}], s{sJ} offen sc1 ;@cond
s_waitcnt vmcnt(0)
v_readfirstlane_b32 s{sT}, v{vF}
s_sub_u32 s{sT2}, s{sT2}, 1
s_cbranch_scc1 k2_polled
s_cmp_lt_u32 s{sT}, 4
s_cbranch_scc1 k2_poll
k2_polled:
s_barrier
""")
    def loadC(ks):
        r = XR + (ks % 16)*4
        return [f"s_add_u32 s{sT2}, s{sXB}, {(ks // 4)*4096}",
                f"buffer_load_dwordx4 v[{r}:{r+3}], v{vL16}, s[{S_CTX}:{S_CTX+3}], s{sT2} offen offset:{(ks % 4)*1024} sc1 ;@C{ks}"]
    def readWo(ks, dbs):
        out = []
        for db in dbs:
            for rd in range(2):
                r = WFR + (ks % 2)*16 + db*4 + rd*2
                out.append(f"ds_read_b64_tr_b16 v[{r}:{r+1}], v{vWR+db} offset:{(ks % 16)*4096 + rd*2048} ;@RO{ks}_{db}")
        return out
    for ks in range(12): A.extend(loadC(ks))
    A.extend(readWo(0, range(4)))
    srd(A, S_PF, S_KV, 16*MB, WS_PART)
    nxt = 12
    for ks in range(32):
        pre = []
        if ks == 15:
            pre += ["s_barrier"] + [f"v_xor_b32 v{vWR+db}, 0x10000, v{vWR+db}" for db in range(4)]
        pre.append(f"@wait vm C{ks}")
        x = XR + (ks % 16)*4
        mf = []
        for db in range(4):
            w = WFR + (ks % 2)*16 + db*4
            cin = "0" if ks == 0 else v(O + db*16, 16)
            mf.append([f"@wait lgkm RO{ks}_{db}", f"{M32} {v(O+db*16,16)}, {v(w,4)}, {v(x,4)}, {cin}"])
        fills = {0: [], 1: [], 2: [], 3: []}
        if ks < 31:
            for db in range(4): fills[min(db, 2)] += readWo(ks + 1, [db])
        for slot in (1, 3):
            if nxt < 32 and nxt - 15 <= ks:
                fills[slot] += loadC(nxt); nxt += 1
        A.extend(pre)
        A.extend(gaps(mf, fills))
    A(f"""
s_lshr_b32 s{sT}, s{sHEAD}, 2
s_lshl_b32 s{sT}, s{sT}, 21
s_lshl_b32 s{sT2}, s{sTB}, 15
s_add_u32 s{sT}, s{sT}, s{sT2}
s_and_b32 s{sT2}, s{sHEAD}, 3
s_lshl_b32 s{sT2}, s{sT2}, 13
s_add_u32 s{sT}, s{sT}, s{sT2}
s_add_u32 s{sT2}, s{sT}, 4096
s_nop 1
""")
    for db in range(4):
        for sp in range(2):
            o = O + db*16 + sp*8; d = QF + (db*2 + sp)*4
            for r in range(4): A(f"v_cvt_pk_bf16_f32 v{d+r}, v{o+2*r}, v{o+2*r+1}")
            A(f"buffer_store_dwordx4 {v(d,4)}, v{vL16}, s[{S_PF}:{S_PF+3}], s{sT if db < 2 else sT2} offen offset:{((db % 2)*2 + sp)*1024} sc1")
    stamp(A, 6)
    S_A, S_B, S_C, S_D, S_E = 8, 16, 20, 24, 64
    sBLK, sNT, sMT4, sO1, sO2, sO3 = 32, 40, 37, 41, 42, 50
    vZ, vONE = vTS, vF
    def sync(cnt_expr, target, between_g1=(), between_g0=(), vm="vmcnt(0)"):
        lp, l1, l2 = A.newlabel("k2_poll"), A.newlabel("k2_sy"), A.newlabel("k2_sy")
        A(f"s_waitcnt {vm}\ns_barrier")
        A(f"s_cmp_eq_u32 s{sG}, 0\ns_cbranch_scc1 {l1}")
        A.extend(flat(list(between_g1)))
        A(f"s_branch {l2}")
        A.label(l1)
        A.extend(cnt_expr)
        l3 = A.newlabel("k2_sy")
        A(f"""
s_cmp_lg_u32 s{sW}, 0
s_cbranch_scc1 {l3}
v_mov_b32 v{vZ}, 0
v_mov_b32 v{vONE}, 1
s_mov_b64 exec, 1
buffer_atomic_add v{vONE}, v{vZ}, s[{S_CNT}:{S_CNT+3}], s{sJ} offen sc1 ;@cond
s_mov_b64 exec, -1
{l3}:
""")
        A.extend(flat(list(between_g0)))
        A(f"""
s_cmp_lg_u32 s{sW}, 0
s_cbranch_scc1 {l2}
s_mov_b32 s{sR}, 0x40000
{lp}:
buffer_load_dword v{vONE}, v{vZ}, s[{S_CNT}:{S_CNT+3}], s{sJ} offen sc1 ;@cond
s_waitcnt vmcnt(0)
v_readfirstlane_b32 s{sT}, v{vONE}
s_sub_u32 s{sR}, s{sR}, 1
s_cbranch_scc1 {l2}
s_cmp_lt_u32 s{sT}, {target}
s_cbranch_scc1 {lp}
{l2}:
s_barrier
""")
    A(f"""
s_load_dwordx2 s[80:81], s[0:1], {ARG['x']}
s_load_dwordx2 s[82:83], s[0:1], {ARG['out']}
s_sub_u32 s{sT}, 15, s{sPAIR}
s_cmp_lt_u32 s{sHEAD}, 16
s_cselect_b32 s{sBLK}, s{sPAIR}, s{sT}
s_and_b32 s{sNT}, s{sHEAD}, 15
""")
    vWD3 = 216
    for i in range(3):
        A(f"""
v_add_u32 v{T}, {i*64}, v0
v_mul_u32_u24 v{T+1}, 43691, v{T}
v_lshrrev_b32 v{T+1}, 19, v{T+1}
v_mul_u32_u24 v{T+2}, 12, v{T+1}
v_sub_u32 v{T+2}, v{T}, v{T+2}
v_mul_u32_u24 v{vWD3+i}, 2752, v{T+1}
v_lshl_add_u32 v{vWD3+i}, v{T+2}, 4, v{vWD3+i}
""")
    SLOT = 24576
    srd(A, S_A, 68, 512*1376*2); srd(A, S_B, 70, 512*1376*2)
    A(f"""
s_mul_i32 s{sO1}, s{sW4}, {16*2752}
s_mul_i32 s{sT}, s{sNT}, 192
s_add_u32 s{sO1}, s{sO1}, s{sT}
s_mul_i32 s{sM0}, s{sW4}, 3072
""")
    def dmaG(n):
        out = []
        for mat in range(2):
            sr = S_A if mat == 0 else S_B
            for i in range(3):
                out.append([f"s_add_u32 m0, s{sM0}, {(n % 6)*SLOT + mat*12288 + i*1024}",
                            f"s_add_u32 s{sT}, s{sO1}, {n*64*2752}",
                            f"buffer_load_dwordx4 v{vWD3+i}, s[{sr}:{sr+3}], s{sT} offen lds ;@cond"])
        return out
    vPO, vXO, vMO, vS, vQ, vLW, vLR = 220, 221, 222, 224, 225, 226, 227
    PP, XRr, GA, SC, SH, F4, ST = 16, 80, 88, 104, 120, 136, 152
    LDS_ST = 144*1024
    p4pre = [f"s_lshl_b32 s{sT}, s{sW4}, 3", f"v_lshrrev_b32 v{T}, 3, v0", f"v_add_u32 v{T}, s{sT}, v{T}",
             f"v_and_b32 v{T+1}, 7, v0",
             f"v_lshlrev_b32 v{vPO}, 9, v{T}", f"v_lshl_add_u32 v{vPO}, v{T+1}, 4, v{vPO}",
             f"v_lshrrev_b32 v{T+2}, 1, v{T}", f"v_lshlrev_b32 v{T+2}, 4, v{T+2}", f"v_and_b32 v{T+3}, 1, v{T}",
             f"v_lshl_add_u32 v{T+2}, v{T+3}, 2, v{T+2}",
             f"v_lshlrev_b32 v{vMO}, 2, v{T+2}", f"v_lshlrev_b32 v{vXO}, 10, v{T+1}", f"v_lshl_add_u32 v{vXO}, v{T+2}, 1, v{vXO}",
             f"v_lshlrev_b32 v{vLR}, 5, v{T+1}", f"v_add_u32 v{vLR}, {LDS_ST}, v{vLR}", f"v_add_u32 v{vLW}, s{sT}, v{vLR}",
             f"s_lshl_b32 s{sO2}, s{sBLK}, 7", f"s_lshl_b32 s{sT}, s{sNT}, 3", f"s_add_u32 s{sO2}, s{sO2}, s{sT}",
             f"s_lshr_b32 s{sO3}, s{sO2}, 5", f"s_lshl_b32 s{sO3}, s{sO3}, 15", f"s_and_b32 s{sT}, s{sO2}, 31", f"s_lshl_b32 s{sT}, s{sT}, 4",
             f"s_add_u32 s{sO3}, s{sO3}, s{sT}",
             f"s_lshl_b32 s{sO2}, s{sO2}, 10", "s_waitcnt lgkmcnt(0)",
             f"s_mov_b32 s{S_C}, s80", f"s_mov_b32 s{S_C+1}, s81", f"s_mov_b32 s{S_C+2}, {2*MB}", f"s_mov_b32 s{S_C+3}, 0x20000",
             f"s_add_u32 s{S_E}, s{S_KV}, {WS_MOD}", f"s_addc_u32 s{S_E+1}, s{S_KV+1}, 0", f"s_mov_b32 s{S_E+2}, 12288", f"s_mov_b32 s{S_E+3}, 0x20000",
             f"s_movk_i32 s{sT}, 4096", f"s_movk_i32 s{sT2}, 8192"]
    for pp in range(2):
        p4pre += [f"buffer_load_dwordx2 {v(XRr+4*pp,2)}, v{vXO}, s[{S_C}:{S_C+3}], s{sO2} offen offset:{pp*512} ;@cond",
                  f"buffer_load_dwordx2 {v(XRr+4*pp+2,2)}, v{vXO}, s[{S_C}:{S_C+3}], s{sO2} offen offset:{pp*512+16} ;@cond"]
        for hh in range(2):
            p4pre += [f"buffer_load_dwordx4 {v(GA+8*pp+4*hh,4)}, v{vMO}, s[{S_E}:{S_E+3}], s{sT} offen offset:{pp*1024 + hh*32} ;@cond",
                      f"buffer_load_dwordx4 {v(SH+8*pp+4*hh,4)}, v{vMO}, s[{S_E}:{S_E+3}], s{sT} offen offset:{2048 + pp*1024 + hh*32} ;@cond",
                      f"buffer_load_dwordx4 {v(SC+8*pp+4*hh,4)}, v{vMO}, s[{S_E}:{S_E+3}], s{sT2} offen offset:{pp*1024 + hh*32} ;@cond"]
    sync([f"s_add_u32 s{sJ}, s{sPAIR}, 64", f"s_lshl_b32 s{sJ}, s{sJ}, 7"], 32,
         between_g1=dmaG(0) + dmaG(1) + dmaG(2), between_g0=p4pre)
    stamp(A, 7)
    A(f"s_cmp_lg_u32 s{sG}, 0\ns_cbranch_scc1 k2_p4_g1")
    for x in range(8):
        for pp in range(2):
            A(f"s_add_u32 s{sT}, s{sO3}, {x*2*MB + pp*16384}")
            A(f"buffer_load_dwordx4 {v(PP+8*x+4*pp,4)}, v{vPO}, s[{S_PF}:{S_PF+3}], s{sT} offen sc1 ;@P{x}")
    srd(A, S_C, S_KV, 2*MB, WS_X1); srd(A, S_E, S_KV, 2*MB, WS_Y)
    A(f"s_add_u32 s{sO2}, s{sO3}, 16384")
    for x in range(8):
        A(f"@wait vm P{x}")
        for j in range(8):
            r = PP + 8*x + j
            if x == 0:
                A(f"v_lshlrev_b32 v{F4+2*j}, 16, v{r}\nv_and_b32 v{F4+2*j+1}, 0xffff0000, v{r}")
            else:
                A(f"v_lshlrev_b32 v{T}, 16, v{r}\nv_and_b32 v{r}, 0xffff0000, v{r}\nv_add_f32 v{F4+2*j}, v{F4+2*j}, v{T}\nv_add_f32 v{F4+2*j+1}, v{F4+2*j+1}, v{r}")
    X = PP
    for j in range(8): A(f"v_lshlrev_b32 v{X+2*j}, 16, v{XRr+j}\nv_and_b32 v{X+2*j+1}, 0xffff0000, v{XRr+j}")
    for j in range(16): A(f"v_fmac_f32 v{X+j}, v{F4+j}, v{GA+j}")
    for j in range(8): A(f"v_cvt_pk_bf16_f32 v{XRr+j}, v{X+2*j}, v{X+2*j+1}")
    A(f"buffer_store_dwordx4 {v(XRr,4)}, v{vPO}, s[{S_C}:{S_C+3}], s{sO3} offen sc1")
    A(f"buffer_store_dwordx4 {v(XRr+4,4)}, v{vPO}, s[{S_C}:{S_C+3}], s{sO2} offen sc1")
    for j in range(8): A(f"v_lshlrev_b32 v{X+2*j}, 16, v{XRr+j}\nv_and_b32 v{X+2*j+1}, 0xffff0000, v{XRr+j}")
    def red(r):
        A(f"""s_nop 1
v_add_f32_dpp v{r}, v{r}, v{r} row_ror:8 row_mask:0xf bank_mask:0xf
v_mov_b32 v{T}, v{r}
s_nop 1
v_permlane16_swap_b32 v{T}, v{r}
s_nop 0
v_add_f32 v{r}, v{r}, v{T}
v_mov_b32 v{T}, v{r}
s_nop 1
v_permlane32_swap_b32 v{T}, v{r}
s_nop 0
v_add_f32 v{r}, v{r}, v{T}""")
    A(f"v_add_f32 v{vS}, v{X}, v{X+1}")
    for j in range(2, 16): A(f"v_add_f32 v{vS}, v{vS}, v{X+j}")
    red(vS)
    A(f"v_mul_f32 v{vS}, 0x3c000000, v{vS}")
    for j in range(16): A(f"v_sub_f32 v{F4+j}, v{X+j}, v{vS}")
    A(f"v_mul_f32 v{vQ}, v{F4}, v{F4}")
    for j in range(1, 16): A(f"v_fmac_f32 v{vQ}, v{F4+j}, v{F4+j}")
    red(vQ)
    A(f"ds_write_b64 v{vLW}, v[{vS}:{vQ}]\ns_waitcnt lgkmcnt(0)")
    A.label("k2_p4_g1")
    A("s_barrier")
    A(f"s_cmp_lg_u32 s{sG}, 0\ns_cbranch_scc1 k2_p4_done")
    for i in range(2): A(f"ds_read_b128 {v(ST+4*i,4)}, v{vLR} offset:{16*i}")
    A("s_waitcnt lgkmcnt(0)")
    A(f"""
v_add_f32 v{vS}, v{ST}, v{ST+2}
v_add_f32 v{T}, v{ST+4}, v{ST+6}
v_add_f32 v{vS}, v{vS}, v{T}
v_mul_f32 v{vS}, 0x3e800000, v{vS}
v_add_f32 v{vQ}, v{ST+1}, v{ST+3}
v_add_f32 v{T}, v{ST+5}, v{ST+7}
v_add_f32 v{vQ}, v{vQ}, v{T}
v_mov_b32 v{T+1}, 0
""")
    for i in range(4): A(f"v_sub_f32 v{T}, v{ST+2*i}, v{vS}\nv_fmac_f32 v{T+1}, v{T}, v{T}")
    A(f"""
v_fmac_f32 v{vQ}, 0x43000000, v{T+1}
v_mov_b32 v{T}, 0x3727c5ac
v_fmac_f32 v{T}, 0x3b000000, v{vQ}
v_rsq_f32 v{vQ}, v{T}
""")
    for j in range(16): A(f"v_sub_f32 v{X+j}, v{X+j}, v{vS}")
    for j in range(16): A(f"v_mul_f32 v{X+j}, v{X+j}, v{vQ}")
    for j in range(16): A(f"v_fma_f32 v{X+j}, v{X+j}, v{SC+j}, v{SH+j}")
    for j in range(8): A(f"v_cvt_pk_bf16_f32 v{F4+j}, v{X+2*j}, v{X+2*j+1}")
    A(f"buffer_store_dwordx4 {v(F4,4)}, v{vPO}, s[{S_E}:{S_E+3}], s{sO3} offen sc1")
    A(f"buffer_store_dwordx4 {v(F4+4,4)}, v{vPO}, s[{S_E}:{S_E+3}], s{sO2} offen sc1")
    A.label("k2_p4_done")
    ACC5, YF, WF5 = 16, 112, 176
    vWR5, vGO = 228, 231
    p5pre = [f"v_lshrrev_b32 v{vGO+1}, 5, v0", f"v_and_b32 v{vGO+2}, 15, v0", f"v_lshrrev_b32 v{vGO+3}, 2, v{vGO+2}",
             f"v_lshl_add_u32 v{vGO+3}, v{vGO+1}, 2, v{vGO+3}", f"v_mul_u32_u24 v{vWR5}, 192, v{vGO+3}",
             f"v_and_b32 v{vGO+3}, 16, v0", f"v_lshl_add_u32 v{vWR5}, v{vGO+3}, 1, v{vWR5}",
             f"v_lshlrev_b32 v{vGO}, 6, v{vGO+3}", f"v_lshl_add_u32 v{vGO}, v{vGO+1}, 8, v{vGO}", f"v_lshl_add_u32 v{vGO}, v{vGO+2}, 4, v{vGO}",
             f"v_and_b32 v{vGO+3}, 3, v0", f"v_lshl_add_u32 v{vWR5}, v{vGO+3}, 3, v{vWR5}",
             f"v_add_u32 v{vWR5+1}, {2*SLOT}, v{vWR5}", f"v_add_u32 v{vWR5+2}, {4*SLOT}, v{vWR5}",
             f"s_lshl_b32 s{sO2}, s{sBLK}, 2", f"s_add_u32 s{sO2}, s{sO2}, s{sW4}", f"s_lshl_b32 s{sO3}, s{sO2}, 11",
             f"s_lshl_b32 s{sO2}, s{sO2}, 15",
             f"s_mul_i32 s{sT}, s{sNT}, {3*131072}", f"s_add_u32 s{sO3}, s{sO3}, s{sT}",
             f"s_add_u32 s{S_C}, s{S_KV}, {WS_G}", f"s_addc_u32 s{S_C+1}, s{S_KV+1}, 0", f"s_mov_b32 s{S_C+2}, {43*131072}", f"s_mov_b32 s{S_C+3}, 0x20000",
             "s_mov_b32 s56, 0xc0135761", "s_mov_b32 s57, 0xbdd2d3e8"]
    def readG(ks, cts=range(6)):
        n = ks // 4; sl = n % 6
        out = []
        for ct in cts:
            for rd in range(2):
                r = WF5 + (ks % 2)*24 + ct*4 + rd*2
                off = (sl % 2)*SLOT + (ct // 3)*12288 + ((ks % 4)*16 + rd*8)*192 + (ct % 3)*64
                out.append(f"ds_read_b64_tr_b16 v[{r}:{r+1}], v{vWR5 + sl//2} offset:{off} ;@RG{ks}_{ct}")
        return out
    sync([f"s_add_u32 s{sJ}, s{sBLK}, 72", f"s_lshl_b32 s{sJ}, s{sJ}, 7"], 16,
         between_g1=dmaG(3) + dmaG(4) + dmaG(5), between_g0=p5pre + readG(0))
    stamp(A, 8)
    vWD6 = 219
    BASE6 = [48, 64, 80, 96, 144, 0, 16, 32, 112, 128, 48]
    def dmaD(st, tag="cond"):
        return [[f"s_add_u32 m0, s{sM1}, {BASE6[st]*1024 + m*1024}", f"s_add_u32 s{sT}, s{sDK}, {st*32768 + m*8192}",
                 f"buffer_load_dwordx4 v{vWD6}, s[{S_D}:{S_D+3}], s{sT} offen lds ;@{tag}"] for m in range(4)]
    p6addr = [f"v_lshrrev_b32 v{T+8}, 3, v0", f"v_and_b32 v{T+9}, 7, v0", f"v_lshrrev_b32 v{T+10}, 4, v0",
              f"v_lshlrev_b32 v{vWD6}, 1, v{T+10}", f"v_xor_b32 v{vWD6}, v{vWD6}, v{T+9}", f"v_lshlrev_b32 v{vWD6}, 4, v{vWD6}",
              f"v_lshl_add_u32 v{vWD6}, v{T+8}, 10, v{vWD6}",
              f"s_mov_b32 s{S_D}, s72", f"s_mov_b32 s{S_D+1}, s73", f"s_mov_b32 s{S_D+2}, {1376*1024}", f"s_mov_b32 s{S_D+3}, 0x20000",
              f"s_lshl_b32 s{sM1}, s{sW4}, 12", f"s_mul_i32 s{sDK}, s{sW4}, {11*32768}", f"s_and_b32 s{sT}, s{sHEAD}, 7", f"s_lshl_b32 s{sT}, s{sT}, 7",
              f"s_add_u32 s{sDK}, s{sDK}, s{sT}"]
    A(f"s_cmp_eq_u32 s{sG}, 0\ns_cbranch_scc1 k2_p5_g0")
    A("s_barrier"); A.extend(flat(dmaG(6)))
    A("s_waitcnt vmcnt(6)\ns_barrier"); A.extend(flat(dmaG(7)))
    A.extend([x.replace(f"v{T+8}", "v232").replace(f"v{T+9}", "v233").replace(f"v{T+10}", "v234") for x in p6addr])
    A("s_waitcnt vmcnt(0)\ns_barrier")
    for st in range(5): A.extend(flat(dmaD(st)))
    A("s_barrier")
    for st in range(5, 10): A.extend(flat(dmaD(st)))
    A("s_branch k2_p5_done")
    A.label("k2_p5_g0")
    def loadY(ks):
        r = YF + (ks % 16)*4
        return [f"s_add_u32 s{sT2}, s{sO2}, {(ks // 4)*4096}",
                f"buffer_load_dwordx4 v[{r}:{r+3}], v{vL16}, s[{S_E}:{S_E+3}], s{sT2} offen offset:{(ks % 4)*1024} sc1 ;@Y{ks}"]
    for ks in range(16): A.extend(loadY(ks))
    for ks in range(32):
        pre = []
        if ks in (5, 11, 23): pre.append("s_barrier")
        pre.append(f"@wait vm Y{ks}")
        mf = []
        for ct in range(6):
            cin = "0" if ks == 0 else v(ACC5 + ct*16, 16)
            mf.append([f"@wait lgkm RG{ks}_{ct}", f"{M32} {v(ACC5+ct*16,16)}, {v(WF5+(ks%2)*24+ct*4,4)}, {v(YF+(ks%16)*4,4)}, {cin}"])
        fills = {i: (readG(ks + 1, [i]) if ks < 31 else []) for i in range(6)}
        if 1 <= ks <= 16: fills[2] = fills[2] + loadY(ks + 15)
        A.extend(pre)
        A.extend(gaps(mf, fills))
    A("s_barrier")
    TT = WF5
    A(f"v_mov_b32 v{vGO+1}, s56")
    for tl in range(3):
        g0 = ACC5 + tl*16; u0 = ACC5 + (3 + tl)*16
        for r in range(16): A(f"v_mul_f32 v{TT+r}, v{g0+r}, v{g0+r}")
        for r in range(16): A(f"v_fma_f32 v{TT+r}, v{TT+r}, s57, v{vGO+1}")
        for r in range(16): A(f"v_mul_f32 v{TT+r}, v{TT+r}, v{g0+r}")
        for r in range(16): A(f"v_exp_f32 v{TT+r}, v{TT+r}")
        for r in range(16): A(f"v_mul_f32 v{g0+r}, v{g0+r}, v{u0+r}")
        for r in range(16): A(f"v_add_f32 v{TT+r}, 1.0, v{TT+r}")
        for r in range(16): A(f"v_rcp_f32 v{TT+r}, v{TT+r}")
        A("s_nop 0")
        for r in range(16): A(f"v_mul_f32 v{g0+r}, v{g0+r}, v{TT+r}")
        for r in range(8): A(f"v_cvt_pk_bf16_f32 v{u0+r}, v{g0+2*r}, v{g0+2*r+1}")
        A(f"s_add_u32 s{sT}, s{sO3}, {tl*131072}")
        for sp in range(2):
            A(f"buffer_store_dwordx4 {v(u0+4*sp,4)}, v{vGO}, s[{S_C}:{S_C+3}], s{sT} offen offset:{sp*512} sc1")
    A.label("k2_p5_done")
    stamp(A, 9)
    ACC6, AF6, WF6 = 16, 80, 176
    vWR6 = 232
    RES, GB = 208, 244
    vRO, vRD, vWW = 228, 229, 230
    PITCH = 272; PART = 64*PITCH
    p6pre = p6addr + [
        f"v_and_b32 v{T+8}, 15, v0", f"v_lshrrev_b32 v{T+8}, 2, v{T+8}", f"v_and_b32 v{T+9}, 1, v{T+10}",
        f"v_lshl_add_u32 v{T+8}, v{T+9}, 2, v{T+8}", f"v_lshrrev_b32 v{T+9}, 1, v{T+8}", f"v_lshrrev_b32 v{T+10}, 1, v{T+10}",
        f"v_lshl_add_u32 v{T+8}, v{T+10}, 4, v{T+8}", f"v_lshlrev_b32 v{vWR6}, 7, v{T+8}", f"v_lshl_add_u32 v{vWR6}, v{T+9}, 5, v{vWR6}",
        f"v_and_b32 v{T+8}, 3, v0", f"v_lshl_add_u32 v{vWR6}, v{T+8}, 3, v{vWR6}", f"v_add_u32 v{vWR6}, s{sM1}, v{vWR6}"]
    p6pre += [f"v_xor_b32 v{vWR6+t}, {32*t}, v{vWR6}" for t in range(1, 4)]
    p6pre += [f"v_add_u32 v{vWR6+4*bb+t}, {bb*65536}, v{vWR6+t}" for bb in (1, 2) for t in range(4)]
    p6pre += [f"s_lshl_b32 s{sMT4}, s{sBLK}, 1", f"s_bfe_u32 s{sT}, s{sHEAD}, 0x10003", f"s_add_u32 s{sMT4}, s{sMT4}, s{sT}",
              f"s_and_b32 s{sNT}, s{sHEAD}, 7",
              f"s_lshl_b32 s{sO1}, s{sMT4}, 12", f"s_mul_i32 s{sT}, s{sW4}, {11*131072}", f"s_add_u32 s{sO1}, s{sO1}, s{sT}",
              f"s_lshl_b32 s{sT}, s{sW4}, 3", f"v_lshrrev_b32 v{T+8}, 3, v0", f"v_add_u32 v{T+8}, s{sT}, v{T+8}", f"v_and_b32 v{T+9}, 7, v0",
              f"v_lshlrev_b32 v{vRO}, 10, v{T+8}", f"v_lshl_add_u32 v{vRO}, v{T+9}, 4, v{vRO}",
              f"v_lshrrev_b32 v{T+10}, 1, v{T+9}", f"v_lshlrev_b32 v{vRD}, 10, v{T+10}", f"v_lshl_add_u32 v{vRD}, v{T+8}, 4, v{vRD}",
              f"v_and_b32 v{T+10}, 1, v{T+9}", f"v_lshl_add_u32 v{vRD}, v{T+10}, 3, v{vRD}",
              f"v_lshlrev_b32 v{vWW}, 5, v{T+9}",
              f"s_add_u32 s{S_A}, s{S_KV}, {WS_X1}", f"s_addc_u32 s{S_A+1}, s{S_KV+1}, 0", f"s_mov_b32 s{S_A+2}, {2*MB}", f"s_mov_b32 s{S_A+3}, 0x20000",
              f"s_add_u32 s{S_B}, s{S_KV}, {WS_MOD}", f"s_addc_u32 s{S_B+1}, s{S_KV+1}, 0", f"s_mov_b32 s{S_B+2}, 12288", f"s_mov_b32 s{S_B+3}, 0x20000",
              f"s_mov_b32 s{S_E}, s82", f"s_mov_b32 s{S_E+1}, s83", f"s_mov_b32 s{S_E+2}, {2*MB}", f"s_mov_b32 s{S_E+3}, 0x20000",
              f"s_lshl_b32 s{sO2}, s{sMT4}, 16", f"s_lshl_b32 s{sT}, s{sNT}, 12", f"s_add_u32 s{sT}, s{sT}, s{sO2}", f"s_add_u32 s{sT2}, s{sT}, 32768",
              f"buffer_load_dwordx2 {v(RES,2)}, v{vRD}, s[{S_A}:{S_A+3}], s{sT} offen sc1 ;@cond",
              f"buffer_load_dwordx2 {v(RES+2,2)}, v{vRD}, s[{S_A}:{S_A+3}], s{sT} offen offset:512 sc1 ;@cond",
              f"buffer_load_dwordx2 {v(RES+4,2)}, v{vRD}, s[{S_A}:{S_A+3}], s{sT2} offen sc1 ;@cond",
              f"buffer_load_dwordx2 {v(RES+6,2)}, v{vRD}, s[{S_A}:{S_A+3}], s{sT2} offen offset:512 sc1 ;@cond",
              f"s_lshl_b32 s{sT}, s{sNT}, 8", f"s_add_u32 s{sT}, s{sT}, {5*2048}",
              f"buffer_load_dwordx4 {v(GB,4)}, v{vWW}, s[{S_B}:{S_B+3}], s{sT} offen ;@cond",
              f"buffer_load_dwordx4 {v(GB+4,4)}, v{vWW}, s[{S_B}:{S_B+3}], s{sT} offen offset:16 ;@cond",
              f"s_lshl_b32 s{sT}, s{sNT}, 7", f"s_add_u32 s{sO2}, s{sO2}, s{sT}", f"s_add_u32 s{sO3}, s{sO2}, 32768",
              f"v_mul_u32_u24 v{vRD}, {PITCH}, v{T+8}", f"v_lshl_add_u32 v{vRD}, v{T+9}, 5, v{vRD}",
              f"v_and_b32 v{T+8}, 15, v0", f"v_mul_u32_u24 v{vWW}, {PITCH}, v{T+8}", f"v_lshrrev_b32 v{T+8}, 4, v0",
              f"v_lshl_add_u32 v{vWW}, v{T+8}, 4, v{vWW}", f"s_mul_i32 s{sT}, s{sW4}, {PART}", f"v_add_u32 v{vWW}, s{sT}, v{vWW}"]
    def readD(st):
        out = []
        for t in range(4):
            for rd in range(2):
                r = WF6 + (st % 2)*16 + t*4 + rd*2
                off = BASE6[st]*1024 + rd*1024
                out.append(f"ds_read_b64_tr_b16 v[{r}:{r+1}], v{vWR6 + 4*(off // 65536) + t} offset:{off % 65536} ;@RD{st}")
        return out
    sync([f"s_add_u32 s{sJ}, s{sBLK}, 88", f"s_lshl_b32 s{sJ}, s{sJ}, 7"], 16, between_g0=p6pre + readD(0))
    stamp(A, 10)
    A(f"s_cmp_lg_u32 s{sG}, 0\ns_cbranch_scc1 k2_p6_g1")
    def loadGf(st):
        out = []
        for Tt in range(4):
            r = AF6 + (st % 6)*16 + Tt*4
            out.append(([f"s_add_u32 s{sT2}, s{sO1}, {st*131072}"] if Tt == 0 else []) +
                       [f"buffer_load_dwordx4 v[{r}:{r+3}], v{vL16}, s[{S_C}:{S_C+3}], s{sT2} offen offset:{Tt*1024} sc1 ;@G{st}"])
        return out
    for st in range(5): A.extend(flat(loadGf(st)))
    for st in range(11):
        mf = []
        for t in range(4):
            for Tt in range(4):
                d = ACC6 + (t*4 + Tt)*4
                cin = "0" if st == 0 else v(d, 4)
                mf.append(f"{M16} {v(d,4)}, {v(WF6+(st%2)*16+t*4,4)}, {v(AF6+(st%6)*16+Tt*4,4)}, {cin}")
        fill = []
        if st == 9: fill.append("@wait vm D10")
        if st + 1 < 11: fill += readD(st + 1)
        if st + 5 < 11: fill += loadGf(st + 5)
        if st == 0: fill += dmaD(10, "D10")
        A(f"@wait vm G{st} lgkm RD{st}")
        A.extend(flat(interleave(mf, fill) if fill else mf))
    A.label("k2_p6_g1")
    A("s_barrier")
    A(f"s_cmp_lg_u32 s{sG}, 0\ns_cbranch_scc1 k2_p6_g1b\ns_nop 3")
    for t in range(4):
        for Tt in range(4):
            A(f"ds_write_b128 v{vWW}, {v(ACC6+(t*4+Tt)*4,4)} offset:{Tt*16*PITCH + t*64}")
    A("s_waitcnt lgkmcnt(0)")
    A.label("k2_p6_g1b")
    A("s_barrier")
    A(f"s_cmp_lg_u32 s{sG}, 0\ns_cbranch_scc1 k2_fin")
    PR = 16
    for ps in range(2):
        for w in range(4):
            for hh in range(2):
                A(f"ds_read_b128 {v(PR+(ps*4+w)*8+hh*4,4)}, v{vRD} offset:{w*PART + ps*32*PITCH + hh*16} ;@PR{ps}")
    for ps in range(2):
        A(f"@wait lgkm PR{ps}")
        bb = PR + ps*32
        for j in range(8):
            A(f"v_add_f32 v{bb+j}, v{bb+j}, v{bb+8+j}")
            A(f"v_add_f32 v{bb+16+j}, v{bb+16+j}, v{bb+24+j}")
        for j in range(8): A(f"v_add_f32 v{bb+j}, v{bb+j}, v{bb+16+j}")
        x = 96 + ps*8
        for j in range(4):
            A(f"v_lshlrev_b32 v{x+2*j}, 16, v{RES+ps*4+j}")
            A(f"v_and_b32 v{x+2*j+1}, 0xffff0000, v{RES+ps*4+j}")
        for j in range(8): A(f"v_fmac_f32 v{x+j}, v{bb+j}, v{GB+j}")
        for j in range(4): A(f"v_cvt_pk_bf16_f32 v{RES+ps*4+j}, v{x+2*j}, v{x+2*j+1}")
        A(f"buffer_store_dwordx4 {v(RES+ps*4,4)}, v{vRO}, s[{S_E}:{S_E+3}], s{sO2 if ps == 0 else sO3} offen")
    A("s_branch k2_fin")
    A.label("k2_stage")
    A(f"s_cmp_ge_u32 s{sDJ}, s{sNS}\ns_cbranch_scc1 k2_stage_wo")
    A.extend(flat(stage_parts()))
    A(f"s_setpc_b64 s[{sRET}:{sRET+1}]")
    A.label("k2_stage_wo")
    A.extend(wo_parts())
    A(f"s_setpc_b64 s[{sRET}:{sRET+1}]")
    for (p, unit, lab, ret) in slow_sites:
        A.label(lab)
        A("s_nop 7\ns_nop 7")
        A.extend(rowmax(p, vDEL))
        A(f"s_call_b64 s[{sRET}:{sRET+1}], k2_rescale")
        for e in range(unit*8, unit*8 + 8): A.extend(sm_elem(p, e))
        A("s_nop 0")
        e = unit*8 + 7
        A(f"v_add_f32 v{vTS}, v{vTS}, v{T + e % 4}")
        A(f"v_cvt_pk_bf16_f32 v{P + 8*p + e//2}, v{T + (e-1) % 4}, v{T + e % 4}")
        A(f"s_nop 1\ns_branch {ret}")
    A.label("k2_rescale")
    A(f"""
v_max_f32 v{vDEL}, 0, v{vDEL}
v_sub_f32 v{vF}, 0, v{vDEL}
v_exp_f32 v{vF}, v{vF}
""")
    for r in range(32): A(f"v_sub_f32 v{S+r}, v{S+r}, v{vDEL}")
    for r in range(16): A(f"v_sub_f32 v{NEGM+r}, v{NEGM+r}, v{vDEL}")
    for r in range(64): A(f"v_mul_f32 v{O+r}, v{O+r}, v{vF}")
    A(f"v_mul_f32 v{vL}, v{vL}, v{vF}\ns_nop 1\ns_setpc_b64 s[{sRET}:{sRET+1}]")
    A.label("k2_fin")
    stamp_flush(A, 1, 8, sW)
    A.label(f"{name}_end")
    A("s_endpgm")
    A.lines = resolve_waits(A.lines)
    return name, A, desc(name, 256, 256), (256, 512, 160*1024)

def k35(which):
    A = Asm()
    name = f"k{which}_kernel"
    header(A, name)
    K3 = which == 3
    NSTEP = 32 if K3 else 11
    S_ACT, S_W, S_RES, S_MOD, S_O1, S_O2, S_ST, S_WG, S_WU, S_UB = 8, 12, 16, 20, 24, 28, 32, 36, 40, 44
    sW, sMT, sNT, sT, sT2, sAO, sWO, sLB, sCNT, sM0 = 48, 49, 50, 51, 52, 53, 54, 55, 56, 57
    vL16, vWD, vWR, vT, vT2, vT3, vTID = 1, 2, 3, 7, 8, 9, 10
    ACC, AF, WF = 16, 80, 160
    R = 4
    A(f"""
s_cmp_ge_u32 s2, 256
s_cbranch_scc1 {name}_end
""")
    stamp(A, 0)
    A(f"""
s_load_dwordx2 s[64:65], s[0:1], {ARG['wo'] if K3 else ARG['wd']}
s_load_dwordx2 s[66:67], s[0:1], 112
s_load_dwordx2 s[68:69], s[0:1], {ARG['x'] if K3 else ARG['out']}
s_load_dwordx4 s[72:75], s[0:1], {ARG['wg']}
v_mov_b32 v{vTID}, v0
v_lshrrev_b32 v1, 6, v0
v_and_b32 v0, 63, v0
s_and_b32 s{sT}, s2, 7
v_readfirstlane_b32 s{sW}, v1
s_lshr_b32 s{sT2}, s2, 3
s_and_b32 s{sNT}, s{sT2}, 7
s_lshr_b32 s{sT2}, s{sT2}, 3
s_lshl_b32 s{sMT}, s{sT}, 2
s_add_u32 s{sMT}, s{sMT}, s{sT2}
v_lshlrev_b32 v{vL16}, 4, v0
; W dma voffset: (l/8)*1024 + ((l%8) ^ ((l>>4)<<1))*16
v_lshrrev_b32 v{vT}, 3, v0
v_and_b32 v{vT2}, 7, v0
v_lshrrev_b32 v{vT3}, 4, v0
v_lshlrev_b32 v{vWD}, 1, v{vT3}
v_xor_b32 v{vWD}, v{vWD}, v{vT2}
v_lshlrev_b32 v{vWD}, 4, v{vWD}
v_lshl_add_u32 v{vWD}, v{vT}, 10, v{vWD}
; tr read addr: g=l/16, r=(l%16)/4, c=l%4: row=16(g>>1)+4(g&1)+r ; swz=((row>>1)&3) ; addr=row*128 + swz*32 + c*8 + wave*ring
v_and_b32 v{vT}, 15, v0
v_lshrrev_b32 v{vT}, 2, v{vT}             ; r
v_and_b32 v{vT2}, 1, v{vT3}
v_lshl_add_u32 v{vT}, v{vT2}, 2, v{vT}    ; 4(g&1)+r
v_lshrrev_b32 v{vT2}, 1, v{vT}            ; swz
v_lshrrev_b32 v{vT3}, 1, v{vT3}
v_lshl_add_u32 v{vT}, v{vT3}, 4, v{vT}    ; row
v_lshlrev_b32 v{vWR}, 7, v{vT}
v_lshl_add_u32 v{vWR}, v{vT2}, 5, v{vWR}
v_and_b32 v{vT}, 3, v0
v_lshl_add_u32 v{vWR}, v{vT}, 3, v{vWR}
s_mul_i32 s{sLB}, s{sW}, {(R+1)*4096}
v_add_u32 v{vWR}, s{sLB}, v{vWR}
v_xor_b32 v{vWR+1}, 32, v{vWR}
v_xor_b32 v{vWR+2}, 64, v{vWR}
v_xor_b32 v{vWR+3}, 96, v{vWR}
s_waitcnt lgkmcnt(0)
""")
    if K3:
        srd(A, S_ACT, 66, 16*MB, WS_CTX); srd(A, S_W, 64, 4*MB); srd(A, S_RES, 68, 2*MB)
        srd(A, S_O1, 66, 2*MB, WS_X1); srd(A, S_O2, 66, 2*MB, WS_Y); srd(A, S_ST, 66, 131072, WS_STAT)
        srd(A, S_WG, 72, 512*1376*2); srd(A, S_WU, 74, 512*1376*2); srd(A, S_UB, 66, 2*1376*8, WS_UB)
        TSTR, KSTR = 131072, 1024
    else:
        srd(A, S_ACT, 66, 43*131072, WS_G); srd(A, S_W, 64, 1376*512*2); srd(A, S_RES, 66, 2*MB, WS_X1)
        srd(A, S_O1, 68, 2*MB)
        TSTR, KSTR = 1024, 131072
    srd(A, S_MOD, 66, 16384 + 6144, WS_MOD)
    A(f"""
s_mul_i32 s{sAO}, s{sMT}, {4*TSTR}
s_mul_i32 s{sT}, s{sW}, {NSTEP*KSTR}
s_add_u32 s{sAO}, s{sAO}, s{sT}
s_mul_i32 s{sWO}, s{sW}, {NSTEP*32*1024}
s_lshl_b32 s{sT}, s{sNT}, 7
s_add_u32 s{sWO}, s{sWO}, s{sT}
""")
    def issue(st):
        out = []
        slot = st % (R + 1)
        for m in range(4):
            out.append([f"s_add_u32 m0, s{sLB}, {slot*4096 + m*1024}",
                        f"s_add_u32 s{sT}, s{sWO}, {st*32768 + m*8192}",
                        f"buffer_load_dwordx4 v{vWD}, s[{S_W}:{S_W+3}], s{sT} offen lds ;@W{st}"])
        for T in range(4):
            r = AF + slot*16 + T*4
            out.append([f"s_add_u32 s{sT2}, s{sAO}, {st*KSTR + T*TSTR}",
                        f"buffer_load_dwordx4 v[{r}:{r+3}], v{vL16}, s[{S_ACT}:{S_ACT+3}], s{sT2} offen ;@A{st}"])
        return out
    def readW(st):
        out = []
        for t in range(4):
            for rd in range(2):
                r = WF + (st % 2)*16 + t*4 + rd*2
                out.append(f"ds_read_b64_tr_b16 v[{r}:{r+1}], v{vWR+t} offset:{(st % (R+1))*4096 + rd*1024} ;@RW{st}")
        return out
    def flat(x): return [y for z in x for y in (z if isinstance(z, list) else [z])]
    for st in range(R): A.extend(flat(issue(st)))
    A("@wait vm W0")
    stamp(A, 1)
    A.extend(readW(0))
    for st in range(NSTEP):
        mf = []
        for t in range(4):
            for T in range(4):
                d = ACC + (t*4 + T)*4
                cin = "0" if st == 0 else v(d, 4)
                mf.append(f"{M16} {v(d,4)}, {v(WF+(st%2)*16+t*4,4)}, {v(AF+(st%(R+1))*16+T*4,4)}, {cin}")
        fill = []
        if st + R < NSTEP: fill += issue(st + R)
        if st + 1 < NSTEP: fill += [f"@wait vm W{st+1}"] + readW(st + 1)
        A(f"@wait vm A{st} lgkm RW{st}")
        A.extend(interleave(mf, fill) if fill else mf)
    stamp(A, 2)
    RES, GA, SC = 80, 88, 96
    vRO, vMO, vRD, vWRr = 11, 12, 13, 14
    A(f"""
v_lshrrev_b32 v{vT}, 3, v{vTID}           ; token (0..31)
v_and_b32 v{vT2}, 7, v{vTID}
v_lshlrev_b32 v{vRO}, 10, v{vT}
v_lshl_add_u32 v{vRO}, v{vT2}, 4, v{vRO}
v_lshlrev_b32 v{vMO}, 5, v{vT2}
s_lshl_b32 s{sAO}, s{sMT}, 16
s_lshl_b32 s{sT}, s{sNT}, 7
s_add_u32 s{sAO}, s{sAO}, s{sT}
s_add_u32 s{sWO}, s{sAO}, 32768
s_lshl_b32 s{sT}, s{sNT}, 8
s_add_u32 s{sT2}, s{sT}, {(2 if K3 else 5)*2048}
v_lshrrev_b32 v{vT3}, 1, v{vT2}
v_lshlrev_b32 v{vRD}, 10, v{vT3}
v_lshl_add_u32 v{vRD}, v{vT}, 4, v{vRD}
v_and_b32 v{vT3}, 1, v{vT2}
v_lshl_add_u32 v{vRD}, v{vT3}, 3, v{vRD}
s_lshl_b32 s{sCNT}, s{sMT}, 16
s_lshl_b32 s{sM0}, s{sNT}, 12
s_add_u32 s{sCNT}, s{sCNT}, s{sM0}
s_add_u32 s{sM0}, s{sCNT}, 32768
buffer_load_dwordx2 v[{RES}:{RES+1}], v{vRD}, s[{S_RES}:{S_RES+3}], s{sCNT} offen
buffer_load_dwordx2 v[{RES+2}:{RES+3}], v{vRD}, s[{S_RES}:{S_RES+3}], s{sCNT} offen offset:512
buffer_load_dwordx2 v[{RES+4}:{RES+5}], v{vRD}, s[{S_RES}:{S_RES+3}], s{sM0} offen
buffer_load_dwordx2 v[{RES+6}:{RES+7}], v{vRD}, s[{S_RES}:{S_RES+3}], s{sM0} offen offset:512
buffer_load_dwordx4 v[{GA}:{GA+3}], v{vMO}, s[{S_MOD}:{S_MOD+3}], s{sT2} offen
buffer_load_dwordx4 v[{GA+4}:{GA+7}], v{vMO}, s[{S_MOD}:{S_MOD+3}], s{sT2} offen offset:16
""")
    if K3:
        A(f"""
s_add_u32 s{sT2}, s{sT}, {4*2048}
buffer_load_dwordx4 v[{SC}:{SC+3}], v{vMO}, s[{S_MOD}:{S_MOD+3}], s{sT2} offen
buffer_load_dwordx4 v[{SC+4}:{SC+7}], v{vMO}, s[{S_MOD}:{S_MOD+3}], s{sT2} offen offset:16
""")
    PITCH = 272; PART = 64*PITCH; RB = 4*(R+1)*4096
    A(f"""
v_and_b32 v{vT3}, 15, v0
v_mul_u32_u24 v{vWRr}, {PITCH}, v{vT3}
v_lshrrev_b32 v{vT3}, 4, v0
v_lshl_add_u32 v{vWRr}, v{vT3}, 4, v{vWRr}
s_mul_i32 s{sT}, s{sW}, {PART}
s_add_u32 s{sT}, s{sT}, {RB}
v_add_u32 v{vWRr}, s{sT}, v{vWRr}
v_mul_u32_u24 v{vRD}, {PITCH}, v{vT}
v_lshl_add_u32 v{vRD}, v{vT2}, 5, v{vRD}
v_add_u32 v{vRD}, {RB}, v{vRD}
""")
    for t in range(4):
        for T in range(4):
            A(f"ds_write_b128 v{vWRr}, {v(ACC+(t*4+T)*4,4)} offset:{T*16*PITCH + t*64}")
    A("s_waitcnt lgkmcnt(0)\ns_barrier")
    PR = 16
    for ps in range(2):
        for w in range(4):
            for hh in range(2):
                r = PR + (ps*4 + w)*8 + hh*4
                A(f"ds_read_b128 {v(r,4)}, v{vRD} offset:{w*PART + ps*32*PITCH + hh*16} ;@P{ps}")
    A("s_waitcnt vmcnt(0)")
    X = 104; Y = 120; ST = 136; TM = 140
    for ps in range(2):
        A(f"@wait lgkm P{ps}")
        b = PR + ps*32
        for j in range(8):
            A(f"v_add_f32 v{b+j}, v{b+j}, v{b+8+j}")
            A(f"v_add_f32 v{b+16+j}, v{b+16+j}, v{b+24+j}")
        for j in range(8): A(f"v_add_f32 v{b+j}, v{b+j}, v{b+16+j}")
        x = X + ps*8
        for j in range(4):
            A(f"v_lshlrev_b32 v{x+2*j}, 16, v{RES+ps*4+j}")
            A(f"v_and_b32 v{x+2*j+1}, 0xffff0000, v{RES+ps*4+j}")
        for j in range(8): A(f"v_fmac_f32 v{x+j}, v{b+j}, v{GA+j}")
        for j in range(4): A(f"v_cvt_pk_bf16_f32 v{RES+ps*4+j}, v{x+2*j}, v{x+2*j+1}")
        A(f"buffer_store_dwordx4 {v(RES+ps*4,4)}, v{vRO}, s[{S_O1}:{S_O1+3}], s{sAO if ps == 0 else sWO} offen" + (" sc1" if K3 else ""))
    if K3:
        for ps in range(2):
            x = X + ps*8
            for j in range(4):
                A(f"v_lshlrev_b32 v{x+2*j}, 16, v{RES+ps*4+j}")
                A(f"v_and_b32 v{x+2*j+1}, 0xffff0000, v{RES+ps*4+j}")
            y = Y + ps*8
            for j in range(8): A(f"v_mul_f32 v{y+j}, v{x+j}, v{SC+j}")
            for j in range(4): A(f"v_cvt_pk_bf16_f32 v{y+j}, v{y+2*j}, v{y+2*j+1}")
            A(f"v_add_f32 v{ST+2*ps}, v{x}, v{x+1}")
            for j in range(2, 8): A(f"v_add_f32 v{ST+2*ps}, v{ST+2*ps}, v{x+j}")
        A(f"""
v_lshrrev_b32 v{vT3}, 1, v{vT2}
v_lshlrev_b32 v{vMO}, 10, v{vT3}
v_and_b32 v{vT3}, 1, v{vT2}
v_lshl_add_u32 v{vMO}, v{vT3}, 9, v{vMO}
v_lshl_add_u32 v{vMO}, v{vT}, 4, v{vMO}
s_lshl_b32 s{sT}, s{sMT}, 16
s_lshl_b32 s{sT2}, s{sNT}, 12
s_add_u32 s{sT}, s{sT}, s{sT2}
s_add_u32 s{sT2}, s{sT}, 32768
buffer_store_dwordx4 {v(Y,4)}, v{vMO}, s[{S_O2}:{S_O2+3}], s{sT} offen
buffer_store_dwordx4 {v(Y+8,4)}, v{vMO}, s[{S_O2}:{S_O2+3}], s{sT2} offen
""")
        def red8(regs):
            for pat in ("quad_perm:[1,0,3,2]", "quad_perm:[2,3,0,1]", "row_half_mirror"):
                A("s_nop 0")
                for r in regs: A(f"v_add_f32_dpp v{r}, v{r}, v{r} {pat} row_mask:0xf bank_mask:0xf")
        red8([ST, ST+2])
        for ps in range(2):
            x = X + ps*8
            A(f"v_mul_f32 v{ST+2*ps}, {0x3c800000}, v{ST+2*ps}")
            for j in range(8): A(f"v_sub_f32 v{x+j}, v{x+j}, v{ST+2*ps}")
            A(f"v_mul_f32 v{ST+2*ps+1}, v{x}, v{x}")
            for j in range(1, 8): A(f"v_fmac_f32 v{ST+2*ps+1}, v{x+j}, v{x+j}")
        red8([ST+1, ST+3])
        A(f"""
v_lshlrev_b32 v{vMO}, 6, v{vT}
v_cmp_eq_u32 vcc, 0, v{vT2}
s_lshl_b32 s{sT}, s{sMT}, 12
s_lshl_b32 s{sT2}, s{sNT}, 3
s_add_u32 s{sT}, s{sT}, s{sT2}
s_mov_b64 exec, vcc
buffer_store_dwordx2 {v(ST,2)}, v{vMO}, s[{S_ST}:{S_ST+3}], s{sT} offen
buffer_store_dwordx2 {v(ST+2,2)}, v{vMO}, s[{S_ST}:{S_ST+3}], s{sT} offen offset:2048
s_mov_b64 exec, -1
""")
        BF, UA, UW = 144, 160, 164
        A(f"""
s_cmp_ge_u32 s2, 172
s_cbranch_scc1 {name}_noub
s_cmp_ge_u32 s2, 86
s_cselect_b32 s{S_WG}, s{S_WU}, s{S_WG}
s_cselect_b32 s{S_WG+1}, s{S_WU+1}, s{S_WG+1}
s_cselect_b32 s{sT2}, 86, 0
s_sub_u32 s{sT2}, s2, s{sT2}
v_lshrrev_b32 v{vT}, 1, v0
v_mul_u32_u24 v{vT}, 2752, v{vT}
v_and_b32 v{vT2}, 1, v0
v_lshl_add_u32 v{vT}, v{vT2}, 4, v{vT}
s_mul_i32 s{sT}, s{sW}, {128*2752}
s_lshl_b32 s{sCNT}, s{sT2}, 5
s_add_u32 s{sT}, s{sT}, s{sCNT}
""")
        for m in range(4):
            A(f"s_add_u32 m0, s{sLB}, {m*1024}")
            A(f"s_add_u32 s{sCNT}, s{sT}, {m*32*2752}")
            A(f"buffer_load_dwordx4 v{vT}, s[{S_WG}:{S_WG+3}], s{sCNT} offen lds")
        A(f"""
v_and_b32 v{vT2}, 15, v0
v_lshrrev_b32 v{vT3}, 4, v0
v_lshlrev_b32 v{vT3}, 4, v{vT3}
v_lshlrev_b32 v{vMO}, 10, v{vT2}
v_sub_u32 v{vT3}, v{vT3}, v{vMO}
v_add_u32 v{vT3}, {16384 + 4*1024}, v{vT3}
v_mov_b32 v{vMO}, 0x100000
v_cmp_gt_u32 vcc, 2, v{vT2}
s_lshl_b32 s{sCNT}, s{sW}, 8
s_nop 0
v_cndmask_b32 v{vT3}, v{vMO}, v{vT3}, vcc
""")
        for m in range(4):
            A(f"buffer_load_dwordx4 {v(BF+4*m,4)}, v{vT3}, s[{S_MOD}:{S_MOD+3}], s{sCNT} offen offset:{m*64}")
        A(f"""
v_lshrrev_b32 v{vT}, 4, v0
v_lshlrev_b32 v{vT}, 8, v{vT}
v_lshl_add_u32 v{vT}, v{vT2}, 3, v{vT}    ; g*256 + (r*4+c)*8 = g*256 + r*32 + c*8
v_add_u32 v{vT}, s{sLB}, v{vT}
s_waitcnt vmcnt(0)
""")
        for m in range(4):
            for rd in range(2):
                A(f"ds_read_b64_tr_b16 {v(UW+4*m+2*rd,2)}, v{vT} offset:{m*1024 + rd*128}")
        A("s_waitcnt lgkmcnt(0)")
        for m in range(4):
            A(f"{M16} {v(UA,4)}, {v(UW+4*m,4)}, {v(BF+4*m,4)}, {'0' if m == 0 else v(UA,4)}")
        RB2 = RB + 4*PART
        A(f"""
s_lshl_b32 s{sT}, s{sW}, 10
s_add_u32 s{sT}, s{sT}, {RB2}
v_add_u32 v{vT}, s{sT}, v{vL16}
v_add_u32 v{vT3}, {RB2}, v{vL16}
s_nop 4
ds_write_b128 v{vT}, {v(UA,4)}
s_waitcnt lgkmcnt(0)
s_barrier
""")
        for w in range(4): A(f"ds_read_b128 {v(UW+4*w,4)}, v{vT3} offset:{w*1024}")
        A("s_waitcnt lgkmcnt(0)")
        for j in range(4):
            A(f"v_add_f32 v{UW+j}, v{UW+j}, v{UW+4+j}")
            A(f"v_add_f32 v{UW+8+j}, v{UW+8+j}, v{UW+12+j}")
        for j in range(4): A(f"v_add_f32 v{UW+j}, v{UW+j}, v{UW+8+j}")
        A(f"""
v_mul_u32_u24 v{vT}, {2*1376*4}, v{vT2}
v_lshrrev_b32 v{vT3}, 4, v0
v_lshl_add_u32 v{vT}, v{vT3}, 4, v{vT}
v_cndmask_b32 v{vT}, v{vMO}, v{vT}, vcc
s_lshl_b32 s{sT}, s2, 6
s_cmp_lg_u32 s{sW}, 0
s_cbranch_scc1 {name}_noub
buffer_store_dwordx4 {v(UW,4)}, v{vT}, s[{S_UB}:{S_UB+3}], s{sT} offen
""")
        A.label(f"{name}_noub")
    stamp_flush(A, which - 1, 4, sW)
    A.label(f"{name}_end")
    A("s_endpgm")
    A.lines = resolve_waits(A.lines)
    return name, A, desc(name, 256, 256), (256, 256, 4*(R+1)*4096 + 4*64*272 + 4096)


def k3():
    A = Asm()
    name = "k3_kernel"
    header(A, name)
    S_P, S_X, S_MOD, S_X1, S_H = 8, 12, 16, 20, 24
    sW, sT, sT2, sPO = 28, 29, 30, 31
    vPO, vXO, vMO, vT, vT2, vS, vQ, vLW, vLR = 1, 2, 3, 4, 5, 6, 7, 8, 9
    PP, XR, GA, SC, SH, F, ST = 12, 44, 48, 56, 64, 72, 80
    A(f"""
s_cmp_ge_u32 s2, 256
s_cbranch_scc1 {name}_end
""")
    stamp(A, 0)
    A(f"""
s_load_dwordx2 s[{S_X}:{S_X+1}], s[0:1], {ARG['x']}
s_load_dwordx2 s[32:33], s[0:1], 112
v_lshrrev_b32 v{vT}, 3, v0                ; piece 0..63
v_and_b32 v{vT2}, 7, v0                   ; token 0..7
v_lshlrev_b32 v{vPO}, 9, v{vT}
v_lshl_add_u32 v{vPO}, v{vT2}, 4, v{vPO}
v_lshrrev_b32 v{vS}, 1, v{vT}
v_lshlrev_b32 v{vS}, 4, v{vS}
v_and_b32 v{vQ}, 1, v{vT}
v_lshl_add_u32 v{vS}, v{vQ}, 2, v{vS}
v_lshlrev_b32 v{vMO}, 2, v{vS}
v_lshlrev_b32 v{vXO}, 10, v{vT2}
v_lshl_add_u32 v{vXO}, v{vS}, 1, v{vXO}
v_lshrrev_b32 v{vQ}, 6, v0
s_lshr_b32 s{sPO}, s2, 2
s_lshl_b32 s{sPO}, s{sPO}, 15
v_readfirstlane_b32 s{sW}, v{vQ}
s_and_b32 s{sT}, s2, 3
s_lshl_b32 s{sT}, s{sT}, 7
s_add_u32 s{sPO}, s{sPO}, s{sT}           ; tokblk*32K + (tok0%32)*16
v_lshlrev_b32 v{vLR}, 6, v{vT2}
v_lshl_add_u32 v{vLW}, v{vQ}, 3, v{vLR}
s_mov_b32 s{S_X+2}, {2*MB}
s_mov_b32 s{S_X+3}, 0x20000
s_waitcnt lgkmcnt(0)
""")
    srd(A, S_P, 32, 16*MB, WS_PART)
    for x in range(8):
        A(f"s_add_u32 s{sT}, s{sPO}, {x*2*MB}")
        A(f"buffer_load_dwordx4 {v(PP+4*x,4)}, v{vPO}, s[{S_P}:{S_P+3}], s{sT} offen ;@P{x}")
    srd(A, S_MOD, 32, 12288, WS_MOD)
    A(f"""
s_lshl_b32 s{sT}, s2, 13
buffer_load_dwordx2 {v(XR,2)}, v{vXO}, s[{S_X}:{S_X+3}], s{sT} offen
buffer_load_dwordx2 {v(XR+2,2)}, v{vXO}, s[{S_X}:{S_X+3}], s{sT} offen offset:16
s_movk_i32 s{sT}, 4096
s_movk_i32 s{sT2}, 8192
buffer_load_dwordx4 {v(GA,4)}, v{vMO}, s[{S_MOD}:{S_MOD+3}], s{sT} offen
buffer_load_dwordx4 {v(GA+4,4)}, v{vMO}, s[{S_MOD}:{S_MOD+3}], s{sT} offen offset:32 ;@GA
buffer_load_dwordx4 {v(SH,4)}, v{vMO}, s[{S_MOD}:{S_MOD+3}], s{sT} offen offset:2048
buffer_load_dwordx4 {v(SH+4,4)}, v{vMO}, s[{S_MOD}:{S_MOD+3}], s{sT} offen offset:2080
buffer_load_dwordx4 {v(SC,4)}, v{vMO}, s[{S_MOD}:{S_MOD+3}], s{sT2} offen
buffer_load_dwordx4 {v(SC+4,4)}, v{vMO}, s[{S_MOD}:{S_MOD+3}], s{sT2} offen offset:32 ;@SC
""")
    srd(A, S_X1, 32, 2*MB, WS_X1); srd(A, S_H, 32, 2*MB, WS_Y)
    for x in range(8):
        A(f"@wait vm P{x}")
        if x == 0: stamp(A, 1)
        for j in range(4):
            if x == 0:
                A(f"v_lshlrev_b32 v{F+2*j}, 16, v{PP+j}\nv_and_b32 v{F+2*j+1}, 0xffff0000, v{PP+j}")
            else:
                r = PP + 4*x + j
                A(f"v_lshlrev_b32 v{vT}, 16, v{r}\nv_and_b32 v{r}, 0xffff0000, v{r}\nv_add_f32 v{F+2*j}, v{F+2*j}, v{vT}\nv_add_f32 v{F+2*j+1}, v{F+2*j+1}, v{r}")
    A("@wait vm GA")
    X = PP
    for j in range(4): A(f"v_lshlrev_b32 v{X+2*j}, 16, v{XR+j}\nv_and_b32 v{X+2*j+1}, 0xffff0000, v{XR+j}")
    for j in range(8): A(f"v_fmac_f32 v{X+j}, v{F+j}, v{GA+j}")
    for j in range(4): A(f"v_cvt_pk_bf16_f32 v{XR+j}, v{X+2*j}, v{X+2*j+1}")
    A(f"buffer_store_dwordx4 {v(XR,4)}, v{vPO}, s[{S_X1}:{S_X1+3}], s{sPO} offen sc1")
    for j in range(4): A(f"v_lshlrev_b32 v{X+2*j}, 16, v{XR+j}\nv_and_b32 v{X+2*j+1}, 0xffff0000, v{XR+j}")
    def red(r):
        A(f"""s_nop 1
v_add_f32_dpp v{r}, v{r}, v{r} row_ror:8 row_mask:0xf bank_mask:0xf
v_mov_b32 v{vT}, v{r}
s_nop 1
v_permlane16_swap_b32 v{vT}, v{r}
s_nop 0
v_add_f32 v{r}, v{r}, v{vT}
v_mov_b32 v{vT}, v{r}
s_nop 1
v_permlane32_swap_b32 v{vT}, v{r}
s_nop 0
v_add_f32 v{r}, v{r}, v{vT}""")
    A(f"v_add_f32 v{vS}, v{X}, v{X+1}")
    for j in range(2, 8): A(f"v_add_f32 v{vS}, v{vS}, v{X+j}")
    red(vS)
    A(f"v_mul_f32 v{vS}, 0x3c800000, v{vS}")
    for j in range(8): A(f"v_sub_f32 v{F+j}, v{X+j}, v{vS}")
    A(f"v_mul_f32 v{vQ}, v{F}, v{F}")
    for j in range(1, 8): A(f"v_fmac_f32 v{vQ}, v{F+j}, v{F+j}")
    red(vQ)
    A(f"""
ds_write_b64 v{vLW}, v[{vS}:{vQ}]
s_waitcnt lgkmcnt(0)
s_barrier
""")
    for i in range(4): A(f"ds_read_b128 {v(ST+4*i,4)}, v{vLR} offset:{16*i}")
    A("s_waitcnt lgkmcnt(0)")
    A(f"v_add_f32 v{vS}, v{ST}, v{ST+2}")
    for i in range(2, 8): A(f"v_add_f32 v{vS}, v{vS}, v{ST+2*i}")
    A(f"v_mul_f32 v{vS}, 0x3e000000, v{vS}")
    A(f"v_add_f32 v{vQ}, v{ST+1}, v{ST+3}")
    for i in range(2, 8): A(f"v_add_f32 v{vQ}, v{vQ}, v{ST+2*i+1}")
    A(f"v_mov_b32 v{vT2}, 0")
    for i in range(8): A(f"v_sub_f32 v{vT}, v{ST+2*i}, v{vS}\nv_fmac_f32 v{vT2}, v{vT}, v{vT}")
    A(f"""
v_fmac_f32 v{vQ}, 0x42800000, v{vT2}
v_mov_b32 v{vT}, 0x3727c5ac
v_fmac_f32 v{vT}, 0x3b000000, v{vQ}
v_rsq_f32 v{vQ}, v{vT}
@wait vm SC
""")
    for j in range(8): A(f"v_sub_f32 v{X+j}, v{X+j}, v{vS}")
    for j in range(8): A(f"v_mul_f32 v{X+j}, v{X+j}, v{vQ}")
    for j in range(8): A(f"v_fma_f32 v{X+j}, v{X+j}, v{SC+j}, v{SH+j}")
    for j in range(4): A(f"v_cvt_pk_bf16_f32 v{F+j}, v{X+2*j}, v{X+2*j+1}")
    A(f"buffer_store_dwordx4 {v(F,4)}, v{vPO}, s[{S_H}:{S_H+3}], s{sPO} offen sc1")
    stamp_flush(A, 2, 3, sW)
    A.label(f"{name}_end")
    A("s_endpgm")
    A.lines = resolve_waits(A.lines)
    return name, A, desc(name, 96, 96), (256, 512, 1024)
def k5(): return k35(5)

def k4():
    A = Asm()
    name = "k4_kernel"
    header(A, name)
    S_Y, S_WG, S_WU, S_ST, S_UB, S_G = 8, 12, 16, 20, 24, 28
    sW, sMT, sNT, sT, sT2, sYO, sWO, sM0 = 48, 49, 50, 51, 52, 53, 54, 55
    vL16, vWD, vWR, vT, vT2, vT3, vMU, vRS, vUB, vGO = 1, 2, 5, 8, 9, 10, 11, 12, 13, 14
    ACC, YF, WF, STT = 16, 112, 176, 224
    NSL, RING, SLOT = 8, 6, 24576
    LDS_UB = RING*SLOT
    A(f"""
s_cmp_ge_u32 s2, 240
s_cbranch_scc1 {name}_end
""")
    stamp(A, 0)
    A(f"""
s_load_dwordx4 s[64:67], s[0:1], {ARG['wg']}
s_load_dwordx2 s[68:69], s[0:1], 112
v_lshrrev_b32 v1, 6, v0
v_and_b32 v0, 63, v0
s_and_b32 s{sT}, s2, 7
v_readfirstlane_b32 s{sW}, v1
s_lshr_b32 s{sT2}, s2, 3                  ; 0..29
s_and_b32 s{sMT}, s{sT2}, 1
s_lshl_b32 s{sT}, s{sT}, 1
s_add_u32 s{sMT}, s{sMT}, s{sT}
s_lshr_b32 s{sNT}, s{sT2}, 1
v_lshlrev_b32 v{vL16}, 4, v0
""")
    for i in range(3):
        A(f"""
v_add_u32 v{vT}, {i*64}, v0
v_mul_u32_u24 v{vT2}, 43691, v{vT}
v_lshrrev_b32 v{vT2}, 19, v{vT2}          ; /12
v_mul_u32_u24 v{vT3}, 12, v{vT2}
v_sub_u32 v{vT3}, v{vT}, v{vT3}
v_mul_u32_u24 v{vWD+i}, 2752, v{vT2}
v_lshl_add_u32 v{vWD+i}, v{vT3}, 4, v{vWD+i}
""")
    A(f"""
v_lshrrev_b32 v{vT}, 5, v0
v_and_b32 v{vT2}, 15, v0
v_lshrrev_b32 v{vT3}, 2, v{vT2}
v_lshl_add_u32 v{vT3}, v{vT}, 2, v{vT3}
v_mul_u32_u24 v{vWR}, 192, v{vT3}
v_and_b32 v{vT3}, 16, v0
v_lshl_add_u32 v{vWR}, v{vT3}, 1, v{vWR}
v_and_b32 v{vT3}, 3, v0
v_lshl_add_u32 v{vWR}, v{vT3}, 3, v{vWR}
v_add_u32 v{vWR+1}, {2*SLOT}, v{vWR}
v_add_u32 v{vWR+2}, {4*SLOT}, v{vWR}
v_lshlrev_b32 v{vUB}, 4, v{vT}
v_add_u32 v{vUB}, {LDS_UB}, v{vUB}
; G store voffset: ((l>>4)&1)*1024 + h*256 + (l%16)*16
v_and_b32 v{vT3}, 16, v0
v_lshlrev_b32 v{vGO}, 6, v{vT3}
v_lshl_add_u32 v{vGO}, v{vT}, 8, v{vGO}
v_lshl_add_u32 v{vGO}, v{vT2}, 4, v{vGO}
s_waitcnt lgkmcnt(0)
""")
    srd(A, S_WG, 64, 512*1376*2); srd(A, S_WU, 66, 512*1376*2)
    srd(A, S_Y, 68, 2*MB, WS_Y); srd(A, S_ST, 68, 131072, WS_STAT); srd(A, S_UB, 68, 2*1376*8, WS_UB); srd(A, S_G, 68, 43*131072, WS_G)
    A(f"""
s_lshl_b32 s{sYO}, s{sMT}, 2
s_add_u32 s{sYO}, s{sYO}, s{sW}           ; tokblk32
s_lshl_b32 s{sT}, s{sYO}, 11
s_lshl_b32 s{sYO}, s{sYO}, 15
v_and_b32 v{vT}, 31, v0
v_lshlrev_b32 v{vT}, 6, v{vT}
s_mul_i32 s{sWO}, s{sW}, {16*2752}
s_mul_i32 s{sT2}, s{sNT}, 192
s_add_u32 s{sWO}, s{sWO}, s{sT2}
s_mul_i32 s{sM0}, s{sW}, 3072
""")
    def loadY(ks):
        r = YF + (ks % 16)*4
        return [[f"s_add_u32 s{sT2}, s{sYO}, {(ks // 4)*4096}",
                 f"buffer_load_dwordx4 v[{r}:{r+3}], v{vL16}, s[{S_Y}:{S_Y+3}], s{sT2} offen offset:{(ks % 4)*1024} ;@Y{ks}"]]
    def dmaW(n):
        out = []
        for mat in range(2):
            sr = S_WG if mat == 0 else S_WU
            for i in range(3):
                out.append([f"s_add_u32 m0, s{sM0}, {(n % RING)*SLOT + mat*12288 + i*1024}",
                            f"s_add_u32 s{sT}, s{sWO}, {n*64*2752}",
                            f"buffer_load_dwordx4 v{vWD+i}, s[{sr}:{sr+3}], s{sT} offen lds ;@W{n}"])
        return out
    def flat(x): return [y for z in x for y in (z if isinstance(z, list) else [z])]
    def readW(ks):
        n = ks // 4; sl = n % RING
        out = []
        for ct in range(6):
            for rd in range(2):
                r = WF + (ks % 2)*24 + ct*4 + rd*2
                off = (sl % 2)*SLOT + (ct // 3)*12288 + ((ks % 4)*16 + rd*8)*192 + (ct % 3)*64
                out.append(f"ds_read_b64_tr_b16 v[{r}:{r+1}], v{vWR + sl//2} offset:{off} ;@RW{ks}_{ct}")
        return out
    A.extend(flat(dmaW(0)))
    for ks in range(4): A.extend(flat(loadY(ks)))
    A.extend(flat(dmaW(1)))
    for ks in range(4, 8): A.extend(flat(loadY(ks)))
    A("@wait vm W0\ns_barrier")
    stamp(A, 1)
    A.extend(readW(0))
    pend = {0: dmaW(2), 1: loadY(8) + loadY(9) + loadY(10) + loadY(11), 2: dmaW(3), 3: loadY(12) + loadY(13) + loadY(14) + loadY(15),
            4: dmaW(4), 6: dmaW(5), 8: dmaW(6), 12: dmaW(7)}
    for ks in range(32):
        pre = []
        if ks % 4 == 3 and ks < 31:
            pre += [f"@wait vm W{(ks+1)//4}", "s_barrier"]
        pre.append(f"@wait vm Y{ks}")
        mf = []
        for ct in range(6):
            cin = "0" if ks == 0 else v(ACC + ct*16, 16)
            mf.append([f"@wait lgkm RW{ks}_{ct}", f"{M32} {v(ACC+ct*16,16)}, {v(WF+(ks%2)*24+ct*4,4)}, {v(YF+(ks%16)*4,4)}, {cin}"])
        fill = (readW(ks + 1) if ks < 31 else []) + pend.get(ks, [])
        if 5 <= ks <= 20: fill += loadY(ks + 11)
        A.extend(pre)
        out = []
        per = -(-len(fill) // 6)
        for i, m in enumerate(mf):
            out += m + flat(fill[i*per:(i+1)*per])
        A.extend(out)
    stamp(A, 2)
    A(f"""
s_lshl_b32 s{sT}, s{sMT}, 3
s_lshl_b32 s{sT2}, s{sW}, 1
s_add_u32 s{sT}, s{sT}, s{sT2}
s_lshl_b32 s{sT}, s{sT}, 10               ; tokblk16*1024
s_mul_i32 s{sT2}, s{sNT}, {3*131072}
s_add_u32 s{sYO}, s{sT}, s{sT2}
s_nop 3
s_mov_b32 s56, 0xc0135761                 ; -2*log2e*sqrt(2/pi)
s_mov_b32 s57, 0xbdd2d3e8                 ; that * 0.044715
""")
    U = YF
    for tl in range(3):
        g0 = ACC + tl*16; u0 = ACC + (3 + tl)*16
        TT = WF
        for r in range(16): A(f"v_mul_f32 v{TT+r}, v{g0+r}, v{g0+r}")
        A(f"v_mov_b32 v{vT}, s56")
        for r in range(16): A(f"v_fma_f32 v{TT+r}, v{TT+r}, s57, v{vT}")
        for r in range(16): A(f"v_mul_f32 v{TT+r}, v{TT+r}, v{g0+r}")
        for r in range(16): A(f"v_exp_f32 v{TT+r}, v{TT+r}")
        for r in range(16): A(f"v_mul_f32 v{g0+r}, v{g0+r}, v{u0+r}")
        for r in range(16): A(f"v_add_f32 v{TT+r}, 1.0, v{TT+r}")
        for r in range(16): A(f"v_rcp_f32 v{TT+r}, v{TT+r}")
        A("s_nop 0")
        for r in range(16): A(f"v_mul_f32 v{g0+r}, v{g0+r}, v{TT+r}")
        for r in range(8): A(f"v_cvt_pk_bf16_f32 v{u0+r}, v{g0+2*r}, v{g0+2*r+1}")
        A(f"s_add_u32 s{sT}, s{sYO}, {tl*131072}")
        for sp in range(2):
            A(f"buffer_store_dwordx4 {v(u0+4*sp,4)}, v{vGO}, s[{S_G}:{S_G+3}], s{sT} offen offset:{sp*512} sc1")
    stamp_flush(A, 3, 4, sW)
    A.label(f"{name}_end")
    A("s_endpgm")
    A.lines = resolve_waits(A.lines)
    return name, A, desc(name, 256, 256), (240, 256, RING*SLOT + 4096)

KERNELS = [k1, k2]

def build(kernels=None):
    ks = [k() for k in (kernels or KERNELS)]
    hdr = open("cdna_kernels/" + NAME + ".s.ref").read().split("; Override launch")[0]
    out = hdr
    for name, A, d, (grid, blk, lds) in ks:
        out += f"; @launch kernel={name} grid=({grid},1,1) block=({blk},1,1) lds={lds}\n"
    out += '.amdgcn_target "amdgcn-amd-amdhsa--gfx950"\n.text\n'
    wsb = [int(x[2:]) for x in ABL if x.startswith("ws")]
    for name, A, d, _ in ks:
        if wsb:
            import re
            reg = None
            for i, l in enumerate(A.lines):
                m = re.match(r"s_load_dwordx2 s\[(\d+):\d+\], s\[0:1\], 112", l)
                if m and reg is None: reg = int(m.group(1))
                if reg is not None and l.startswith("s_waitcnt lgkmcnt(0)"):
                    A.lines[i+1:i+1] = [f"s_add_u32 s{reg}, s{reg}, {wsb[0]*MB}", f"s_addc_u32 s{reg+1}, s{reg+1}, 0"]
                    break
        pr = check_hazards(A.lines)
        out += A.text()
    out += 'text_end:\n.section .rodata,"a"\n'
    for name, A, d, _ in ks:
        out += d
    return out

if __name__ == "__main__":
    if "diag" in sys.argv[2:]: DIAG = True
    if "cyc" in sys.argv[2:]: CLK = "s_memtime"
    ABL = {x[4:] for x in sys.argv[2:] if x.startswith("abl:")}
    txt = build()
    path = sys.argv[1] if len(sys.argv) > 1 else "cdna_kernels/" + NAME + ".s"
    open(path, "w").write(txt)
    print("wrote", path, len(txt))
```

```python
import sys
from asmlib import *

NAME = "adaLN_cond__compressed_kv_cla__geglu_ffn__prompt"
MB = 1 << 20
WS_KF, WS_VF, WS_CTX, WS_XH, WS_X1, WS_G, WS_MOD, WS_STAT = 0, 16*MB, 32*MB, 48*MB, 50*MB, 52*MB, 58*MB, 58*MB + 65536
WS_CNT, WS_PART, WS_MODP = 58*MB + 32768, 64*MB, 59*MB
WS_MODB, WS_UB, WS_Y = 58*MB + 16384, 58*MB + 32768, 62*MB
ARG = dict(x=0, ckv=8, wq=16, wuk=24, wuv=32, wo=40, bx=48, wg=56, wu=64, wd=72, c=80, wmod=88, out=96, dbg=104, ws=112)
M16 = "v_mfma_f32_16x16x32_bf16"
M32 = "v_mfma_f32_32x32x16_bf16"
LOG2E = 0x3fb8aa3b

def srd(A, d, base, size, off=0):
    if off:
        A(f"s_add_u32 s{d}, s{base}, {off}")
        A(f"s_addc_u32 s{d+1}, s{base+1}, 0")
    else:
        A(f"s_mov_b32 s{d}, s{base}")
        A(f"s_mov_b32 s{d+1}, s{base+1}")
    A(f"s_mov_b32 s{d+2}, {size}")
    A(f"s_mov_b32 s{d+3}, 0x20000")

def allreduce64(A, regs, t0, op="v_add_f32"):
    n = len(regs)
    for pat in ("quad_perm:[1,0,3,2]", "quad_perm:[2,3,0,1]", "row_half_mirror", "row_mirror"):
        if n < 3: A(f"s_nop {2 - n}" if n < 3 else "")
        for r in regs:
            A(f"{op}_dpp v{r}, v{r}, v{r} {pat} row_mask:0xf bank_mask:0xf")
    for sw in ("v_permlane16_swap_b32", "v_permlane32_swap_b32"):
        for i, r in enumerate(regs): A(f"v_mov_b32 v{t0+i}, v{r}")
        A("s_nop 1")
        for i, r in enumerate(regs): A(f"{sw} v{t0+i}, v{r}")
        A("s_nop 0")
        for i, r in enumerate(regs): A(f"{op} v{r}, v{r}, v{t0+i}")

DIAG = False
ABL = set()
CLK = "s_memrealtime"
WS_DIAG = 60*MB
STAMPMAP = None
def stamp(A, i):
    if STAMPMAP is not None:
        if i not in STAMPMAP: return
        i = STAMPMAP.index(i)
    if DIAG: A(f"{CLK} s[{86+2*i}:{87+2*i}]")
def stamp_flush(A, kidx, n, swave):
    if not DIAG: return
    A(f"""
s_waitcnt vmcnt(0)
{CLK} s[{86+2*(n-1)}:{87+2*(n-1)}]
s_load_dwordx2 s[4:5], s[0:1], 112
s_waitcnt lgkmcnt(0)
s_add_u32 s4, s4, {WS_DIAG + kidx*65536}
s_addc_u32 s5, s5, 0
s_mov_b32 s6, 65536
s_mov_b32 s7, 0x20000
s_lshl_b32 s3, s2, 8
s_lshl_b32 s2, s{swave}, 5
s_add_u32 s3, s3, s2
v_mov_b32 v8, 0
""")
    for i in range(8): A(f"v_mov_b32 v{i}, s{86+2*i}" if i < n else f"v_mov_b32 v{i}, 0")
    A("""s_mov_b64 exec, 1
buffer_store_dwordx4 v[0:3], v8, s[4:7], s3 offen
buffer_store_dwordx4 v[4:7], v8, s[4:7], s3 offen offset:16""")

def header(A, name):
    A(f".globl {name}\n.p2align 8\n.type {name},@function\n{name}:")

def desc(name, vgpr, accum, sgpr=102):
    return f""".p2align 6
.amdhsa_kernel {name}
  .amdhsa_next_free_vgpr {vgpr}
  .amdhsa_next_free_sgpr {sgpr}
  .amdhsa_accum_offset {accum}
  .amdhsa_group_segment_fixed_size 0
  .amdhsa_kernarg_size 120
  .amdhsa_user_sgpr_count 2
  .amdhsa_user_sgpr_kernarg_segment_ptr 1
  .amdhsa_system_sgpr_workgroup_id_x 1
  .amdhsa_float_denorm_mode_32 3
.end_amdhsa_kernel
"""

def flat(x): return [y for z in x for y in (flat(z) if isinstance(z, list) else [z])]

def allreduce64_list(regs, tmps, op="v_add_f32"):
    out = []
    for pat in ("quad_perm:[1,0,3,2]", "quad_perm:[2,3,0,1]", "row_half_mirror", "row_mirror"):
        out.append("s_nop 1" if len(regs) == 1 else "s_nop 0")
        for r in regs: out.append(f"{op}_dpp v{r}, v{r}, v{r} {pat} row_mask:0xf bank_mask:0xf")
    for sw in ("v_permlane16_swap_b32", "v_permlane32_swap_b32"):
        for r, t in zip(regs, tmps): out.append(f"v_mov_b32 v{t}, v{r}")
        out.append("s_nop 1")
        for r, t in zip(regs, tmps): out.append(f"{sw} v{t}, v{r}")
        out.append("s_nop 0")
        for r, t in zip(regs, tmps): out.append(f"{op} v{r}, v{r}, v{t}")
    return out

def k1():
    A = Asm()
    name = "k1_kernel"
    header(A, name)
    S_CKV, S_WUK, S_WUV, S_KV, S_X, S_XH, S_WMOD, S_C, S_MOD, S_DBG, S_WQ = 8, 12, 16, 20, 24, 28, 32, 36, 40, 44, 48
    sW, sHEAD, sKB, sAB, sWB = 52, 53, 54, 55, 56
    sT, sT2, sOK, sOV, sLA, sW10, sTOK, sCOL, sSD, sE = 64, 65, 66, 67, 68, 69, 70, 71, 72, 73
    sJ1, sJ2, sJ3 = 74, 75, 76
    K1S = "k1start" in ABL
    A(f"""
s_cmp_ge_u32 s2, 256
s_cbranch_scc1 {name}_end
""")
    stamp(A, 0)
    vA0, vA1, vW, vAR0, vAR1, vOK, vOV, vT, vT2, vT3 = 2, 3, 4, 5, 6, 7, 8, 9, 10, 11
    vWR = 12
    A(f"""
s_load_dwordx2 s[{S_CKV}:{S_CKV+1}], s[0:1], {ARG['ckv']}
s_load_dwordx2 s[{S_WUK}:{S_WUK+1}], s[0:1], {ARG['wuk']}
s_load_dwordx2 s[{S_WUV}:{S_WUV+1}], s[0:1], {ARG['wuv']}
s_load_dwordx2 s[{S_X}:{S_X+1}], s[0:1], {ARG['x']}
s_load_dwordx2 s[{S_C}:{S_C+1}], s[0:1], {ARG['c']}
s_load_dwordx2 s[{S_WMOD}:{S_WMOD+1}], s[0:1], {ARG['wmod']}
s_load_dwordx2 s[{S_WQ}:{S_WQ+1}], s[0:1], {ARG['wq']}
s_load_dwordx2 s[{S_DBG}:{S_DBG+1}], s[0:1], {ARG['dbg']}
s_load_dwordx2 s[{S_KV}:{S_KV+1}], s[0:1], {ARG['ws']}
v_lshrrev_b32 v1, 6, v0
v_and_b32 v0, 63, v0
s_and_b32 s{sT}, s2, 7
v_readfirstlane_b32 s{sW}, v1
s_lshr_b32 s{sT2}, s2, 3
s_lshl_b32 s{sHEAD}, s{sT}, 2
s_and_b32 s{sKB}, s{sT2}, 3
s_add_u32 s{sHEAD}, s{sHEAD}, s{sKB}
s_lshr_b32 s{sKB}, s{sT2}, 2
s_mov_b32 s{S_CKV+2}, {2*MB}
s_mov_b32 s{S_CKV+3}, 0x20000
s_mov_b32 s{S_WUK+2}, {4*MB}
s_mov_b32 s{S_WUK+3}, 0x20000
s_lshl_b32 s{sAB}, s{sKB}, 18
s_lshl_b32 s{sT}, s{sW}, 16
s_add_u32 s{sAB}, s{sAB}, s{sT}
s_lshl_b32 s{sWB}, s{sHEAD}, 8             ; head col byte offset
v_lshrrev_b32 v{vT}, 3, v0              ; l/8
v_and_b32 v{vT2}, 7, v0                 ; l%8
v_lshrrev_b32 v{vT3}, 1, v{vT}          ; (l/8)>>1  (0..3)
v_xor_b32 v{vA0}, v{vT2}, v{vT3}
v_lshlrev_b32 v{vA0}, 4, v{vA0}
v_lshl_add_u32 v{vA0}, v{vT}, 10, v{vA0}   ; A dma voffset, rows with bit4=0
v_xor_b32 v{vA1}, 64, v{vA0}
v_and_b32 v{vT3}, 1, v{vT3}
s_and_b32 s{sT}, s{sW}, 1
s_lshl_b32 s{sT}, s{sT}, 1
v_or_b32 v{vT3}, s{sT}, v{vT3}
v_lshlrev_b32 v{vT3}, 1, v{vT3}            ; swz
v_xor_b32 v{vW}, v{vT2}, v{vT3}
v_lshlrev_b32 v{vW}, 4, v{vW}
v_lshl_add_u32 v{vW}, v{vT}, 13, v{vW}
s_lshl_b32 s{sT}, s{sW}, 16
v_add_u32 v{vW}, s{sT}, v{vW}              ; + wave*8 rows
s_lshl_b32 s{sLA}, s{sW}, 14
s_lshl_b32 s{sW10}, s{sW}, 10
s_waitcnt lgkmcnt(0)
""")
    HI = 64*1024; SIDE = 144*1024
    SEQ = [(c, q) for q in range(4) for c in range(2)] + [(c, q) for c in (2, 3) for q in range(4)]
    WLOC = {n: HI + (n % 5)*16384 for n in range(10)}
    WLOC.update({10: 0, 11: 16384, 12: 32768, 13: 49152, 14: HI + 0*16384, 15: HI + 1*16384})
    def dmaA(i):
        return [[f"s_add_u32 m0, s{sLA}, {(i % 2)*8192 + ii*1024}",
                 f"s_add_u32 s{sT}, s{sAB}, {ii*8192 + i*128}",
                 f"buffer_load_dwordx4 v{vA1 if ii & 2 else vA0}, s[{S_CKV}:{S_CKV+3}], s{sT} offen lds ;@A{i}"] for ii in range(8)]
    def dmaW(n):
        c, q = SEQ[n]
        sr = S_WUK if c < 2 else S_WUV
        return [[f"s_add_u32 m0, s{sW10}, {WLOC[n] + m*4096}",
                 f"s_add_u32 s{sT}, s{sWB}, {q*128*8192 + m*32*8192 + (c % 2)*128}",
                 f"buffer_load_dwordx4 v{vW}, s[{sr}:{sr+3}], s{sT} offen lds ;@W{n}"] for m in range(4)]
    for x in (dmaW(0), dmaA(0)):
        A.extend(flat(x))
    if "nocpf" not in ABL:
        A(f"""
s_getpc_b64 s[80:81]
k1_pc:
s_sub_u32 s80, s80, k1_pc-k1_kernel
s_subb_u32 s81, s81, 0
s_mov_b32 s82, text_end-k1_kernel
s_mov_b32 s83, 0x20000
s_lshr_b32 s{sT}, s2, 3
s_lshl_b32 s{sT}, s{sT}, 2
s_add_u32 s{sT}, s{sT}, s{sW}
s_lshl_b32 s{sT}, s{sT}, 10
v_lshlrev_b32 v1, 7, v0
s_mov_b64 exec, 0xff
buffer_load_dword v255, v1, s[80:83], s{sT} offen
s_mov_b64 exec, -1
""")
    A(f"""
v_and_b32 v{vT}, 15, v0                 ; n
v_lshrrev_b32 v{vT2}, 4, v0             ; g
v_lshrrev_b32 v{vT3}, 1, v{vT}
v_xor_b32 v{vAR0}, v{vT2}, v{vT3}
v_lshlrev_b32 v{vAR0}, 4, v{vAR0}
v_and_b32 v{vT3}, 8, v{vT}
v_add_u32 v{vT3}, v{vT3}, v{vT}         ; rho0 = 16(n>>3)+(n&7)
v_lshl_add_u32 v{vAR0}, v{vT3}, 7, v{vAR0}
v_add_u32 v{vAR0}, s{sLA}, v{vAR0}
v_xor_b32 v{vAR1}, 64, v{vAR0}
v_and_b32 v{vOK}, 1, v{vT2}
v_lshlrev_b32 v{vOK}, 9, v{vOK}
v_lshrrev_b32 v{vOV}, 1, v{vT2}
v_lshl_add_u32 v{vOK}, v{vOV}, 10, v{vOK}
v_lshl_add_u32 v{vOV}, v{vT}, 4, v{vOK}
v_lshl_add_u32 v{vOK}, v{vT3}, 4, v{vOK}
v_lshrrev_b32 v{vT3}, 2, v{vT}          ; r
v_lshl_add_u32 v{vWR}, v{vT2}, 3, v{vT3}   ; row
v_lshlrev_b32 v{vWR}, 7, v{vWR}
v_and_b32 v{vT}, 3, v0
v_lshl_add_u32 v{vWR}, v{vT}, 3, v{vWR}    ; + c*8
v_lshrrev_b32 v{vT3}, 1, v{vT3}
v_and_b32 v{vT2}, 1, v{vT2}
v_lshl_or_b32 v{vT3}, v{vT2}, 1, v{vT3}
v_lshl_add_u32 v{vWR}, v{vT3}, 5, v{vWR}   ; + swz*16
""")
    for t in range(1, 4): A(f"v_xor_b32 v{vWR+t}, {t*32}, v{vWR}")
    for b in range(1, 3):
        for t in range(4): A(f"v_add_u32 v{vWR+4*b+t}, {b*65536}, v{vWR+t}")
    for d, size in ((S_WUV, 4*MB), (S_X, 2*MB), (S_C, 1024), (S_WMOD, 512*3072*2), (S_WQ, 4*MB), (S_DBG, 256), (S_KV, 32*MB)):
        A(f"s_mov_b32 s{d+2}, {size}\ns_mov_b32 s{d+3}, 0x20000")
    srd(A, S_XH, S_KV, 2*MB, WS_XH); srd(A, S_MOD, S_KV, 65536, WS_MOD)
    A(f"""
s_lshl_b32 s{sOK}, s{sHEAD}, 19
s_lshl_b32 s{sT}, s{sKB}, 16
s_add_u32 s{sOK}, s{sOK}, s{sT}
s_lshl_b32 s{sT}, s{sW}, 14
s_add_u32 s{sOK}, s{sOK}, s{sT}            ; KF offset: head*512K + (kb*8+wave*2)*8K
s_add_u32 s{sOV}, s{sOK}, {16*MB}
s_lshl_b32 s{sTOK}, s2, 3
s_and_b32 s{sT}, s2, 7
s_lshl_b32 s{sT}, s{sT}, 3
s_bfe_u32 s{sT2}, s2, 0x30003
s_add_u32 s{sCOL}, s{sT}, s{sT2}
s_and_b32 s{sT}, s2, 0xc0
s_add_u32 s{sCOL}, s{sCOL}, s{sT}
s_lshl_b32 s{sSD}, s{sW}, 12
s_add_u32 s{sSD}, s{sSD}, {SIDE}
""")
    A.extend(flat(dmaA(1))); A.extend(flat(dmaW(1)))

    def readA(i):
        out = []
        for kk in range(2):
            for T in range(4):
                r = ((2*i + kk)*4 + T)*4
                out.append(f"ds_read_b128 a[{r}:{r+3}], v{vAR1 if kk else vAR0} offset:{(i % 2)*8192 + (T//2)*4096 + (T % 2)*1024} ;@RA{i}")
        return out
    WF = 64
    def gfrags(G):
        k = G % 4
        if G < 4: return [(2*(k % 2) + i // 2, 2*(k // 2) + i % 2) for i in range(4)]
        return [(k, ks) for ks in range(4)]
    def readW(G):
        n = G // 4
        out = []
        for i, (t, ks) in enumerate(gfrags(G)):
            for rd in range(2):
                r = WF + (G % 3)*16 + i*4 + rd*2
                off = WLOC[n] + ks*4096 + rd*512
                out.append(f"ds_read_b64_tr_b16 v[{r}:{r+1}], v{vWR + 4*(off//65536) + t} offset:{off % 65536} ;@RW{G}")
        return out

    A("@wait vm A0")
    A.extend(readA(0))
    A("s_barrier")
    stamp(A, 1)
    A.extend(readW(0)); A.extend(readW(1))
    ACC = [128, 192]; OUT = 32
    def acc(c, t, T): return ACC[c % 2] + (t*4 + T)*4
    def epilogue(c):
        out = []
        k = 0
        if c < 2:
            for b in range(2):
                for T in range(4):
                    o = OUT + (k % 4)*4; k += 1
                    p = []
                    for tt in range(2):
                        r = acc(c, 2*b + tt, T)
                        p.append(f"v_cvt_pk_bf16_f32 v{o+2*tt}, v{r}, v{r+1}")
                        p.append(f"v_cvt_pk_bf16_f32 v{o+2*tt+1}, v{r+2}, v{r+3}")
                    p.append([f"s_add_u32 s{sE}, s{sOK}, {(T//2)*8192 + (c % 2)*4096}",
                              f"buffer_store_dwordx4 v[{o}:{o+3}], v{vOK}, s[{S_KV}:{S_KV+3}], s{sE} offen offset:{(T % 2)*128 + b*2048} sc1"])
                    out.append(p)
        else:
            for t in range(4):
                for b in range(2):
                    o = OUT + (k % 4)*4; k += 1
                    p = []
                    for aa in range(2):
                        r = acc(c, t, 2*b + aa)
                        p.append(f"v_cvt_pk_bf16_f32 v{o+2*aa}, v{r}, v{r+1}")
                        p.append(f"v_cvt_pk_bf16_f32 v{o+2*aa+1}, v{r+2}, v{r+3}")
                    p.append([f"s_add_u32 s{sE}, s{sOV}, {b*8192 + (c % 2)*4096}",
                              f"buffer_store_dwordx4 v[{o}:{o+3}], v{vOV}, s[{S_KV}:{S_KV+3}], s{sE} offen offset:{(t//2)*2048 + (t % 2)*256} sc1"])
                    out.append(p)
        return out
    extra = {G: [] for G in range(64)}
    for k, p in enumerate(epilogue(0)): extra[[27, 28, 28, 29, 30, 31, 32, 33][k]] += p
    for k, p in enumerate(epilogue(1)): extra[34 + (3*k) // 2] += p
    for k, p in enumerate(epilogue(2)): extra[46 + 2*k] += p
    ep3 = epilogue(3)
    for k in range(4): extra[62 + k // 2] += ep3[k]
    def slabjob(i): return [f"@wait vm A{i}"] + readA(i)
    waitRA = {0: 0, 2: 1}
    extra[0] += dmaA(2) + dmaW(2)
    extra[1] += slabjob(1) + dmaW(3)
    extra[2] += dmaA(3) + dmaW(4)
    for i in range(2, 8):
        g0 = 4 + (i - 2)*3
        extra[g0] += slabjob(i)
        extra[g0 + 1] += [f"@wait lgkm RA{i}"] + (dmaA(i + 2) if i + 2 < 8 else [])
    wsched = {6: 5, 10: 6, 15: 7, 18: 8, 22: 9, 23: 10, 24: 11, 25: 12, 26: 13, 27: 14, 30: 15}
    for G, w in wsched.items(): extra[G] = dmaW(w) + extra[G]
    def spread(lst, g0, g1, nm=""):
        if "noside" in ABL: return
        if "nowait" in ABL: lst = [[y for y in flat([x]) if not y.startswith("@wait vm")] for x in lst]
        if "novalu1" in ABL: lst = [[y for y in flat([x]) if not (y.startswith("v_") and not y.startswith(("v_lsh", "v_and_b32 v%d" % vT2, "v_mov_b32 v2", "v_readf")) or y.startswith("s_nop"))] for x in lst]
        if "nonop" in ABL: lst = [[y for y in flat([x]) if not y.startswith("s_nop")] for x in lst]
        if "nomem" in ABL: lst = [[y for y in flat([x]) if not y.startswith(("buffer_", "@wait vm", "s_cbranch"))] for x in lst]
        n = g1 - g0
        per = -(-len(lst) // n)
        for k in range(n): extra[g0 + k] += lst[k*per:(k+1)*per]

    F = 112; RAW = 48; SCL = 56; SHF = 24
    t0, t1, t2, t3 = vT2, vT3, 1, OUT + 15
    j1 = [f"v_lshrrev_b32 v{t0}, 1, v0", f"v_mul_u32_u24 v{t0}, 6144, v{t0}", f"v_and_b32 v{t1}, 1, v0",
          f"v_lshl_add_u32 v{t0}, v{t1}, 4, v{t0}",
          f"s_mul_i32 s{sJ2}, s{sW}, {128*6144}", f"s_lshl_b32 s{sJ1}, s{sCOL}, 5", f"s_add_u32 s{sJ2}, s{sJ2}, s{sJ1}",
          [f"s_cmp_lt_u32 s{sCOL}, 192", f"s_cselect_b32 s{sJ2}, s{sJ2}, 0x10000000"],
          f"v_and_b32 v{t1}, 3, v0", f"v_lshlrev_b32 v{t1}, 6, v{t1}", f"v_lshrrev_b32 v{vT}, 4, v0",
          f"v_lshl_add_u32 v{t1}, v{vT}, 4, v{t1}", f"s_lshl_b32 s{sJ1}, s{sW}, 8",
          f"buffer_load_dwordx4 {v(SCL,4)}, v{t1}, s[{S_C}:{S_C+3}], s{sJ1} offen ;@CV"]
    for m in range(4):
        j1.append([f"s_add_u32 m0, s{sSD}, {m*1024}", f"s_add_u32 s{sJ1}, s{sJ2}, {m*32*6144}",
                   f"buffer_load_dwordx4 v{t0}, s[{S_WMOD}:{S_WMOD+3}], s{sJ1} offen lds ;@WM"])
    spread(j1, 3, 4)
    j1b = [f"v_lshlrev_b32 v{t1}, 4, v0", f"v_add_u32 v{t3}, {SIDE}, v{t1}", f"v_add_u32 v{t1}, s{sSD}, v{t1}",
           f"v_and_b32 v{t0}, 15, v0", f"v_lshlrev_b32 v{t2}, 8, v{vT}", f"v_lshl_add_u32 v{t2}, v{t0}, 3, v{t2}",
           f"v_add_u32 v{t2}, s{sSD}, v{t2}", "@wait vm CV"]
    for j in range(4):
        j1b += [f"v_lshlrev_b32 v{RAW+2*j}, 16, v{SCL+j}", f"v_and_b32 v{RAW+2*j+1}, 0xffff0000, v{SCL+j}"]
    for j in range(8): j1b.append(f"v_mul_f32 v{SHF+j}, 0xbfb8aa3b, v{RAW+j}")
    for j in range(8): j1b.append(f"v_exp_f32 v{SHF+j}, v{SHF+j}")
    for j in range(8): j1b.append(f"v_add_f32 v{SHF+j}, 1.0, v{SHF+j}")
    for j in range(8): j1b.append(f"v_rcp_f32 v{SHF+j}, v{SHF+j}")
    for j in range(8): j1b.append(f"v_mul_f32 v{RAW+j}, v{RAW+j}, v{SHF+j}")
    for j in range(4): j1b.append(f"v_cvt_pk_bf16_f32 v{RAW+j}, v{RAW+2*j}, v{RAW+2*j+1}")
    j1b.append("@wait vm WM")
    MW = [SCL, SCL+4, SHF, SHF+4]
    for m in range(4):
        for rd in range(2): j1b.append(f"ds_read_b64_tr_b16 {v(MW[m]+2*rd,2)}, v{t2} offset:{m*1024 + rd*128} ;@MW")
    for m in range(4):
        for j in range(4):
            j1b.append(f"v_mov_b32_dpp v{F+4*m+j}, v{RAW+j} quad_perm:[{m},{m},{m},{m}] row_mask:0xf bank_mask:0xf")
    j1b += ["@wait lgkm MW", "s_nop 0"]
    for m in range(4): j1b.append(f"{M16} {v(RAW+4,4)}, {v(MW[m],4)}, {v(F+4*m,4)}, {'0' if m == 0 else v(RAW+4,4)}")
    j1b += ["s_nop 7", f"ds_write_b128 v{t1}, {v(RAW+4,4)} ;@MP", "@wait lgkm MP"]
    spread(j1b, 8, 18)
    j1c = [f"ds_read_b128 {v(F+4*w,4)}, v{t3} offset:{w*4096} ;@MR" for w in range(4)]
    j1c += [f"s_lshr_b32 s{sJ1}, s{sCOL}, 5", [f"s_cmp_eq_u32 s{sJ1}, 1", f"s_cselect_b32 s{sJ2}, 1.0, 0"],
            [f"s_cmp_eq_u32 s{sJ1}, 4", f"s_cselect_b32 s{sJ2}, 1.0, s{sJ2}"], "@wait lgkm MR"]
    for j in range(4): j1c += [f"v_add_f32 v{F+j}, v{F+j}, v{F+4+j}", f"v_add_f32 v{F+8+j}, v{F+8+j}, v{F+12+j}"]
    for j in range(4): j1c.append(f"v_add_f32 v{F+j}, v{F+j}, v{F+8+j}")
    for rnd in range(2):
        for h in range(2): j1c.append(f"v_cvt_pk_bf16_f32 v{F+4+h}, v{F+2*h}, v{F+2*h+1}")
        for h in range(2): j1c += [f"v_lshlrev_b32 v{F+2*h}, 16, v{F+4+h}", f"v_and_b32 v{F+2*h+1}, 0xffff0000, v{F+4+h}"]
        if rnd == 0:
            for e in range(4): j1c.append(f"v_add_f32 v{F+e}, s{sJ2}, v{F+e}")
    j1c += [f"v_lshlrev_b32 v{t0}, 4, v{vT}", f"v_lshlrev_b32 v{t1}, 3, v{vT}",
            f"s_lshl_b32 s{sJ1}, s{sCOL}, 6", f"s_lshl_b32 s{sJ2}, s{sCOL}, 5", f"s_add_u32 s{sJ2}, s{sJ2}, 16384",
            [f"s_cmp_lt_u32 s{sCOL}, 192", f"s_cselect_b32 s{sJ1}, s{sJ1}, 0x10000000", f"s_cselect_b32 s{sJ2}, s{sJ2}, 0x10000000"],
            [f"s_cmp_eq_u32 s{sW}, 0", f"s_cselect_b32 s{sJ1}, s{sJ1}, 0x10000000", f"s_cselect_b32 s{sJ2}, s{sJ2}, 0x10000000"],
            [f"s_mov_b32 exec_lo, 0x10001", f"s_mov_b32 exec_hi, 0x10001",
             f"buffer_store_dwordx4 {v(F,4)}, v{t0}, s[{S_MOD}:{S_MOD+3}], s{sJ1} offen sc1 ;@MS",
             f"buffer_store_dwordx2 {v(F+4,2)}, v{t1}, s[{S_MOD}:{S_MOD+3}], s{sJ2} offen sc1 ;@MS",
             "s_mov_b64 exec, -1"]]
    spread(j1c, 18, 22)
    t0, t1, t2, t3 = vA0, vA1, vAR0, vAR1
    j1d = [f"s_lshl_b32 s{sJ1}, s{sW}, 8", f"s_add_u32 s{sJ1}, s{sJ1}, s{sCOL}", [f"s_cmp_lt_u32 s{sJ1}, 64",
           f"s_cselect_b32 s{sJ1}, 0, 0x1000"], f"v_mov_b32 v{t0}, 0", f"v_mov_b32 v{t1}, 1",
           ["@wait vm MS", "s_mov_b64 exec, 1",
            f"buffer_atomic_add v{t1}, v{t0}, s[{S_DBG}:{S_DBG+3}], s{sJ1} offen sc1",
            f"s_lshl_b32 s{sJ1}, s2, 7", f"s_add_u32 s{sJ1}, s{sJ1}, 32768",
            f"buffer_store_dword v{t0}, v{t0}, s[{S_MOD}:{S_MOD+3}], s{sJ1} offen sc1",
            "s_mov_b64 exec, -1"]]
    spread(j1d, 26, 27)
    j2 = [f"v_lshlrev_b32 v{t2}, 4, v0", f"s_lshl_b32 s{sJ1}, s{sTOK}, 10", f"s_lshl_b32 s{sJ2}, s{sW}, 11", f"s_add_u32 s{sJ1}, s{sJ1}, s{sJ2}",
          f"buffer_load_dwordx4 {v(RAW,4)}, v{t2}, s[{S_X}:{S_X+3}], s{sJ1} offen ;@XR",
          f"buffer_load_dwordx4 {v(RAW+4,4)}, v{t2}, s[{S_X}:{S_X+3}], s{sJ1} offen offset:1024 ;@XR"]
    spread(j2, 22, 23)
    pf = [f"v_lshlrev_b32 v{t2}, 13, v{vT}", f"v_and_b32 v{t3}, 15, v0", f"v_lshl_add_u32 v{t2}, v{t3}, 4, v{t2}",
          f"s_lshl_b32 s{sJ2}, s{sKB}, 19", f"s_lshl_b32 s{sJ1}, s{sW}, 17", f"s_add_u32 s{sJ2}, s{sJ2}, s{sJ1}",
          f"s_add_u32 s{sJ2}, s{sJ2}, s{sWB}"]
    for m in range(4):
        pf.append([f"s_add_u32 m0, s{sSD}, {m*1024}", f"s_add_u32 s{sJ1}, s{sJ2}, {m*32768}",
                   f"buffer_load_dwordx4 v{t2}, s[{S_WQ}:{S_WQ+3}], s{sJ1} offen lds ;@PF"])
    spread(pf, 31, 33)
    S0, S1 = vT, vT2; TA, TB = vT3, t3
    j2b = ["@wait vm XR"]
    for r in range(2):
        for j in range(4):
            j2b += [f"v_lshlrev_b32 v{F+r*8+2*j}, 16, v{RAW+4*r+j}", f"v_and_b32 v{F+r*8+2*j+1}, 0xffff0000, v{RAW+4*r+j}"]
    for r, sr in enumerate((S0, S1)):
        j2b.append(f"v_add_f32 v{sr}, v{F+r*8}, v{F+r*8+1}")
        for j in range(2, 8): j2b.append(f"v_add_f32 v{sr}, v{sr}, v{F+r*8+j}")
    j2b += allreduce64_list([S0, S1], [TA, TB])
    for r, sr in enumerate((S0, S1)):
        j2b.append(f"v_mul_f32 v{sr}, 0x3b000000, v{sr}")
        for j in range(8): j2b.append(f"v_sub_f32 v{F+r*8+j}, v{F+r*8+j}, v{sr}")
    for r, sr in enumerate((S0, S1)):
        j2b.append(f"v_mul_f32 v{sr}, v{F+r*8}, v{F+r*8}")
        for j in range(1, 8): j2b.append(f"v_fmac_f32 v{sr}, v{F+r*8+j}, v{F+r*8+j}")
    j2b += allreduce64_list([S0, S1], [TA, TB])
    for sr in (S0, S1):
        j2b += [f"v_mov_b32 v{TA}, 0x3727c5ac", f"v_fmac_f32 v{TA}, 0x3b000000, v{sr}", f"v_rsq_f32 v{sr}, v{TA}", "s_nop 0",
                f"v_mul_f32 v{sr}, 0x3e0293ee, v{sr}"]
    for r, sr in enumerate((S0, S1)):
        for j in range(8): j2b.append(f"v_mul_f32 v{F+r*8+j}, v{F+r*8+j}, v{sr}")
    spread(j2b, 33, 48)
    poll = [f"buffer_load_dword v{t1}, v{t0}, s[{S_DBG}:{S_DBG+3}], 0 offen sc1 ;@PL"]
    spread(poll, 42, 43)
    chk = [["@wait vm PL", f"v_readfirstlane_b32 s{sJ1}, v{t1}", "s_nop 0", f"s_cmp_lt_u32 s{sJ1}, 64", f"s_cbranch_scc1 {name}_spin", f"{name}_go:"],
           f"v_lshlrev_b32 v{t2}, 5, v0",
           f"buffer_load_dwordx4 {v(SHF,4)}, v{t2}, s[{S_MOD}:{S_MOD+3}], 0 offen sc1 ;@ML",
           f"buffer_load_dwordx4 {v(SHF+4,4)}, v{t2}, s[{S_MOD}:{S_MOD+3}], 0 offen offset:16 sc1 ;@ML",
           f"buffer_load_dwordx4 {v(SCL,4)}, v{t2}, s[{S_MOD}:{S_MOD+3}], 0 offen offset:2048 sc1 ;@ML",
           f"buffer_load_dwordx4 {v(SCL+4,4)}, v{t2}, s[{S_MOD}:{S_MOD+3}], 0 offen offset:2064 sc1 ;@ML"]
    spread(chk, 48, 49)
    j2c = [f"v_lshlrev_b32 v{t2}, 7, v0", f"s_lshl_b32 s{sJ1}, s{sW}, 5", f"s_add_u32 s{sJ1}, s{sJ1}, {SIDE}", f"v_add_u32 v{t2}, s{sJ1}, v{t2}",
           "@wait vm ML"]
    for j in range(8): j2c.append(f"v_mul_f32 v{SHF+j}, 0x3e0293ee, v{SHF+j}")
    for r in range(2):
        for j in range(8): j2c.append(f"v_fma_f32 v{F+r*8+j}, v{F+r*8+j}, v{SCL+j}, v{SHF+j}")
        for j in range(4): j2c.append(f"v_cvt_pk_bf16_f32 v{RAW+4*r+j}, v{F+r*8+2*j}, v{F+r*8+2*j+1}")
        j2c.append(f"ds_write_b128 v{t2}, {v(RAW+4*r,4)} offset:{16*r} ;@HW")
    j2c.append("@wait lgkm HW")
    spread(j2c, 54, 58)
    j2d = [f"v_lshlrev_b32 v{t2}, 4, v0", f"s_lshl_b32 s{sJ1}, s{sW}, 11", f"s_add_u32 s{sJ1}, s{sJ1}, {SIDE}", f"v_add_u32 v{t2}, s{sJ1}, v{t2}",
           f"ds_read_b128 {v(RAW,4)}, v{t2} ;@HR", f"ds_read_b128 {v(RAW+4,4)}, v{t2} offset:1024 ;@HR",
           f"v_lshrrev_b32 v{t3}, 3, v0", f"v_lshlrev_b32 v{t3}, 9, v{t3}", f"v_and_b32 v{t0}, 7, v0", f"v_lshl_add_u32 v{t3}, v{t0}, 4, v{t3}",
           f"s_lshr_b32 s{sJ2}, s{sTOK}, 5", f"s_lshl_b32 s{sJ2}, s{sJ2}, 15", f"s_and_b32 s{sJ3}, s{sTOK}, 31", f"s_lshl_b32 s{sJ3}, s{sJ3}, 4",
           f"s_add_u32 s{sJ2}, s{sJ2}, s{sJ3}", f"s_lshl_b32 s{sJ3}, s{sW}, 13", f"s_add_u32 s{sJ2}, s{sJ2}, s{sJ3}", f"s_add_u32 s{sJ3}, s{sJ2}, 4096",
           "@wait lgkm HR",
           f"buffer_store_dwordx4 {v(RAW,4)}, v{t3}, s[{S_XH}:{S_XH+3}], s{sJ2} offen sc1",
           f"buffer_store_dwordx4 {v(RAW+4,4)}, v{t3}, s[{S_XH}:{S_XH+3}], s{sJ3} offen sc1"]
    spread(j2d, 58, 60)

    for G in range(64):
        n = G // 4
        c, q = SEQ[n]
        pre = []
        if (G + 2) % 4 == 0 and G + 2 < 64:
            pre += [f"@wait vm W{(G+2)//4}", "s_barrier"]
        pre.append(f"@wait lgkm RW{G}")
        if G in waitRA: pre.append(f"@wait lgkm RA{waitRA[G]}")
        if G == 8: pre.append("@wait lgkm RA3")
        mf = []
        fr = gfrags(G)
        ts = sorted({t for t, _ in fr})
        for t in ts:
            for T in range(4):
                for i, (tt, ks) in enumerate(fr):
                    if tt != t: continue
                    d = acc(c, t, T)
                    wf = v(WF + (G % 3)*16 + i*4, 4)
                    af = a(((q*4 + ks)*4 + T)*4, 4)
                    cin = "0" if (q == 0 and ks == 0) else v(d, 4)
                    if c < 2: mf.append(f"{M16} {v(d,4)}, {wf}, {af}, {cin}")
                    else:     mf.append(f"{M16} {v(d,4)}, {af}, {wf}, {cin}")
        rw = readW(G + 2) if G + 2 < 64 else []
        slots = [[] for _ in range(16)]
        for k, x in enumerate(rw): slots[2*k].append(x)
        ex = extra[G]
        order = [1, 3, 5, 7, 9, 11, 13, 15, 0, 2, 4, 6, 8, 10, 12, 14]
        cnt = [0]*16
        for k in range(len(ex)): cnt[order[k % 16]] += 1
        k = 0
        for gi in range(16):
            for _ in range(cnt[gi]):
                slots[gi].append(ex[k]); k += 1
        st = (2, 4, 8, 12, 16) if K1S else (8, 16, 32, 48)
        if G in st: stamp(A, 2 + st.index(G))
        A.extend(pre)
        for m, sl in zip(mf, slots):
            A(m); A.extend(flat(sl))
    if not K1S: stamp(A, 6)
    A.extend(flat(ep3[4:6]))
    A.extend(flat(ep3[6:]))
    stamp_flush(A, 0, 8, sW)
    A.label(f"{name}_end")
    A("s_endpgm")
    A.label(f"{name}_spin")
    if "noside" in ABL: A.label(f"{name}_go")
    A(f"""
s_mov_b32 s{sJ3}, 0x40000
{name}_spin2:
s_sleep 16
buffer_load_dword v{t1}, v{t0}, s[{S_DBG}:{S_DBG+3}], 0 offen sc1 ;@cond
s_waitcnt vmcnt(0)
v_readfirstlane_b32 s{sJ1}, v{t1}
s_sub_u32 s{sJ3}, s{sJ3}, 1
s_cbranch_scc1 {name}_go
s_cmp_lt_u32 s{sJ1}, 64
s_cbranch_scc1 {name}_spin2
s_branch {name}_go
""")
    A.lines = resolve_waits(A.lines)
    return name, A, desc(name, 512, 256), (256, 256, 160*1024)

def gaps(mf, fills):
    out = []
    for i, m in enumerate(mf):
        out.extend(m if isinstance(m, list) else [m])
        out.extend(fills.get(i, []))
    return out

def k2():
    global STAMPMAP
    STAMPMAP = [0, 1, 22, 23, 24, 2, 3] if "head" in ABL else [0, 3, 4, 5, 6, 7, 8] if "mid" in ABL else [0, 5, 6, 7, 8, 9, 10]
    GST = [x for x in ABL if x.startswith("g=")]
    if GST: STAMPMAP = [0] + [1000 + int(y) for y in GST[0][2:].split(",")]
    WST = [x for x in ABL if x.startswith("w=")]
    if WST: STAMPMAP = [0]
    A = Asm()
    name = NAME + "_kernel"
    header(A, name)
    sWS = 4
    S_WQ, S_H, S_XH, S_CTX, S_PF, S_WO, S_CNT = 8, 12, 16, 20, 24, 64, 76
    S_CKV, S_TMP, S_WUK, S_WUV, S_MOD, S_DBG = 20, 24, 52, 56, 64, 68
    S_KV = sWS
    sW, sG, sHEAD, sPAIR, sTB, sR, sNS, sT, sT2 = 28, 29, 30, 31, 32, 33, 34, 35, 36
    sSLOT, sDM0, sDK, sDJ, sTHR, sXB, sFAST, sJ, sW4 = 37, 38, 39, 40, 41, 42, 43, 44, 45
    sRET = 46
    sM0, sM1, sREDO, sLIM, sWOB = 48, 49, 50, 51, 62
    sAB, sLA, sOK, sW0, sTOK, sJ1, sJ2, sJ3 = 37, 6, 7, 63, 72, 73, 74, 75
    LDS_K0, LDS_FLAG, LDS_PF = 128*1024, 136*1024, 144*1024
    SIDE = 144*1024; MODL = 152*1024
    vL16, vWD, vWR, vFLG, vCUR, vMSK, vNINF, vL, vTS, vDEL, vF, vWOD = 1, 2, 3, 7, 8, 10, 11, 12, 13, 14, 15, 9
    O, QF, S, P, NEGM, FR, T = 16, 80, 112, 144, 160, 176, 208
    XR = 112
    WFR = 176
    ACC, CR, WF = 16, 80, 208
    vA0, vA1, vAR, vTR = 3, 4, 5, 240
    SHF, SCL, XP = 244, 248, 252
    sXS = 3
    slow_st = []
    def xstore(txt, tag=""):
        if "noxs" in ABL: return [f"{txt} sc1 ;@{tag}" if tag else f"{txt} sc1"]
        lab = A.newlabel("u_wt")
        slow_st.append((lab, txt))
        return [f"s_cbranch_vccz {lab}", f"{txt} ;@{tag}" if tag else txt, lab + "r:"]
    sROT, sCK = 60, 61
    t0, t1, t2 = 13, 14, 15
    SJ = CR + 96
    A(f"""
s_cmp_ge_u32 s2, 256
s_cbranch_scc1 {name}_end
""")
    stamp(A, 0)
    if "shuf" in ABL:
        A("s_and_b32 s3, s2, 7\ns_lshl_b32 s3, s3, 3\ns_bfe_u32 s4, s2, 0x30003\ns_and_b32 s2, s2, 0xc0\ns_or_b32 s2, s2, s3\ns_or_b32 s2, s2, s4")
    A(f"""
s_load_dwordx2 s[{S_CKV}:{S_CKV+1}], s[0:1], {ARG['ckv']}
s_load_dwordx2 s[{S_WUK}:{S_WUK+1}], s[0:1], {ARG['wuk']}
s_load_dwordx2 s[{S_WUV}:{S_WUV+1}], s[0:1], {ARG['wuv']}
s_load_dwordx2 s[{S_WQ}:{S_WQ+1}], s[0:1], {ARG['wq']}
s_load_dwordx2 s[{sWS}:{sWS+1}], s[0:1], {ARG['ws']}
s_load_dwordx2 s[{S_DBG}:{S_DBG+1}], s[0:1], {ARG['dbg']}
s_load_dwordx4 s[80:83], s[0:1], {ARG['c']}      ; c, wmod
s_load_dwordx2 s[84:85], s[0:1], {ARG['x']}
s_memrealtime s[{sRET}:{sRET+1}]
v_lshrrev_b32 v1, 6, v0
v_and_b32 v0, 63, v0
s_and_b32 s{sT}, s2, 7
v_readfirstlane_b32 s{sW}, v1
s_lshr_b32 s{sT2}, s2, 3
s_lshl_b32 s{sHEAD}, s{sT}, 2
s_and_b32 s{sT}, s{sT2}, 3
s_add_u32 s{sHEAD}, s{sHEAD}, s{sT}
s_lshr_b32 s{sPAIR}, s{sT2}, 2
s_lshl_b32 s{sROT}, s{sT}, 1
s_add_u32 s{sROT}, s{sROT}, s{sPAIR}
s_and_b32 s{sROT}, s{sROT}, {0 if "norot" in ABL else 7}
v_lshlrev_b32 v{vL16}, 4, v0
; W dma voffset: (l/8)*8192 + ((l%8)*16 ^ (l&16)*4)
v_lshrrev_b32 v{T}, 4, v0
v_and_b32 v{T+1}, 16, v0
v_and_b32 v{T+2}, 7, v0
v_lshrrev_b32 v{T+5}, 3, v0
v_lshlrev_b32 v{vWD}, 2, v{T+2}
v_xor_b32 v{vWD}, v{vWD}, v{T+1}
v_lshlrev_b32 v{vWD}, 2, v{vWD}
v_lshl_add_u32 v{vWD}, v{T+5}, 13, v{vWD}
; ckv dma voffset: (l/8)*1024 + ((l%8) ^ (l>>4))*16 ; odd instrs ^64
v_xor_b32 v{vA0}, v{T+2}, v{T}
v_lshlrev_b32 v{vA0}, 4, v{vA0}
v_lshl_add_u32 v{vA0}, v{T+5}, 10, v{vA0}
v_xor_b32 v{vA1}, 64, v{vA0}
s_mov_b32 s{S_CKV+2}, {2*MB}
s_mov_b32 s{S_CKV+3}, 0x20000
s_mov_b32 s{S_WUK+2}, {4*MB}
s_mov_b32 s{S_WUK+3}, 0x20000
s_mov_b32 s{S_WUV+2}, {4*MB}
s_mov_b32 s{S_WUV+3}, 0x20000
s_lshl_b32 s{sAB}, s{sPAIR}, 18
s_lshl_b32 s{sT}, s{sW}, 15
s_add_u32 s{sAB}, s{sAB}, s{sT}
s_lshl_b32 s{sLA}, s{sW}, 13
s_lshl_b32 s{sM0}, s{sW}, 10
s_lshl_b32 s{sM1}, s{sHEAD}, 8
s_lshl_b32 s{sT}, s{sW}, 16
s_add_u32 s{sM1}, s{sM1}, s{sT}           ; W dma global: head*256 + wave*8 rows
s_lshl_b32 s{sT}, s{sROT}, 19
s_add_u32 s{sM1}, s{sM1}, s{sT}
s_lshl_b32 s{sROT}, s{sROT}, 7
s_waitcnt lgkmcnt(0)
""")
    def wloc(n): return 65536 + (n % 5)*16384
    def dmaW(n):
        out = []
        for m in range(2):
            if n < 8 or n >= 16: sr, off = (S_WUK if n < 8 else S_WQ), 64*(n % 8)*8192 + m*128
            else:     sr, off = S_WUV, (128*(n % 4) + 64*m)*8192 + ((n // 4) % 2)*128
            out.append([f"s_add_u32 m0, s{sM0}, {wloc(n) + m*8192}", f"s_add_u32 s{sT}, s{sM1}, {off}", f"s_and_b32 s{sT}, s{sT}, 0x3fffff",
                        f"buffer_load_dwordx4 v{vWD}, s[{sr}:{sr+3}], s{sT} offen lds ;@W{n}"])
        return out
    def dmaA(sl):
        return [([f"s_add_u32 s{sCK}, s{sROT}, {sl*128}", f"s_and_b32 s{sCK}, s{sCK}, 0x3ff", f"s_add_u32 s{sCK}, s{sCK}, s{sAB}"] if i == 0 else []) +
                [f"s_add_u32 m0, s{sLA}, {(sl % 2)*4096 + i*1024}", f"s_add_u32 s{sT}, s{sCK}, {i*8192}",
                 f"buffer_load_dwordx4 v{vA1 if i & 1 else vA0}, s[{S_CKV}:{S_CKV+3}], s{sT} offen lds ;@A{sl}"] for i in range(4)]
    def cfr(ks): return CR + ks*4
    xfr = cfr
    def readA(sl):
        return [f"ds_read_b128 {v(cfr(4*sl+kk),4)}, v{vAR+kk} offset:{(sl % 2)*4096} ;@RA{sl}" for kk in range(4)]
    A.extend(flat(dmaW(0) + dmaA(0)))
    def srdl(d, base, size):
        return [f"s_mov_b32 s{d}, s{base}", f"s_mov_b32 s{d+1}, s{base+1}", f"s_mov_b32 s{d+2}, {size}", f"s_mov_b32 s{d+3}, 0x20000"]
    CV, XRAW = XP, SJ + 28
    A.extend([f"v_mul_u32_u24 v{t0}, 6144, v{T+5}", f"v_lshl_add_u32 v{t0}, v{T+2}, 4, v{t0}",
              f"v_and_b32 v{t2}, 3, v0", f"v_lshlrev_b32 v{t2}, 6, v{t2}", f"v_lshl_add_u32 v{t2}, v{T}, 4, v{t2}",
              f"s_and_b32 s{sJ3}, s2, 3", f"s_lshl_b32 s{sJ1}, s{sJ3}, 3", f"s_add_u32 s{sJ1}, s{sJ1}, s{sW}", f"s_mul_i32 s{sJ2}, s{sJ1}, {16*6144}",
              f"s_lshr_b32 s{sJ1}, s2, 2", f"s_lshl_b32 s{sJ1}, s{sJ1}, 7", f"s_add_u32 s{sJ2}, s{sJ2}, s{sJ1}",
              f"s_cmp_lt_u32 s2, 192", f"s_cselect_b32 s{sJ2}, s{sJ2}, 0x10000000", f"s_lshl_b32 s{sT2}, s{sW}, 11"] + srdl(S_TMP, 82, 512*3072*2))
    if "nobar0" not in ABL: A("s_barrier")
    for m in range(2):
        A.extend([f"s_add_u32 m0, s{sT2}, {SIDE + m*1024}", f"s_add_u32 s{sJ1}, s{sJ2}, {m*8*6144}",
                  f"buffer_load_dwordx4 v{t0}, s[{S_TMP}:{S_TMP+3}], s{sJ1} offen lds ;@WM"])
    A.extend([f"s_lshl_b32 s{sJ1}, s{sJ3}, 8"] + srdl(S_TMP, 80, 1024) +
             [f"buffer_load_dwordx4 {v(CV,4)}, v{t2}, s[{S_TMP}:{S_TMP+3}], s{sJ1} offen ;@CV"])
    A.extend(flat(dmaW(1)))
    if "nocpf" not in ABL:
        A(f"""
s_getpc_b64 s[{S_TMP}:{S_TMP+1}]
u_pc:
s_sub_u32 s{S_TMP}, s{S_TMP}, u_pc-{name}
s_subb_u32 s{S_TMP+1}, s{S_TMP+1}, 0
s_mov_b32 s{S_TMP+2}, text_end-{name}
s_mov_b32 s{S_TMP+3}, 0x20000
s_lshr_b32 s{sT}, s2, 3
s_lshl_b32 s{sT}, s{sT}, 3
s_add_u32 s{sT}, s{sT}, s{sW}
s_lshl_b32 s{sT}, s{sT}, 9
v_lshlrev_b32 v{t0}, 7, v0
s_mov_b64 exec, 0xf
buffer_load_dword v{t1}, v{t0}, s[{S_TMP}:{S_TMP+3}], s{sT} offen
s_mov_b64 exec, -1
""")
    A.extend(flat(dmaA(1)))
    A(f"""
s_lshr_b32 s{sG}, s{sW}, 2
s_and_b32 s{sW4}, s{sW}, 3
s_sub_u32 s{sT}, 15, s{sPAIR}
s_cmp_eq_u32 s{sG}, 0
s_cselect_b32 s{sTB}, s{sT}, s{sPAIR}
s_lshl_b32 s{sTB}, s{sTB}, 2
s_add_u32 s{sTB}, s{sTB}, s{sW4}          ; tokblk32 = U
s_lshl_b32 s{sNS}, s{sT}, 1
s_add_u32 s{sNS}, s{sNS}, 2
s_cmp_lt_u32 s{sHEAD}, 16
s_cselect_b32 s{sTOK}, s{sPAIR}, s{sT}
s_lshl_b32 s{sTOK}, s{sTOK}, 7
s_and_b32 s{sT}, s{sHEAD}, 15
s_lshl_b32 s{sT}, s{sT}, 3
s_add_u32 s{sTOK}, s{sTOK}, s{sT}
s_lshl_b32 s{sXB}, s{sTB}, 15
; tr read addr: h=l/32, half16=(l/16)&1, r=(l%16)/4, c=l%4: (8h+r)*128 + (r>>1)*64 + 32 half16 + 8c
v_bfe_u32 v{T+2}, v0, 2, 2                ; r
v_lshrrev_b32 v{T+3}, 5, v0               ; h
v_lshl_add_u32 v{vTR}, v{T+3}, 3, v{T+2}
v_lshlrev_b32 v{vTR}, 7, v{vTR}
v_and_b32 v{T+4}, 8, v0
v_lshl_add_u32 v{vTR}, v{T+4}, 3, v{vTR}
v_lshl_add_u32 v{vTR}, v{T+1}, 1, v{vTR}
v_and_b32 v{T+4}, 3, v0
v_lshl_add_u32 v{vTR}, v{T+4}, 3, v{vTR}
v_add_u32 v{vTR}, 0x10000, v{vTR}
v_xor_b32 v{vTR+1}, 64, v{vTR}
v_add_u32 v{vTR+2}, 0x10000, v{vTR}
v_add_u32 v{vTR+3}, 0x10000, v{vTR+1}
; ckv frag read addr: row=l%32: row*128 + ((h ^ ((row>>1)&7))*16) ^ (kk*32) + staging
v_and_b32 v{T+2}, 31, v0
v_bfe_u32 v{T+4}, v0, 1, 3
v_xor_b32 v{T+4}, v{T+4}, v{T+3}
v_lshlrev_b32 v{vAR}, 7, v{T+2}
v_lshl_add_u32 v{vAR}, v{T+4}, 4, v{vAR}
v_add_u32 v{vAR}, s{sLA}, v{vAR}
v_xor_b32 v{vAR+1}, 32, v{vAR}
v_xor_b32 v{vAR+2}, 64, v{vAR}
v_xor_b32 v{vAR+3}, 96, v{vAR}
s_mov_b32 s{S_WQ+2}, {4*MB}
s_mov_b32 s{S_WQ+3}, 0x20000
s_mov_b32 s{S_DBG+2}, 256
s_mov_b32 s{S_DBG+3}, 0x20000
s_lshl_b32 s{sT}, s{sHEAD}, 20
s_add_u32 s{S_H}, s{sWS}, s{sT}
s_addc_u32 s{S_H+1}, s{sWS+1}, 0
s_mov_b32 s{S_H+2}, {MB}
s_mov_b32 s{S_H+3}, 0x20000
s_lshl_b32 s{sOK}, s{sPAIR}, 16
s_add_u32 s{sOK}, s{sOK}, s{sLA}
s_cmp_eq_u32 s{sW}, 0
s_cselect_b32 s{sW0}, 0, 0x10000000
""")
    srd(A, S_XH, sWS, 2*MB, WS_XH); srd(A, S_MOD, sWS, 65536, WS_MODP); srd(A, S_CNT, sWS, 32768, WS_CNT)
    A.extend([f"s_add_u32 s{sJ1}, s{sTOK}, s{sW}", f"s_lshl_b32 s{sJ1}, s{sJ1}, 10"] + srdl(S_TMP, 84, 2*MB) +
             [f"buffer_load_dwordx4 {v(XRAW,4)}, v{vL16}, s[{S_TMP}:{S_TMP+3}], s{sJ1} offen ;@XW"])
    A.extend([f"s_getreg_b32 s{sJ1}, hwreg(HW_REG_XCC_ID, 0, 4)", f"s_and_b32 s{sRET}, s{sRET}, -16", f"s_or_b32 s{sRET}, s{sRET}, s{sJ1}",
              f"s_lshl_b32 s{sXS}, s{sHEAD}, 7", f"s_add_u32 s{sXS}, s{sXS}, 49152", f"s_add_u32 s{sXS}, s{sXS}, s{sW0}",
              f"s_lshl_b32 s{sJ1}, s{sPAIR}, 3", f"s_add_u32 s{sJ1}, s{sJ1}, s{sXS}",
              f"v_mov_b32 v10, s{sRET}", f"v_mov_b32 v11, s{sRET+1}", f"v_mov_b32 v9, 0", "s_mov_b64 exec, 1",
              f"buffer_store_dwordx2 v[10:11], v9, s[{S_MOD}:{S_MOD+3}], s{sJ1} offen sc1", "s_mov_b64 exec, -1",
              f"v_and_b32 v9, 1, v0", f"v_lshlrev_b32 v9, 7, v9", f"v_and_b32 v12, 7, v0", f"v_lshlrev_b32 v12, 3, v12"])

    def dma_init():
        return [f"s_lshl_b32 s{sDM0}, s{sW4}, 12", f"s_add_u32 s{sDK}, s{sDM0}, {512*1024 + 8192}", f"s_mov_b32 s{sDJ}, 0"]
    def stage_parts():
        it = []
        for m in range(4):
            pre = [f"s_mov_b32 m0, s{sDM0}", f"s_sub_u32 s{sT2}, s{sDK}, {512*1024 + 8192}"] if m == 0 else []
            it.append(pre + [f"buffer_load_dwordx4 v{vL16}, s[{S_H}:{S_H+3}], s{sDK} offen offset:{m*1024} sc1 lds ;@cond"])
        for m in range(4):
            pre = [f"s_add_u32 m0, s{sDM0}, 16384", f"s_add_u32 s{sDJ}, s{sDJ}, 1"] if m == 0 else []
            post = [f"s_add_u32 s{sDK}, s{sDK}, 16384", f"s_add_u32 s{sDM0}, s{sDM0}, 32768", f"s_and_b32 s{sDM0}, s{sDM0}, 0x1ffff"] if m == 3 else []
            it.append(pre + [f"buffer_load_dwordx4 v{vL16}, s[{S_H}:{S_H+3}], s{sT2} offen offset:{m*1024} sc1 lds ;@cond"] + post)
        return it
    def wo_parts():
        out = [f"s_sub_u32 s{sT}, s{sDJ}, s{sNS}", f"s_lshl_b32 s{sT}, s{sT}, 17", f"s_add_u32 s{sT}, s{sT}, s{sWOB}"]
        for m in range(8):
            out += [f"s_add_u32 m0, s{sDM0}, {(m // 4)*16384 + (m % 4)*1024}", f"s_add_u32 s{sT2}, s{sT}, {(m // 4)*65536 + (m % 4)*4096}",
                    f"buffer_load_dwordx4 v{vWOD}, s[{S_WO}:{S_WO+3}], s{sT2} offen lds ;@cond"]
        out += [f"s_add_u32 s{sDJ}, s{sDJ}, 1", f"s_add_u32 s{sDM0}, s{sDM0}, 32768", f"s_and_b32 s{sDM0}, s{sDM0}, 0x1ffff"]
        return out
    def stage_dma(early=False):
        lab = A.newlabel("k2_nodma")
        return [f"s_cmp_eq_u32 s{sG}, 0", f"s_cbranch_scc1 {lab}", f"s_call_b64 s[{sRET}:{sRET+1}], k2_stage", lab + ":"]

    D1 = 6
    GMS, GPM, GHS, GPHN = 4, 7, 12, 14
    for x in ABL:
        if x.startswith("ch="): GMS, GPM, GHS, GPHN = [int(y) for y in x[3:].split(",")]
    units = []
    def unit(n, off, db, acc, other, wfirst, first):
        units.append((n, off, db, acc, other, wfirst, first))
    for n in range(8):
        for db in (2, 3, 0, 1):
            for kk in range(4): unit(n, (db // 2)*8192 + kk*2048, db % 2, ACC + 16*db, cfr(4*n + kk), True, n == 0 and kk == 0)
    for n in range(8, 16):
        hc = (n // 4) % 2
        for g4 in range(2):
            for dbl in range(2):
                for kk in range(4*g4, 4*g4 + 4):
                    ks = 8*(n % 4) + kk
                    unit(n, kk*2048, dbl, ACC + 32*hc + 16*dbl, cfr(ks), False, ks == 0)
    for n in range(16, 24):
        for db in range(4):
            for kk in range(4): unit(n, (db // 2)*8192 + kk*2048, db % 2, ACC + 16*db, cfr(4*(n - 16) + kk), True, n == 16 and kk == 0)
    NU = len(units)
    def rdW(i):
        n, off, db = units[i][:3]
        loc = wloc(n) + off
        st, o = (0, loc - 65536) if loc < 131072 else (1, loc - 131072)
        r = WF + (i % 8)*4
        return [f"ds_read_b64_tr_b16 {v(r+2*rd,2)}, v{vTR + 2*st + db} offset:{o + rd*512} ;@U{i}" for rd in range(2)]
    pre = {i: [] for i in range(NU)}
    fl = {i: [] for i in range(NU)}
    bar = {}
    def Bgap(n): return 16*n - D1
    for n in range(1, 24): bar[Bgap(n)] = [f"@wait vm W{n}"]
    def spread(lst, i0, i1):
        n = i1 - i0
        for k, x in enumerate(lst): fl[i0 + (k*n)//len(lst)].append(x)
    def place(lst, gs):
        for x, g in zip(lst, gs): fl[g].append(x)
    place(dmaW(2), (0, 2)); place(dmaA(2), (4, 6, 8, 10)); place(dmaW(3), (12, 25)); place(dmaW(4), (27, 28))
    for n in range(2, 21): place(dmaW(n + 3), (Bgap(n) + 15, Bgap(n) + 17) if n < 6 else (Bgap(n) + 2, Bgap(n) + 10))
    def slab(sl, i):
        fl[i] += [f"@wait vm A{sl}"] + readA(sl)
        if sl + 2 < 8:
            fl[i + 3].append(f"@wait lgkm RA{sl}")
            place(dmaA(sl + 2), (i + 3, i + 6, i + 9, i + 12))
    for sl in range(1, 8): slab(sl, 16*sl - 5)
    pre[0].append("@wait lgkm RA0")
    pre[96].append("@wait lgkm RA6"); pre[112].append("@wait lgkm RA7")
    def pack(src, dst): return [f"v_cvt_pk_bf16_f32 v{dst+r}, v{src+2*r}, v{src+2*r+1}" for r in range(8)]
    def kvstore(reg, base, db, sp):
        return [f"s_add_u32 s{sJ3}, s{sOK}, {base + (db // 2)*4096}"] + xstore(
                f"buffer_store_dwordx4 {v(reg,4)}, v{vL16}, s[{S_H}:{S_H+3}], s{sJ3} offen offset:{((db % 2)*2 + sp)*1024}", "KVS")
    KD = {2: ACC + 32, 3: ACC + 48, 0: ACC + 40, 1: ACC + 56}
    for q, db in enumerate((2, 3, 0, 1)): spread(pack(ACC + 16*db, KD[db]), 118 + 4*q, 120 + 4*q)
    for q, (db, sp) in enumerate((d, s_) for d in (2, 0, 3, 1) for s_ in range(2)):
        fl[121 + 9*q].append(kvstore(KD[db] + 4*sp, 512*1024, db, sp))
    for db in range(4):
        g0 = 190 + 64*(db // 2) + 4*(db % 2)
        dst = [ACC + 16*db, ACC + 16*db + 4] if db < 2 else [244, 248] if db == 2 else [252, 8]
        spread(pack(ACC + 16*db, dst[0])[:4] + pack(ACC + 16*db + 8, dst[1])[:4], g0, g0 + 3)
        for sp in range(2):
            q = (db % 2)*2 + sp
            fl[(198 + 14*q) if db < 2 else (257 + 6*q + (1 if q else 0))].append(kvstore(dst[sp], 0, db, sp))
    spread(pack(O, QF), 375, 377); spread(pack(O + 16, QF + 8), 380, 384)
    F = SJ
    BF = [SJ + 16, SJ + 20, SJ + 24, SHF]
    j = ["@wait vm CV"]
    for k in range(4): j += [f"v_lshlrev_b32 v{F+2*k}, 16, v{CV+k}", f"v_and_b32 v{F+2*k+1}, 0xffff0000, v{CV+k}"]
    for k in range(8): j.append(f"v_mul_f32 v{F+8+k}, 0xbfb8aa3b, v{F+k}")
    for k in range(8): j.append(f"v_exp_f32 v{F+8+k}, v{F+8+k}")
    for k in range(8): j.append(f"v_add_f32 v{F+8+k}, 1.0, v{F+8+k}")
    for k in range(8): j.append(f"v_rcp_f32 v{F+8+k}, v{F+8+k}")
    for k in range(8): j.append(f"v_mul_f32 v{F+k}, v{F+k}, v{F+8+k}")
    for k in range(4): j.append(f"v_cvt_pk_bf16_f32 v{CV+k}, v{F+2*k}, v{F+2*k+1}")
    j += [f"v_lshrrev_b32 v{t2}, 4, v0", f"v_bfe_u32 v{t0}, v0, 2, 2", f"v_lshl_add_u32 v{t0}, v{t2}, 3, v{t0}", f"v_and_b32 v{t1}, 3, v0",
          f"v_lshlrev_b32 v{t1}, 3, v{t1}", f"v_lshl_add_u32 v{t1}, v{t0}, 7, v{t1}", f"s_lshl_b32 s{sJ1}, s{sW4}, 5", f"s_add_u32 s{sJ1}, s{sJ1}, {SIDE}",
          f"v_add_u32 v{t1}, s{sJ1}, v{t1}"]
    spread(j, 12, Bgap(2))
    j = []
    for m in range(4):
        for rd in range(2): j.append(f"ds_read_b64_tr_b16 {v(F+4*m+2*rd,2)}, v{t1} offset:{m*4096 + rd*512} ;@MW")
    for m in range(4):
        for k in range(4): j.append(f"v_mov_b32_dpp v{BF[m]+k}, v{CV+k} quad_perm:[{m},{m},{m},{m}] row_mask:0xf bank_mask:0xf")
    j += [f"v_lshlrev_b32 v{t0}, 4, v{t2}", f"v_lshlrev_b32 v{t2}, 13, v{t2}",
          ["@wait lgkm MW"] + [f"{M16} {v(SCL,4)}, {v(F+4*m,4)}, {v(BF[m],4)}, {v(SCL,4) if m else 0}" for m in range(4)],
          f"v_mov_b32 v{CV}, 0",
          f"s_and_b32 s{sJ1}, s2, 3", f"s_mul_i32 s{sJ1}, s{sJ1}, 12288", f"s_lshr_b32 s{sJ2}, s2, 2", f"s_lshl_b32 s{sJ2}, s{sJ2}, 8", f"s_add_u32 s{sJ1}, s{sJ1}, s{sJ2}",
          f"s_lshl_b32 s{sJ2}, s{sW}, 6", f"s_add_u32 s{sJ1}, s{sJ1}, s{sJ2}", f"s_lshl_b32 s{sJ}, s2, 7", f"s_add_u32 s{sJ}, s{sJ}, s{sW0}",
          [f"s_cmp_lt_u32 s2, 192", f"s_cselect_b32 s{sJ1}, s{sJ1}, 0x10000000"], f"s_and_b32 s{sJ2}, s2, 1",
          [f"s_cmp_lt_u32 s2, 64", f"s_cselect_b32 s{sJ}, s{sJ}, 0x10000000", f"s_cselect_b32 s{sJ2}, s{sJ2}, 32"],
          [f"s_cmp_eq_u32 s{sG}, 0", f"s_cselect_b32 s{sJ1}, s{sJ1}, 0x10000000"],
          [f"s_mov_b32 exec_lo, 0x10001", f"s_mov_b32 exec_hi, 0x10001",
           f"buffer_store_dwordx4 {v(SCL,4)}, v{t0}, s[{S_MOD}:{S_MOD+3}], s{sJ1} offen sc1 ;@MS",
           f"buffer_store_dword v{CV}, v{t2}, s[{S_CNT}:{S_CNT+3}], s{sJ} offen sc1 ;@MS",
           "s_mov_b64 exec, -1"],
          f"s_lshl_b32 s{sJ2}, s{sJ2}, 7", f"s_add_u32 s{sJ2}, s{sJ2}, s{sW0}", f"v_mov_b32 v{t0}, 0", f"v_mov_b32 v{t1}, 1"]
    spread(j, Bgap(2), Bgap(2) + 13)
    def atomic(srd_, soff):
        return ["s_mov_b64 exec, 1", f"buffer_atomic_add v{t1}, v{t0}, s[{srd_}:{srd_+3}], s{soff} offen sc1", "s_mov_b64 exec, -1"]
    bar[Bgap(GMS)].append("@wait vm MS")
    fl[Bgap(GMS)].append(atomic(S_DBG, sJ2))
    L = SJ + 16; S0, TA = SJ + 24, SJ + 25
    j = ["@wait vm XW"]
    for k in range(4): j += [f"v_lshlrev_b32 v{L+2*k}, 16, v{XRAW+k}", f"v_and_b32 v{L+2*k+1}, 0xffff0000, v{XRAW+k}"]
    j.append(f"v_add_f32 v{S0}, v{L}, v{L+1}")
    for k in range(2, 8): j.append(f"v_add_f32 v{S0}, v{S0}, v{L+k}")
    j += allreduce64_list([S0], [TA])
    j.append(f"v_mul_f32 v{S0}, 0x3b000000, v{S0}")
    for k in range(8): j.append(f"v_sub_f32 v{L+k}, v{L+k}, v{S0}")
    j.append(f"v_mul_f32 v{S0}, v{L}, v{L}")
    for k in range(1, 8): j.append(f"v_fmac_f32 v{S0}, v{L+k}, v{L+k}")
    j += allreduce64_list([S0], [TA])
    j += [f"v_mov_b32 v{TA}, 0x3727c5ac", f"v_fmac_f32 v{TA}, 0x3b000000, v{S0}", f"v_rsq_f32 v{S0}, v{TA}", "s_nop 0"]
    for k in range(8): j.append(f"v_mul_f32 v{L+k}, v{L+k}, v{S0}")
    for k in range(4): j.append(f"v_cvt_pk_bf16_f32 v{XP+k}, v{L+2*k}, v{L+2*k+1}")
    j += [f"v_lshlrev_b32 v{TA}, 7, v0", f"s_lshl_b32 s{sJ1}, s{sW}, 4", f"s_add_u32 s{sJ1}, s{sJ1}, {SIDE}", f"v_add_u32 v{TA}, s{sJ1}, v{TA}",
          f"ds_write_b128 v{TA}, {v(XP,4)} ;@HW", f"s_add_u32 s{sJ1}, s{sM0}, {SIDE}", f"v_add_u32 v{TA}, s{sJ1}, v{vL16}"]
    spread(j, 44, Bgap(5) - 1)
    bar[Bgap(5)].append("@wait lgkm HW")
    fl[Bgap(5) + 1].append(f"ds_read_b128 {v(XP,4)}, v{TA} ;@HR")
    spins = []
    def poll(srd_, soff, tag): return f"buffer_load_dword v{t1}, v{9 if tag == 'PM' else t0}, s[{srd_}:{srd_+3}], {soff} offen sc1 ;@{tag}"
    def check(srd_, soff, tag, target):
        spins.append((srd_, soff, tag, target))
        two = [f"v_readlane_b32 s{sR}, v{t1}, 1", f"s_add_u32 s{sJ1}, s{sJ1}, s{sR}"] if tag == "PM" else []
        return [f"@wait vm {tag}", f"v_readfirstlane_b32 s{sJ1}, v{t1}"] + two + [f"s_add_u32 s{sJ1}, s{sJ1}, s{sW0}", f"s_cmp_lt_u32 s{sJ1}, {target}",
                f"s_cbranch_scc1 u_spin_{tag}", f"u_go_{tag}:"]
    fl[Bgap(GPM) - 14].append(poll(S_DBG, f"s{sW0}", "PM"))
    bar[Bgap(GPM)].append(check(S_DBG, f"s{sW0}", "PM", 64))
    fl[76].append(f"buffer_load_dwordx2 v[10:11], v12, s[{S_MOD}:{S_MOD+3}], s{sXS} offen sc1 ;@XC")
    j = [f"s_sub_u32 s{sJ1}, s{sRET}, 2048", "@wait vm XC", f"v_subrev_u32 v12, s{sJ1}, v10", f"v_xor_b32 v11, s{sRET+1}, v11",
         f"v_and_b32 v10, 15, v12", f"v_lshrrev_b32 v12, 13, v12", f"v_or3_b32 v10, v10, v11, v12", f"s_add_u32 s{sJ1}, s{sM0}, {MODL}",
         f"v_mov_b32 v11, s{sJ1}", [f"v_cmp_ne_u32 vcc, 0, v10", "s_nop 1", "v_mov_b32 v10, vcc_lo"], f"ds_write_b32 v11, v10 ;@XW2", f"v_mov_b32 v11, {MODL}"]
    spread(j, 90, 97)
    bar[Bgap(7)].append("@wait lgkm XW2")
    fl[Bgap(7)].append(f"ds_read_b32 v{SHF}, v11 ;@XR2")
    fl[Bgap(7) + 6].append(["@wait lgkm XR2", f"v_readfirstlane_b32 s{sXS}, v{SHF}", "s_nop 0", f"s_cmp_eq_u32 s{sXS}, 0", "s_cselect_b64 vcc, -1, 0"])
    M = 4
    ta, tb, tc = 3, 12, t2
    g = max(Bgap(GPM), 107)
    j = [f"v_and_b32 v{ta}, 3, v0", f"v_mul_u32_u24 v{ta}, 12288, v{ta}", f"v_and_b32 v{tb}, 4, v0", f"v_lshl_add_u32 v{ta}, v{tb}, 9, v{ta}",
         f"v_lshrrev_b32 v{tc}, 3, v0", f"v_lshl_add_u32 v{ta}, v{tc}, 5, v{ta}", f"s_lshl_b32 s{sJ2}, s{sW}, 8",
         f"v_lshrrev_b32 v{tb}, 2, v{tb}", f"v_cvt_f32_u32 v{tb}, v{tb}"]
    spread(j, g - 10, g - 2)
    fl[g] += [f"buffer_load_dwordx4 {v(M,4)}, v{ta}, s[{S_MOD}:{S_MOD+3}], s{sJ2} offen sc1 ;@ML",
              f"buffer_load_dwordx4 {v(M+4,4)}, v{ta}, s[{S_MOD}:{S_MOD+3}], s{sJ2} offen offset:16 sc1 ;@ML"]
    j = [f"s_mov_b32 s{sJ2}, 0x3e0293ee", "@wait vm ML lgkm HR"]
    for pat in ("quad_perm:[1,0,3,2]", "quad_perm:[2,3,0,1]"):
        for k in range(8): j.append(f"v_add_f32_dpp v{M+k}, v{M+k}, v{M+k} {pat} row_mask:0xf bank_mask:0xf")
    for k in range(4): j.append(f"v_cvt_pk_bf16_f32 v{SCL+k}, v{M+2*k}, v{M+2*k+1}")
    for k in range(4): j += [f"v_lshlrev_b32 v{M+2*k}, 16, v{SCL+k}", f"v_and_b32 v{M+2*k+1}, 0xffff0000, v{SCL+k}"]
    for k in range(8): j.append(f"v_add_f32 v{M+k}, v{M+k}, v{tb}")
    for k in range(4): j.append(f"v_cvt_pk_bf16_f32 v{SCL+k}, v{M+2*k}, v{M+2*k+1}")
    for k in range(4): j.append(f"v_mov_b32 v{SHF+k}, v{SCL+k}")
    for k in range(4): j.append(f"v_mov_b32_dpp v{SHF+k}, v{SCL+k} row_half_mirror row_mask:0xf bank_mask:0xa")
    for k in range(4): j.append(f"v_mov_b32_dpp v{SCL+k}, v{SCL+k} row_half_mirror row_mask:0xf bank_mask:0x5")
    for k in range(4):
        a_, b_, c_ = M + 4*(k % 2), M + 4*(k % 2) + 1, M + 4*(k % 2) + 2
        j += [f"v_lshlrev_b32 v{a_}, 16, v{XP+k}", f"v_lshlrev_b32 v{b_}, 16, v{SCL+k}", f"v_lshlrev_b32 v{c_}, 16, v{SHF+k}",
              f"v_fmac_f32 v{c_}, v{a_}, v{b_}",
              f"v_and_b32 v{a_}, 0xffff0000, v{XP+k}", f"v_and_b32 v{b_}, 0xffff0000, v{SCL+k}", f"v_and_b32 v{SHF+k}, 0xffff0000, v{SHF+k}",
              f"v_fmac_f32 v{SHF+k}, v{a_}, v{b_}",
              f"v_mul_f32 v{c_}, s{sJ2}, v{c_}", f"v_mul_f32 v{SHF+k}, s{sJ2}, v{SHF+k}",
              f"v_cvt_pk_bf16_f32 v{XP+k}, v{c_}, v{SHF+k}"]
    j += [f"v_lshlrev_b32 v{tb}, 9, v{tc}", f"v_and_b32 v{tc}, 7, v0", f"v_lshl_add_u32 v{tb}, v{tc}, 4, v{tb}",
          f"s_lshr_b32 s{sJ2}, s{sTOK}, 5", f"s_lshl_b32 s{sJ2}, s{sJ2}, 15", f"s_and_b32 s{sJ1}, s{sTOK}, 31", f"s_lshl_b32 s{sJ1}, s{sJ1}, 4",
          f"s_add_u32 s{sJ2}, s{sJ2}, s{sJ1}", f"s_lshl_b32 s{sJ1}, s{sW}, 12", f"s_add_u32 s{sJ2}, s{sJ2}, s{sJ1}",
          f"buffer_store_dwordx4 {v(XP,4)}, v{tb}, s[{S_XH}:{S_XH+3}], s{sJ2} offen sc1 ;@HS",
          f"s_add_u32 s{sJ}, s{sPAIR}, 104", f"s_lshl_b32 s{sJ}, s{sJ}, 7", f"s_add_u32 s{sJ}, s{sJ}, s{sW0}", f"v_mov_b32 v{t1}, 1"]
    spread(j, g + 24, g + 50)
    bar[Bgap(GHS)].append("@wait vm HS")
    fl[Bgap(GHS)].append(atomic(S_CNT, sJ))
    GPH = Bgap(GPHN)
    fl[GPH - 14].append(poll(S_CNT, f"s{sJ}", "PH"))
    bar[GPH].append(check(S_CNT, f"s{sJ}", "PH", 32))
    def loadX(ks):
        r = xfr(ks)
        return ([f"s_lshl_b32 s{sCK}, s{sROT}, 5", f"s_add_u32 s{sCK}, s{sCK}, {ks*1024}", f"s_and_b32 s{sCK}, s{sCK}, 0x7fff", f"s_add_u32 s{sCK}, s{sCK}, s{sXB}"] if ks % 4 == 0 else []) + [
                f"buffer_load_dwordx4 v[{r}:{r+3}], v{vL16}, s[{S_XH}:{S_XH+3}], s{sCK} offen offset:{(ks % 4)*1024} sc1 ;@X{ks}"]
    for ks in range(32):
        free = 196 + 8*(ks // 4) + ks % 4
        fl[max(free, GPH + (7*ks) // 2)].append(loadX(ks))
        if ks % 4 == 0 and 256 + 4*ks < Bgap(22): pre[256 + 4*ks].append(f"@wait vm X{ks+3}")
    if "nowq" not in ABL:
        def early(n): return [[x.replace(f"{wloc(n) + m*8192}", f"{SIDE}").replace(f"@W{n}", "@WP") for x in it] for m, it in enumerate(dmaW(n))]
        place(early(16) + early(12)[:1], (95, 103, 112))
    bar[Bgap(20)].append("@wait vm KVS")
    fl[Bgap(20) - 4] += [f"s_add_u32 s{sJ}, s{sHEAD}, 112", f"s_lshl_b32 s{sJ}, s{sJ}, 7", f"s_add_u32 s{sJ}, s{sJ}, s{sW0}", f"v_mov_b32 v{t1}, 1"]
    fl[Bgap(20)].append(atomic(S_CNT, sJ))
    fl[Bgap(21) + 2].append(poll(S_CNT, f"s{sJ}", "PK"))
    bar[Bgap(22)].append(check(S_CNT, f"s{sJ}", "PK", 8))
    j = [f"v_and_b32 v{vMSK}, 31, v0", f"v_lshrrev_b32 v{vNINF}, 5, v0", f"v_lshlrev_b32 v{vNINF}, 2, v{vNINF}", f"v_sub_u32 v{vMSK}, v{vMSK}, v{vNINF}",
         f"v_lshrrev_b32 v{vNINF}, 4, v0", f"v_and_b32 v{vWOD}, 15, v0", f"v_lshlrev_b32 v{vFLG}, 2, v{vNINF}", f"v_xor_b32 v{vWOD}, v{vWOD}, v{vFLG}",
         f"v_lshlrev_b32 v{vWOD}, 4, v{vWOD}", f"v_lshl_add_u32 v{vWOD}, v{vNINF}, 10, v{vWOD}",
         f"v_mov_b32 v{vNINF}, 0xff800000",
         f"s_load_dwordx2 s[{S_WO}:{S_WO+1}], s[0:1], {ARG['wo']}", f"s_load_dwordx4 s[80:83], s[0:1], {ARG['wg']}", f"s_load_dwordx2 s[84:85], s[0:1], {ARG['wd']}",
         f"s_mov_b32 s{S_WO+2}, {4*MB}", f"s_mov_b32 s{S_WO+3}, 0x20000",
         f"s_lshr_b32 s{sWOB}, s{sHEAD}, 2", f"s_lshl_b32 s{sWOB}, s{sWOB}, 19", f"s_and_b32 s{sR}, s{sHEAD}, 3", f"s_lshl_b32 s{sR}, s{sR}, 8",
         f"s_add_u32 s{sWOB}, s{sWOB}, s{sR}", f"s_lshl_b32 s{sR}, s{sW4}, 14", f"s_add_u32 s{sWOB}, s{sWOB}, s{sR}",
         f"v_mov_b32 v{vFLG}, {LDS_FLAG}",
         f"s_mov_b32 s{sTHR}, 0x44800000", f"s_mov_b32 s{sLIM}, 0x4e800000", f"s_mov_b32 s{sREDO}, 0",
         f"s_sub_u32 s{sFAST}, s{sTB}, 1", f"s_lshr_b32 s{sFAST}, s{sFAST}, 1",
         [f"s_cmp_eq_u32 s{sTB}, 0", f"s_cselect_b32 s{sFAST}, 0, s{sFAST}"],
         [f"s_add_u32 s{S_CTX}, s{sWS}, {WS_CTX}", f"s_addc_u32 s{S_CTX+1}, s{sWS+1}, 0"], f"s_mov_b32 s{S_CTX+2}, {16*MB}"] + dma_init()
    spread(j, 296, Bgap(22) - 2)
    fl[Bgap(22) + 1].append(f"ds_write_b32 v{vFLG}, v{t0}")
    kvgo = [f"s_cmp_eq_u32 s{sG}, 0", "s_cbranch_scc1 u_nokv",
            f"s_lshl_b32 s{sT}, s{sW4}, 11", f"s_add_u32 m0, s{sT}, {LDS_K0}", f"s_add_u32 s{sT}, s{sT}, {512*1024}",
            f"buffer_load_dwordx4 v{vL16}, s[{S_H}:{S_H+3}], s{sT} offen sc1 lds ;@cond",
            f"buffer_load_dwordx4 v{vL16}, s[{S_H}:{S_H+3}], s{sT} offen offset:1024 sc1 lds ;@cond"] + [f"s_call_b64 s[{sRET}:{sRET+1}], k2_stage"]*2 + ["u_nokv:"]
    fl[Bgap(22)].append(kvgo)
    bar[Bgap(23)] = []
    fl[Bgap(23)].append(stage_dma())

    A("@wait vm A0")
    A.extend(readA(0))
    A("s_barrier")
    stamp(A, 1)
    for i in range(D1): A.extend(rdW(i))
    for i in range(NU):
        n, off, db, acc, other, wfirst, first = units[i]
        w = v(WF + (i % 8)*4, 4); o = v(other, 4)
        cin = "0" if first else v(acc, 16)
        if i in (128, 192, 256): stamp(A, 20 + i // 64)
        stamp(A, 1000 + i)
        A.extend(flat(pre[i]))
        if i % 2 == 0: A(f"@wait lgkm U{i+1}")
        A(f"{M32} {v(acc,16)}, {w if wfirst else o}, {o if wfirst else w}, {cin}")
        if i in bar: A.extend(flat(bar[i])); A("s_barrier")
        if i + D1 < NU: A.extend(rdW(i + D1))
        A.extend(flat(fl[i]))
    stamp(A, 2)
    A("s_waitcnt lgkmcnt(0)")
    A("s_nop 4")
    A.extend(pack(O + 32, QF + 16))
    A.extend(pack(O + 48, QF + 24))
    A(f"s_cmp_eq_u32 s{sG}, 0\ns_cbranch_scc1 k2_att0\ns_waitcnt vmcnt(16)")
    A.label("k2_att0")
    A("s_barrier")
    A.label("k2_att")
    A(f"v_add_u32 v{vCUR}, {LDS_K0}, v{vL16}")
    for i in range(8): A(f"ds_read_b128 {v(FR+4*i,4)}, v{vCUR} offset:{i*1024} ;@K0_{i}")
    A(f"s_mov_b32 s{sR}, s{sTB}\ns_mov_b64 s[60:61], 0")
    for r in range(16): A(f"v_mov_b32 v{NEGM+r}, 0")
    def apply_mask():
        out = []
        for r in range(16):
            out.append(f"v_cmp_gt_i32 s[{52+2*(r%4)}:{53+2*(r%4)}], {8*(r//4) + r % 4}, v{vMSK}")
            if r % 4 == 3:
                for rr in range(r - 3, r + 1):
                    out.append(f"v_cndmask_b32 v{NEGM+rr}, v{NEGM+rr}, v{vNINF}, s[{52+2*(rr%4)}:{53+2*(rr%4)}]")
        return out
    A(f"s_cmp_lg_u32 s{sR}, 0\ns_cbranch_scc1 k2_nomask0")
    A.extend(apply_mask())
    A.label("k2_nomask0")
    A("s_nop 1")
    mf = []
    for i in range(8):
        cin = v(NEGM, 16) if i == 0 else v(S, 16)
        mf.append([f"@wait lgkm K0_{i}", f"{M32} {v(S,16)}, {v(FR+4*i,4)}, {v(QF+4*i,4)}, {cin}"])
    zero = [f"v_mov_b32 v{O+r}, 0" for r in range(64)]
    A.extend(gaps(mf, {i: zero[i*7:(i+1)*7] for i in range(7)} | {7: zero[49:]}))
    A(f"v_mov_b32 v{vL}, 0\nv_mov_b32 v{vCUR}, v{vL16}\ns_mov_b32 s{sSLOT}, 0")
    D = 6
    def fragoff(i):
        part, k = i // 8, i % 8
        if part == 0: return k*1024
        if part == 2: return 8192 + k*1024
        vb = 16384 + (part // 2)*8192
        return vb + ((k % 4)*2 + k // 4)*1024
    def rdfrag(i, addr):
        return f"ds_read_b128 {v(FR+4*(i%8),4)}, v{addr} offset:{fragoff(i % 32)} ;@F{i % 32}"
    for i in range(D): A(rdfrag(i, vCUR))
    def rowmax(p, dst):
        s0 = S + 16*p
        out = [f"v_max3_f32 v{dst}, v{s0}, v{s0+1}, v{s0+2}"]
        for r in range(3, 15, 2): out.append(f"v_max3_f32 v{dst}, v{dst}, v{s0+r}, v{s0+r+1}")
        out += [f"v_max_f32 v{dst}, v{dst}, v{s0+15}", f"v_mov_b32 v{vF}, v{dst}", "s_nop 1",
                f"v_permlane32_swap_b32 v{vF}, v{dst}", "s_nop 0", f"v_max_f32 v{dst}, v{dst}, v{vF}"]
        return out
    A.extend(rowmax(0, vDEL))
    for r in range(16): A(f"v_sub_f32 v{NEGM+r}, v{NEGM+r}, v{vDEL}")
    for r in range(16): A(f"v_sub_f32 v{S+r}, v{S+r}, v{vDEL}")
    def sm_elem(p, e):
        s0 = S + 16*p; pp = P + 8*p
        out = [f"v_exp_f32 v{T + e % 4}, v{s0+e}"]
        k = e % 8
        if k >= 1:
            pe = e - 1
            if k == 2: out.append(f"v_add_f32 v{vTS}, v{T + (e-2) % 4}, v{T + pe % 4}")
            elif k > 2: out.append(f"v_add_f32 v{vTS}, v{vTS}, v{T + pe % 4}")
            if pe % 2 == 1: out.append(f"v_cvt_pk_bf16_f32 v{pp + pe//2}, v{T + (pe-1) % 4}, v{T + pe % 4}")
        return out
    slow_sites = []
    def sm_fin(p, unit, site=None):
        pp = P + 8*p; e = unit*8 + 7
        out = [f"v_add_f32 v{vTS}, v{vTS}, v{T + e % 4}",
               f"v_cvt_pk_bf16_f32 v{pp + e//2}, v{T + (e-1) % 4}, v{T + e % 4}"]
        if site:
            lab = f"k2_slow_{site}"; ret = f"k2_ret_{site}"
            slow_sites.append((p, unit, lab, ret))
            out += [f"v_cmp_lt_f32 vcc, s{sTHR}, v{vTS}", f"s_cbranch_vccnz {lab}", ret + ":"]
        return out + [f"v_add_f32 v{vL}, v{vL}, v{vTS}"]
    for e in range(4): A.extend(sm_elem(0, e))
    stamp(A, 3)
    A(f"""
s_cmp_eq_u32 s{sFAST}, 0
s_cbranch_scc1 k2_loop
s_lshl_b32 s{sT}, s{sFAST}, 1
s_sub_u32 s{sR}, s{sR}, s{sT}
s_mov_b32 s{sJ}, s{sFAST}
s_cmp_eq_u32 s{sG}, 0
s_cbranch_scc1 k2_fast0
s_branch k2_fast1
""")
    def step_mf(p):
        base = 16*p
        mf = []
        for i in range(8):
            cin = v(NEGM, 16) if i == 0 else v(S + 16*(1-p), 16)
            mf.append(f"{M32} {v(S+16*(1-p),16)}, {v(FR+4*((base+i)%8),4)}, {v(QF+4*i,4)}, {cin}")
        for i in range(8):
            sp, db = i // 4, i % 4
            mf.append(f"{M32} {v(O+16*db,16)}, {v(FR+4*((base+8+i)%8),4)}, {v(P+8*p+4*sp,4)}, {v(O+16*db,16)}")
        for i in range(0, 16, 2): mf[i] = [f"@wait lgkm F{base+i+1}", mf[i]]
        return mf
    slot_adv = [f"s_add_u32 s{sSLOT}, s{sSLOT}, 32768", f"s_and_b32 s{sSLOT}, s{sSLOT}, 0x1ffff"]
    for grp in range(2):
        A(".p2align 6")
        A(f"@loop_begin fast{grp}")
        A.label(f"k2_fast{grp}")
        for p in range(2):
            base = 16*p
            mf = step_mf(p); fills = {i: [] for i in range(16)}
            for i in range(16):
                nxt = base + i + D
                if p == 1 and nxt == 32:
                    fills[i] += (["s_waitcnt vmcnt(8)"] if grp == 1 else []) + ["s_barrier"]
                fills[i].append(rdfrag(nxt, vCUR))
            for g in range(4): fills[g] += sm_elem(p, 4 + g)
            fills[4] += sm_fin(p, 0) + sm_elem(p, 8)
            if p == 0:
                for g in range(5, 11): fills[g] += sm_elem(p, 4 + g)
                fills[5] += slot_adv
                fills[10] += sm_elem(p, 15)[:1]
                fills[11] += sm_elem(p, 15)[1:] + sm_fin(p, 1)
                for g in range(12, 16): fills[g] += sm_elem(1 - p, g - 12)
            else:
                fills[5] += sm_elem(p, 9) + sm_elem(p, 10)
                for g in range(6, 10): fills[g] += sm_elem(p, 5 + g)
                fills[9] += [f"v_add_u32 v{vCUR}, s{sSLOT}, v{vL16}"]
                fills[11] += sm_elem(p, 15) + ["s_nop 0"] + sm_fin(p, 1)
                fills[12] += sm_elem(0, 0) + sm_elem(0, 1)
                fills[13] += sm_elem(0, 2)
                fills[14] += sm_elem(0, 3)
                if grp == 1:
                    sp_ = stage_parts()
                    for k, it in enumerate(sp_): fills[11 + k // 2] += it
                fills[14] += [f"s_sub_u32 s{sJ}, s{sJ}, 1", f"s_cmp_lg_u32 s{sJ}, 0"]
                fills[15] += [f"s_cbranch_scc1 k2_fast{grp}"]
            body = gaps(mf, fills)
            if "halfds" in ABL: body = [x for x in body if not (x.startswith("ds_read") and int(x.split(";@F")[1]) % 2 == 0)]
            if "nods" in ABL: body = [x for x in body if not x.startswith("ds_read") and not x.startswith("@wait")]
            if "novalu" in ABL: body = [x for x in body if not x.startswith(("v_exp", "v_add_f32", "v_cvt"))]
            if "noexp" in ABL: body = [x.replace("v_exp_f32", "v_mov_b32") for x in body]
            if "noadd" in ABL: body = [x for x in body if not x.startswith("v_add_f32")]
            if "nodma" in ABL: body = [x for x in body if not x.startswith("buffer_load")]
            A.extend(body)
        A(f"@loop_end fast{grp}")
        A(f"v_cmp_nge_f32 s[60:61], s{sLIM}, v{vL}")
        A("s_branch k2_loop")
    def step_ctl(p):
        return [f"s_cmp_lt_u32 s{sR}, 2", f"s_cbranch_scc1 k2_special{p}", f"k2_back{p}:", f"s_sub_u32 s{sR}, s{sR}, 1"]
    A("@loop_begin kv")
    A.label("k2_loop")
    A.extend(step_ctl(0))
    for p in range(2):
        base = 16*p
        mf = step_mf(p); fills = {i: [] for i in range(16)}
        for i in range(16):
            nxt = base + i + D
            if p == 1 and nxt == 32:
                fills[i] += ["s_waitcnt vmcnt(8)", "s_barrier"] + slot_adv + [f"v_add_u32 v{vCUR}, s{sSLOT}, v{vL16}"]
            fills[i].append(rdfrag(nxt, vCUR))
        for g in range(4): fills[g] += sm_elem(p, 4 + g)
        fills[4] = sm_fin(p, 0, f"f{p}0") + fills[4] + sm_elem(p, 8)
        for g in range(5, 12): fills[g] += sm_elem(p, 4 + g)
        fills[11] += ["s_nop 0"] + sm_fin(p, 1, f"f{p}1")
        for g in range(12, 16): fills[g] += sm_elem(1 - p, g - 12)
        if p == 1:
            fills[12] += stage_dma()
            fills[15] += ["s_branch k2_loop"]
        else:
            fills[15] += step_ctl(1)
        A.extend(gaps(mf, fills))
    A("@loop_end kv")
    for p in range(2):
        A.label(f"k2_special{p}")
        A(f"s_cmp_eq_u32 s{sR}, 0\ns_cbranch_scc1 k2_tail{p}")
        A.extend(apply_mask())
        A(f"s_nop 1\ns_branch k2_back{p}")
    for p in range(2):
        A.label(f"k2_tail{p}")
        for i in range(8):
            A(f"ds_read_b128 {v(FR+4*i,4)}, v{vCUR} offset:{fragoff(16*p + 8 + i)} ;@TV{p}_{i}")
        for e in range(4, 8): A.extend(sm_elem(p, e))
        A("s_nop 0")
        A.extend(sm_fin(p, 0, f"t{p}0"))
        mf = []; fills = {i: [] for i in range(8)}
        for i in range(8):
            sp, db = i // 4, i % 4
            mf.append([f"@wait lgkm TV{p}_{i}", f"{M32} {v(O+16*db,16)}, {v(FR+4*i,4)}, {v(P+8*p+4*sp,4)}, {v(O+16*db,16)}"])
        for g in range(4): fills[g] += sm_elem(p, 8 + 2*g) + sm_elem(p, 9 + 2*g)
        fills[3] += ["s_nop 0"] + sm_fin(p, 1, f"t{p}1")
        A.extend(gaps(mf, fills))
        if p == 0: A("s_branch k2_done")
    A.label("k2_done")
    stamp(A, 4)
    A(f"""
s_lshr_b32 s{sJ}, s{sTB}, 1
s_add_u32 s{sJ}, s{sJ}, 1
s_cmp_ge_u32 s{sJ}, s{sNS}
s_cbranch_scc1 k2_epi
s_waitcnt vmcnt(8)
s_barrier
""")
    A.extend(stage_dma())
    A.label("k2_epi")
    MQ = 212
    srd(A, S_PF, sWS, 49152, WS_MODP)
    for q in range(4):
        A(f"s_add_u32 s{sT}, s{sM0}, {4096 + q*12288}\nbuffer_load_dwordx4 {v(MQ+4*q,4)}, v{vL16}, s[{S_PF}:{S_PF+3}], s{sT} offen sc1 ;@cond")
    A(f"""
s_cmp_eq_u32 s{sG}, 0
s_cbranch_scc1 k2_nopf
s_and_b32 s{sT}, s2, 127
s_lshl_b32 s{sT}, s{sT}, 2
s_add_u32 s{sT}, s{sT}, s{sW4}
s_lshl_b32 s{sT2}, s{sW4}, 10
s_add_u32 m0, s{sT2}, {LDS_PF}
s_cmp_ge_u32 s2, 128
s_cbranch_scc1 k2_pf2
s_mul_i32 s{sT}, s{sT}, 9216
""")
    for m in range(9):
        if m % 3 == 0 and m: A(f"s_add_u32 s{sT}, s{sT}, 3072")
        A(f"buffer_load_dwordx4 v{vL16}, s[{S_WO}:{S_WO+3}], s{sT} offen offset:{(m % 3)*1024} lds ;@cond")
    A(f"s_branch k2_nopf\nk2_pf2:\ns_mul_i32 s{sT}, s{sT}, 3072")
    for base in (80, 82, 84):
        srd(A, S_PF, base, 512*1376*2)
        for m in range(3): A(f"buffer_load_dwordx4 v{vL16}, s[{S_PF}:{S_PF+3}], s{sT} offen offset:{m*1024} lds ;@cond")
    A.label("k2_nopf")
    A(f"""
v_mov_b32 v{vF}, v{vL}
s_nop 1
v_permlane32_swap_b32 v{vF}, v{vL}
s_nop 0
v_add_f32 v{vL}, v{vL}, v{vF}
v_rcp_f32 v{vL}, v{vL}
s_cmp_eq_u64 s[60:61], {"0" if not (ABL & {"halfds", "nods", "novalu", "noexp", "noadd", "nodma"}) else "s[60:61]"}
s_cbranch_scc1 k2_noflag
v_mov_b32 v{vF}, 1
ds_write_b32 v{vFLG}, v{vF}
k2_noflag:
s_lshl_b32 s{sT}, s{sTB}, 18
s_lshl_b32 s{sT2}, s{sHEAD}, 13
s_add_u32 s{sXB}, s{sT}, s{sT2}
s_add_u32 s{sM1}, s{sXB}, 4096
s_nop 2
""")
    for db in range(4):
        for sp in range(2):
            o = O + db*16 + sp*8; d = FR + (db*2 + sp)*4
            for r in range(8): A(f"v_mul_f32 v{o+r}, v{o+r}, v{vL}")
            for r in range(4): A(f"v_cvt_pk_bf16_f32 v{d+r}, v{o+2*r}, v{o+2*r+1}")
            A(f"buffer_store_dwordx4 {v(d,4)}, v{vL16}, s[{S_CTX}:{S_CTX+3}], s{sXB if db < 2 else sM1} offen offset:{((db % 2)*2 + sp)*1024} sc1")
    for _ in range(2):
        A(f"s_add_u32 s{sJ}, s{sJ}, 1\ns_cmp_ge_u32 s{sJ}, s{sNS}\ns_cbranch_scc1 k2_vote\ns_waitcnt vmcnt(29)\ns_barrier")
        A.extend(stage_dma())
    A.label("k2_idle")
    A(f"""
s_add_u32 s{sJ}, s{sJ}, 1
s_cmp_ge_u32 s{sJ}, s{sNS}
s_cbranch_scc1 k2_vote
s_waitcnt vmcnt(8)
s_barrier
""")
    A.extend(stage_dma())
    A("s_branch k2_idle")
    A.label("k2_vote")
    A(f"""
s_waitcnt vmcnt(0) lgkmcnt(0)
s_barrier
s_cmp_lg_u32 s{sREDO}, 0
s_cbranch_scc1 k2_p3
ds_read_b32 v{vF}, v{vFLG}
s_waitcnt lgkmcnt(0)
v_readfirstlane_b32 s{sT}, v{vF}
s_cmp_eq_u32 s{sT}, 0
s_cbranch_scc1 k2_p3
s_mov_b32 s{sREDO}, 1
s_mov_b32 s{sFAST}, 0
""")
    A.extend(dma_init())
    A.extend(stage_dma()); A.extend(stage_dma())
    A("s_waitcnt vmcnt(8)\ns_barrier")
    A.extend(stage_dma())
    A("s_branch k2_att")
    A.label("k2_p3")
    stamp(A, 5)
    A(f"""
s_lshr_b32 s{sT}, s{sHEAD}, 2
s_lshl_b32 s{sT}, s{sT}, 3
s_add_u32 s{sT}, s{sT}, s{sPAIR}
s_lshl_b32 s{sJ}, s{sT}, 7
v_mov_b32 v{vTS}, 0
v_mov_b32 v{vF}, 1
s_cmp_lg_u32 s{sW}, 0
s_cbranch_scc1 k2_nosig
s_mov_b64 exec, 1
buffer_atomic_add v{vF}, v{vTS}, s[{S_CNT}:{S_CNT+3}], s{sJ} offen sc1
s_mov_b64 exec, -1
k2_nosig:
""")
    j = [f"s_lshr_b32 s{sT}, s{sW}, 1", f"s_cmp_eq_u32 s{sT}, 2", f"s_cselect_b32 s{sT}, 1.0, 0", f"s_add_u32 s{sT2}, s{sM0}, {MODL}"]
    for k in range(4): j += [f"v_add_f32 v{MQ+k}, v{MQ+k}, v{MQ+4+k}", f"v_add_f32 v{MQ+8+k}, v{MQ+8+k}, v{MQ+12+k}"]
    for k in range(4): j.append(f"v_add_f32 v{MQ+k}, v{MQ+k}, v{MQ+8+k}")
    for rnd in range(2):
        for h in range(2): j.append(f"v_cvt_pk_bf16_f32 v{MQ+4+h}, v{MQ+2*h}, v{MQ+2*h+1}")
        for h in range(2): j += [f"v_lshlrev_b32 v{MQ+2*h}, 16, v{MQ+4+h}", f"v_and_b32 v{MQ+2*h+1}, 0xffff0000, v{MQ+4+h}"]
        if rnd == 0:
            for e in range(4): j.append(f"v_add_f32 v{MQ+e}, s{sT}, v{MQ+e}")
    j += [f"v_add_u32 v{MQ+8}, s{sT2}, v{vL16}", f"ds_write_b128 v{MQ+8}, {v(MQ,4)}"]
    m2job = j
    A.extend(stage_dma()); A.extend(stage_dma())
    A.extend(m2job)
    A(f"""
v_and_b32 v{T}, 15, v0
v_lshrrev_b32 v{T}, 2, v{T}               ; r
v_lshrrev_b32 v{T+1}, 5, v0               ; h
v_lshl_add_u32 v{vWR}, v{T+1}, 2, v{T}
v_lshlrev_b32 v{vWR}, 8, v{vWR}
v_lshl_add_u32 v{vWR}, v{T}, 6, v{vWR}
v_and_b32 v{T+2}, 16, v0
v_lshl_add_u32 v{vWR}, v{T+2}, 1, v{vWR}
v_and_b32 v{T+2}, 3, v0
v_lshl_add_u32 v{vWR}, v{T+2}, 3, v{vWR}
s_and_b32 s{sT}, s{sNS}, 2
s_lshl_b32 s{sT}, s{sT}, 15
v_add_u32 v{vWR}, s{sT}, v{vWR}
v_xor_b32 v{vWR+1}, 64, v{vWR}
v_xor_b32 v{vWR+2}, 128, v{vWR}
v_xor_b32 v{vWR+3}, 192, v{vWR}
s_lshl_b32 s{sXB}, s{sTB}, 18
s_lshr_b32 s{sT}, s{sHEAD}, 2
s_lshl_b32 s{sT}, s{sT}, 15
s_add_u32 s{sXB}, s{sXB}, s{sT}
s_cmp_lg_u32 s{sW}, 0
s_cbranch_scc1 k2_polled
s_mov_b32 s{sT2}, 0x40000
k2_poll:
buffer_load_dword v{vF}, v{vTS}, s[{S_CNT}:{S_CNT+3}], s{sJ} offen sc1 ;@cond
s_waitcnt vmcnt(0)
v_readfirstlane_b32 s{sT}, v{vF}
s_sub_u32 s{sT2}, s{sT2}, 1
s_cbranch_scc1 k2_polled
s_cmp_lt_u32 s{sT}, 4
s_cbranch_scc1 k2_poll
k2_polled:
s_barrier
""")
    def loadC(ks):
        r = XR + (ks % 16)*4
        return [f"s_add_u32 s{sT2}, s{sXB}, {(ks // 4)*4096}",
                f"buffer_load_dwordx4 v[{r}:{r+3}], v{vL16}, s[{S_CTX}:{S_CTX+3}], s{sT2} offen offset:{(ks % 4)*1024} sc1 ;@C{ks}"]
    def readWo(ks, dbs):
        out = []
        for db in dbs:
            for rd in range(2):
                r = WFR + (ks % 2)*16 + db*4 + rd*2
                out.append(f"ds_read_b64_tr_b16 v[{r}:{r+1}], v{vWR+db} offset:{(ks % 16)*4096 + rd*2048} ;@RO{ks}_{db}")
        return out
    for ks in range(12): A.extend(loadC(ks))
    A.extend(readWo(0, range(4)))
    srd(A, S_PF, S_KV, 16*MB, WS_PART)
    nxt = 12
    for ks in range(32):
        pre = []
        if ks == 15:
            pre += ["s_barrier"] + [f"v_xor_b32 v{vWR+db}, 0x10000, v{vWR+db}" for db in range(4)]
        pre.append(f"@wait vm C{ks}")
        x = XR + (ks % 16)*4
        mf = []
        for db in range(4):
            w = WFR + (ks % 2)*16 + db*4
            cin = "0" if ks == 0 else v(O + db*16, 16)
            mf.append([f"@wait lgkm RO{ks}_{db}", f"{M32} {v(O+db*16,16)}, {v(w,4)}, {v(x,4)}, {cin}"])
        fills = {0: [], 1: [], 2: [], 3: []}
        if ks < 31:
            for db in range(4): fills[min(db, 2)] += readWo(ks + 1, [db])
        for slot in (1, 3):
            if nxt < 32 and nxt - 15 <= ks:
                fills[slot] += loadC(nxt); nxt += 1
        A.extend(pre)
        A.extend(gaps(mf, fills))
    A(f"""
s_lshr_b32 s{sT}, s{sHEAD}, 2
s_lshl_b32 s{sT}, s{sT}, 21
s_lshl_b32 s{sT2}, s{sTB}, 15
s_add_u32 s{sT}, s{sT}, s{sT2}
s_and_b32 s{sT2}, s{sHEAD}, 3
s_lshl_b32 s{sT2}, s{sT2}, 13
s_add_u32 s{sT}, s{sT}, s{sT2}
s_add_u32 s{sT2}, s{sT}, 4096
s_nop 1
""")
    for db in range(4):
        for sp in range(2):
            o = O + db*16 + sp*8; d = QF + (db*2 + sp)*4
            for r in range(4): A(f"v_cvt_pk_bf16_f32 v{d+r}, v{o+2*r}, v{o+2*r+1}")
            A(f"buffer_store_dwordx4 {v(d,4)}, v{vL16}, s[{S_PF}:{S_PF+3}], s{sT if db < 2 else sT2} offen offset:{((db % 2)*2 + sp)*1024} sc1")
    stamp(A, 6)
    S_A, S_B, S_C, S_D, S_E = 8, 16, 20, 24, 64
    sBLK, sNT, sMT4, sO1, sO2, sO3 = 32, 40, 37, 41, 42, 50
    vZ, vONE = vTS, vF
    def sync(cnt_expr, target, between_g1=(), between_g0=(), vm="vmcnt(0)"):
        lp, l1, l2 = A.newlabel("k2_poll"), A.newlabel("k2_sy"), A.newlabel("k2_sy")
        A(f"s_waitcnt {vm}\ns_barrier")
        A(f"s_cmp_eq_u32 s{sG}, 0\ns_cbranch_scc1 {l1}")
        A.extend(flat(list(between_g1)))
        A(f"s_branch {l2}")
        A.label(l1)
        A.extend(cnt_expr)
        l3 = A.newlabel("k2_sy")
        A(f"""
s_cmp_lg_u32 s{sW}, 0
s_cbranch_scc1 {l3}
v_mov_b32 v{vZ}, 0
v_mov_b32 v{vONE}, 1
s_mov_b64 exec, 1
buffer_atomic_add v{vONE}, v{vZ}, s[{S_CNT}:{S_CNT+3}], s{sJ} offen sc1 ;@cond
s_mov_b64 exec, -1
{l3}:
""")
        A.extend(flat(list(between_g0)))
        A(f"""
s_cmp_lg_u32 s{sW}, 0
s_cbranch_scc1 {l2}
s_mov_b32 s{sR}, 0x40000
{lp}:
buffer_load_dword v{vONE}, v{vZ}, s[{S_CNT}:{S_CNT+3}], s{sJ} offen sc1 ;@cond
s_waitcnt vmcnt(0)
v_readfirstlane_b32 s{sT}, v{vONE}
s_sub_u32 s{sR}, s{sR}, 1
s_cbranch_scc1 {l2}
s_cmp_lt_u32 s{sT}, {target}
s_cbranch_scc1 {lp}
{l2}:
s_barrier
""")
    A(f"""
s_load_dwordx2 s[68:69], s[0:1], {ARG['x']}
s_load_dwordx2 s[70:71], s[0:1], {ARG['out']}
s_sub_u32 s{sT}, 15, s{sPAIR}
s_cmp_lt_u32 s{sHEAD}, 16
s_cselect_b32 s{sBLK}, s{sPAIR}, s{sT}
s_and_b32 s{sNT}, s{sHEAD}, 15
""")
    vWD3 = 216
    for i in range(3):
        A(f"""
v_add_u32 v{T}, {i*64}, v0
v_mul_u32_u24 v{T+1}, 43691, v{T}
v_lshrrev_b32 v{T+1}, 19, v{T+1}
v_mul_u32_u24 v{T+2}, 12, v{T+1}
v_sub_u32 v{T+2}, v{T}, v{T+2}
v_mul_u32_u24 v{vWD3+i}, 2752, v{T+1}
v_lshl_add_u32 v{vWD3+i}, v{T+2}, 4, v{vWD3+i}
""")
    SLOT = 24576
    srd(A, S_A, 80, 512*1376*2); srd(A, S_B, 82, 512*1376*2)
    A(f"""
s_mul_i32 s{sO1}, s{sW4}, {16*2752}
s_mul_i32 s{sT}, s{sNT}, 192
s_add_u32 s{sO1}, s{sO1}, s{sT}
s_mul_i32 s{sM0}, s{sW4}, 3072
""")
    def dmaG(n):
        out = []
        for mat in range(2):
            sr = S_A if mat == 0 else S_B
            for i in range(3):
                out.append([f"s_add_u32 m0, s{sM0}, {(n % 6)*SLOT + mat*12288 + i*1024}",
                            f"s_add_u32 s{sT}, s{sO1}, {n*64*2752}",
                            f"buffer_load_dwordx4 v{vWD3+i}, s[{sr}:{sr+3}], s{sT} offen lds ;@cond"])
        return out
    vPO, vXO, vMO, vS, vQ, vLW, vLR = 220, 221, 222, 224, 225, 226, 227
    PP, XRr, GA, SC, SH, F4, ST = 16, 80, 88, 104, 120, 136, 152
    LDS_ST = 144*1024
    p4pre = [f"s_lshl_b32 s{sT}, s{sW4}, 3", f"v_lshrrev_b32 v{T}, 3, v0", f"v_add_u32 v{T}, s{sT}, v{T}",
             f"v_and_b32 v{T+1}, 7, v0",
             f"v_lshlrev_b32 v{vPO}, 9, v{T}", f"v_lshl_add_u32 v{vPO}, v{T+1}, 4, v{vPO}",
             f"v_lshrrev_b32 v{T+2}, 1, v{T}", f"v_lshlrev_b32 v{T+2}, 4, v{T+2}", f"v_and_b32 v{T+3}, 1, v{T}",
             f"v_lshl_add_u32 v{T+2}, v{T+3}, 2, v{T+2}",
             f"v_lshlrev_b32 v{vMO}, 2, v{T+2}", f"v_lshlrev_b32 v{vXO}, 10, v{T+1}", f"v_lshl_add_u32 v{vXO}, v{T+2}, 1, v{vXO}",
             f"v_lshlrev_b32 v{vLR}, 5, v{T+1}", f"v_add_u32 v{vLR}, {LDS_ST}, v{vLR}", f"v_add_u32 v{vLW}, s{sT}, v{vLR}",
             f"s_lshl_b32 s{sO2}, s{sBLK}, 7", f"s_lshl_b32 s{sT}, s{sNT}, 3", f"s_add_u32 s{sO2}, s{sO2}, s{sT}",
             f"s_lshr_b32 s{sO3}, s{sO2}, 5", f"s_lshl_b32 s{sO3}, s{sO3}, 15", f"s_and_b32 s{sT}, s{sO2}, 31", f"s_lshl_b32 s{sT}, s{sT}, 4",
             f"s_add_u32 s{sO3}, s{sO3}, s{sT}",
             f"s_lshl_b32 s{sO2}, s{sO2}, 10", "s_waitcnt lgkmcnt(0)",
             f"s_mov_b32 s{S_C}, s68", f"s_mov_b32 s{S_C+1}, s69", f"s_mov_b32 s{S_C+2}, {2*MB}", f"s_mov_b32 s{S_C+3}, 0x20000",
             f"v_add_u32 v{vMO}, {MODL}, v{vMO}",
             f"s_and_b32 s{sT}, s{sHEAD}, 7", f"s_lshl_b32 s{sT}, s{sT}, 8", f"s_add_u32 s{sT}, s{sT}, {MODL + 6144}",
             f"v_lshlrev_b32 v{T+1}, 5, v{T+1}", f"v_add_u32 v{T+1}, s{sT}, v{T+1}",
             f"ds_read_b128 {v(244,4)}, v{T+1} ;@cond", f"ds_read_b128 {v(248,4)}, v{T+1} offset:16 ;@cond"]
    for pp in range(2):
        p4pre += [f"buffer_load_dwordx2 {v(XRr+4*pp,2)}, v{vXO}, s[{S_C}:{S_C+3}], s{sO2} offen offset:{pp*512} ;@cond",
                  f"buffer_load_dwordx2 {v(XRr+4*pp+2,2)}, v{vXO}, s[{S_C}:{S_C+3}], s{sO2} offen offset:{pp*512+16} ;@cond"]
        for hh in range(2):
            p4pre += [f"ds_read_b128 {v(GA+8*pp+4*hh,4)}, v{vMO} offset:{pp*1024 + hh*32} ;@cond",
                      f"ds_read_b128 {v(SH+8*pp+4*hh,4)}, v{vMO} offset:{2048 + pp*1024 + hh*32} ;@cond",
                      f"ds_read_b128 {v(SC+8*pp+4*hh,4)}, v{vMO} offset:{4096 + pp*1024 + hh*32} ;@cond"]
    p4pre.append("s_waitcnt lgkmcnt(0)")
    sync([f"s_add_u32 s{sJ}, s{sPAIR}, 64", f"s_lshl_b32 s{sJ}, s{sJ}, 7"], 32,
         between_g1=dmaG(0) + dmaG(1) + dmaG(2), between_g0=p4pre)
    stamp(A, 7)
    A(f"s_cmp_lg_u32 s{sG}, 0\ns_cbranch_scc1 k2_p4_g1")
    for x in range(8):
        for pp in range(2):
            A(f"s_add_u32 s{sT}, s{sO3}, {x*2*MB + pp*16384}")
            A(f"buffer_load_dwordx4 {v(PP+8*x+4*pp,4)}, v{vPO}, s[{S_PF}:{S_PF+3}], s{sT} offen sc1 ;@P{x}")
    srd(A, S_C, S_KV, 2*MB, WS_X1); srd(A, S_E, S_KV, 2*MB, WS_Y)
    A(f"s_add_u32 s{sO2}, s{sO3}, 16384")
    for x in range(8):
        A(f"@wait vm P{x}")
        for j in range(8):
            r = PP + 8*x + j
            if x == 0:
                A(f"v_lshlrev_b32 v{F4+2*j}, 16, v{r}\nv_and_b32 v{F4+2*j+1}, 0xffff0000, v{r}")
            else:
                A(f"v_lshlrev_b32 v{T}, 16, v{r}\nv_and_b32 v{r}, 0xffff0000, v{r}\nv_add_f32 v{F4+2*j}, v{F4+2*j}, v{T}\nv_add_f32 v{F4+2*j+1}, v{F4+2*j+1}, v{r}")
    X = PP
    for j in range(8): A(f"v_lshlrev_b32 v{X+2*j}, 16, v{XRr+j}\nv_and_b32 v{X+2*j+1}, 0xffff0000, v{XRr+j}")
    for j in range(16): A(f"v_fmac_f32 v{X+j}, v{F4+j}, v{GA+j}")
    for j in range(8): A(f"v_cvt_pk_bf16_f32 v{XRr+j}, v{X+2*j}, v{X+2*j+1}")
    A(f"buffer_store_dwordx4 {v(XRr,4)}, v{vPO}, s[{S_C}:{S_C+3}], s{sO3} offen sc1")
    A(f"buffer_store_dwordx4 {v(XRr+4,4)}, v{vPO}, s[{S_C}:{S_C+3}], s{sO2} offen sc1")
    for j in range(8): A(f"v_lshlrev_b32 v{X+2*j}, 16, v{XRr+j}\nv_and_b32 v{X+2*j+1}, 0xffff0000, v{XRr+j}")
    def red(r):
        A(f"""s_nop 1
v_add_f32_dpp v{r}, v{r}, v{r} row_ror:8 row_mask:0xf bank_mask:0xf
v_mov_b32 v{T}, v{r}
s_nop 1
v_permlane16_swap_b32 v{T}, v{r}
s_nop 0
v_add_f32 v{r}, v{r}, v{T}
v_mov_b32 v{T}, v{r}
s_nop 1
v_permlane32_swap_b32 v{T}, v{r}
s_nop 0
v_add_f32 v{r}, v{r}, v{T}""")
    A(f"v_add_f32 v{vS}, v{X}, v{X+1}")
    for j in range(2, 16): A(f"v_add_f32 v{vS}, v{vS}, v{X+j}")
    red(vS)
    A(f"v_mul_f32 v{vS}, 0x3c000000, v{vS}")
    for j in range(16): A(f"v_sub_f32 v{F4+j}, v{X+j}, v{vS}")
    A(f"v_mul_f32 v{vQ}, v{F4}, v{F4}")
    for j in range(1, 16): A(f"v_fmac_f32 v{vQ}, v{F4+j}, v{F4+j}")
    red(vQ)
    A(f"ds_write_b64 v{vLW}, v[{vS}:{vQ}]\ns_waitcnt lgkmcnt(0)")
    A.label("k2_p4_g1")
    A("s_barrier")
    A(f"s_cmp_lg_u32 s{sG}, 0\ns_cbranch_scc1 k2_p4_done")
    for i in range(2): A(f"ds_read_b128 {v(ST+4*i,4)}, v{vLR} offset:{16*i}")
    A("s_waitcnt lgkmcnt(0)")
    A(f"""
v_add_f32 v{vS}, v{ST}, v{ST+2}
v_add_f32 v{T}, v{ST+4}, v{ST+6}
v_add_f32 v{vS}, v{vS}, v{T}
v_mul_f32 v{vS}, 0x3e800000, v{vS}
v_add_f32 v{vQ}, v{ST+1}, v{ST+3}
v_add_f32 v{T}, v{ST+5}, v{ST+7}
v_add_f32 v{vQ}, v{vQ}, v{T}
v_mov_b32 v{T+1}, 0
""")
    for i in range(4): A(f"v_sub_f32 v{T}, v{ST+2*i}, v{vS}\nv_fmac_f32 v{T+1}, v{T}, v{T}")
    A(f"""
v_fmac_f32 v{vQ}, 0x43000000, v{T+1}
v_mov_b32 v{T}, 0x3727c5ac
v_fmac_f32 v{T}, 0x3b000000, v{vQ}
v_rsq_f32 v{vQ}, v{T}
""")
    for j in range(16): A(f"v_sub_f32 v{X+j}, v{X+j}, v{vS}")
    for j in range(16): A(f"v_mul_f32 v{X+j}, v{X+j}, v{vQ}")
    for j in range(16): A(f"v_fma_f32 v{X+j}, v{X+j}, v{SC+j}, v{SH+j}")
    for j in range(8): A(f"v_cvt_pk_bf16_f32 v{F4+j}, v{X+2*j}, v{X+2*j+1}")
    A(f"buffer_store_dwordx4 {v(F4,4)}, v{vPO}, s[{S_E}:{S_E+3}], s{sO3} offen sc1")
    A(f"buffer_store_dwordx4 {v(F4+4,4)}, v{vPO}, s[{S_E}:{S_E+3}], s{sO2} offen sc1")
    A.label("k2_p4_done")
    ACC5, YF, WF5 = 16, 112, 176
    vWR5, vGO = 228, 231
    p5pre = [f"v_lshrrev_b32 v{vGO+1}, 5, v0", f"v_and_b32 v{vGO+2}, 15, v0", f"v_lshrrev_b32 v{vGO+3}, 2, v{vGO+2}",
             f"v_lshl_add_u32 v{vGO+3}, v{vGO+1}, 2, v{vGO+3}", f"v_mul_u32_u24 v{vWR5}, 192, v{vGO+3}",
             f"v_and_b32 v{vGO+3}, 16, v0", f"v_lshl_add_u32 v{vWR5}, v{vGO+3}, 1, v{vWR5}",
             f"v_lshlrev_b32 v{vGO}, 6, v{vGO+3}", f"v_lshl_add_u32 v{vGO}, v{vGO+1}, 8, v{vGO}", f"v_lshl_add_u32 v{vGO}, v{vGO+2}, 4, v{vGO}",
             f"v_and_b32 v{vGO+3}, 3, v0", f"v_lshl_add_u32 v{vWR5}, v{vGO+3}, 3, v{vWR5}",
             f"v_add_u32 v{vWR5+1}, {2*SLOT}, v{vWR5}", f"v_add_u32 v{vWR5+2}, {4*SLOT}, v{vWR5}",
             f"s_lshl_b32 s{sO2}, s{sBLK}, 2", f"s_add_u32 s{sO2}, s{sO2}, s{sW4}", f"s_lshl_b32 s{sO3}, s{sO2}, 11",
             f"s_lshl_b32 s{sO2}, s{sO2}, 15",
             f"s_mul_i32 s{sT}, s{sNT}, {3*131072}", f"s_add_u32 s{sO3}, s{sO3}, s{sT}",
             f"s_add_u32 s{S_C}, s{S_KV}, {WS_G}", f"s_addc_u32 s{S_C+1}, s{S_KV+1}, 0", f"s_mov_b32 s{S_C+2}, {43*131072}", f"s_mov_b32 s{S_C+3}, 0x20000",
             "s_mov_b32 s56, 0xc0135761", "s_mov_b32 s57, 0xbdd2d3e8"]
    def readG(ks, cts=range(6)):
        n = ks // 4; sl = n % 6
        out = []
        for ct in cts:
            for rd in range(2):
                r = WF5 + (ks % 2)*24 + ct*4 + rd*2
                off = (sl % 2)*SLOT + (ct // 3)*12288 + ((ks % 4)*16 + rd*8)*192 + (ct % 3)*64
                out.append(f"ds_read_b64_tr_b16 v[{r}:{r+1}], v{vWR5 + sl//2} offset:{off} ;@RG{ks}_{ct}")
        return out
    sync([f"s_add_u32 s{sJ}, s{sBLK}, 72", f"s_lshl_b32 s{sJ}, s{sJ}, 7"], 16,
         between_g1=dmaG(3) + dmaG(4) + dmaG(5), between_g0=p5pre + readG(0))
    stamp(A, 8)
    vWD6 = 219
    BASE6 = [48, 64, 80, 96, 144, 0, 16, 32, 112, 128, 48]
    def dmaD(st, tag="cond"):
        return [[f"s_add_u32 m0, s{sM1}, {BASE6[st]*1024 + m*1024}", f"s_add_u32 s{sT}, s{sDK}, {st*32768 + m*8192}",
                 f"buffer_load_dwordx4 v{vWD6}, s[{S_D}:{S_D+3}], s{sT} offen lds ;@{tag}"] for m in range(4)]
    p6addr = [f"v_lshrrev_b32 v{T+8}, 3, v0", f"v_and_b32 v{T+9}, 7, v0", f"v_lshrrev_b32 v{T+10}, 4, v0",
              f"v_lshlrev_b32 v{vWD6}, 1, v{T+10}", f"v_xor_b32 v{vWD6}, v{vWD6}, v{T+9}", f"v_lshlrev_b32 v{vWD6}, 4, v{vWD6}",
              f"v_lshl_add_u32 v{vWD6}, v{T+8}, 10, v{vWD6}",
              f"s_mov_b32 s{S_D}, s84", f"s_mov_b32 s{S_D+1}, s85", f"s_mov_b32 s{S_D+2}, {1376*1024}", f"s_mov_b32 s{S_D+3}, 0x20000",
              f"s_lshl_b32 s{sM1}, s{sW4}, 12", f"s_mul_i32 s{sDK}, s{sW4}, {11*32768}", f"s_and_b32 s{sT}, s{sHEAD}, 7", f"s_lshl_b32 s{sT}, s{sT}, 7",
              f"s_add_u32 s{sDK}, s{sDK}, s{sT}"]
    A(f"s_cmp_eq_u32 s{sG}, 0\ns_cbranch_scc1 k2_p5_g0")
    A("s_barrier"); A.extend(flat(dmaG(6)))
    A("s_waitcnt vmcnt(6)\ns_barrier"); A.extend(flat(dmaG(7)))
    A.extend([x.replace(f"v{T+8}", "v232").replace(f"v{T+9}", "v233").replace(f"v{T+10}", "v234") for x in p6addr])
    A("s_waitcnt vmcnt(0)\ns_barrier")
    for st in range(5): A.extend(flat(dmaD(st)))
    A("s_barrier")
    for st in range(5, 10): A.extend(flat(dmaD(st)))
    A("s_branch k2_p5_done")
    A.label("k2_p5_g0")
    def loadY(ks):
        r = YF + (ks % 16)*4
        return [f"s_add_u32 s{sT2}, s{sO2}, {(ks // 4)*4096}",
                f"buffer_load_dwordx4 v[{r}:{r+3}], v{vL16}, s[{S_E}:{S_E+3}], s{sT2} offen offset:{(ks % 4)*1024} sc1 ;@Y{ks}"]
    for ks in range(16): A.extend(loadY(ks))
    for ks in range(32):
        pre = []
        if ks in (5, 11, 23): pre.append("s_barrier")
        pre.append(f"@wait vm Y{ks}")
        mf = []
        for ct in range(6):
            cin = "0" if ks == 0 else v(ACC5 + ct*16, 16)
            mf.append([f"@wait lgkm RG{ks}_{ct}", f"{M32} {v(ACC5+ct*16,16)}, {v(WF5+(ks%2)*24+ct*4,4)}, {v(YF+(ks%16)*4,4)}, {cin}"])
        fills = {i: (readG(ks + 1, [i]) if ks < 31 else []) for i in range(6)}
        if 1 <= ks <= 16: fills[2] = fills[2] + loadY(ks + 15)
        A.extend(pre)
        A.extend(gaps(mf, fills))
    A("s_barrier")
    TT = WF5
    A(f"v_mov_b32 v{vGO+1}, s56")
    for tl in range(3):
        g0 = ACC5 + tl*16; u0 = ACC5 + (3 + tl)*16
        for r in range(16): A(f"v_mul_f32 v{TT+r}, v{g0+r}, v{g0+r}")
        for r in range(16): A(f"v_fma_f32 v{TT+r}, v{TT+r}, s57, v{vGO+1}")
        for r in range(16): A(f"v_mul_f32 v{TT+r}, v{TT+r}, v{g0+r}")
        for r in range(16): A(f"v_exp_f32 v{TT+r}, v{TT+r}")
        for r in range(16): A(f"v_mul_f32 v{g0+r}, v{g0+r}, v{u0+r}")
        for r in range(16): A(f"v_add_f32 v{TT+r}, 1.0, v{TT+r}")
        for r in range(16): A(f"v_rcp_f32 v{TT+r}, v{TT+r}")
        A("s_nop 0")
        for r in range(16): A(f"v_mul_f32 v{g0+r}, v{g0+r}, v{TT+r}")
        for r in range(8): A(f"v_cvt_pk_bf16_f32 v{u0+r}, v{g0+2*r}, v{g0+2*r+1}")
        A(f"s_add_u32 s{sT}, s{sO3}, {tl*131072}")
        for sp in range(2):
            A(f"buffer_store_dwordx4 {v(u0+4*sp,4)}, v{vGO}, s[{S_C}:{S_C+3}], s{sT} offen offset:{sp*512} sc1")
    A.label("k2_p5_done")
    stamp(A, 9)
    ACC6, AF6, WF6 = 16, 80, 176
    vWR6 = 232
    RES, GB = 208, 244
    vRO, vRD, vWW = 228, 229, 230
    PITCH = 272; PART = 64*PITCH
    p6pre = p6addr + [
        f"v_and_b32 v{T+8}, 15, v0", f"v_lshrrev_b32 v{T+8}, 2, v{T+8}", f"v_and_b32 v{T+9}, 1, v{T+10}",
        f"v_lshl_add_u32 v{T+8}, v{T+9}, 2, v{T+8}", f"v_lshrrev_b32 v{T+9}, 1, v{T+8}", f"v_lshrrev_b32 v{T+10}, 1, v{T+10}",
        f"v_lshl_add_u32 v{T+8}, v{T+10}, 4, v{T+8}", f"v_lshlrev_b32 v{vWR6}, 7, v{T+8}", f"v_lshl_add_u32 v{vWR6}, v{T+9}, 5, v{vWR6}",
        f"v_and_b32 v{T+8}, 3, v0", f"v_lshl_add_u32 v{vWR6}, v{T+8}, 3, v{vWR6}", f"v_add_u32 v{vWR6}, s{sM1}, v{vWR6}"]
    p6pre += [f"v_xor_b32 v{vWR6+t}, {32*t}, v{vWR6}" for t in range(1, 4)]
    p6pre += [f"v_add_u32 v{vWR6+4*bb+t}, {bb*65536}, v{vWR6+t}" for bb in (1, 2) for t in range(4)]
    p6pre += [f"s_lshl_b32 s{sMT4}, s{sBLK}, 1", f"s_bfe_u32 s{sT}, s{sHEAD}, 0x10003", f"s_add_u32 s{sMT4}, s{sMT4}, s{sT}",
              f"s_and_b32 s{sNT}, s{sHEAD}, 7",
              f"s_lshl_b32 s{sO1}, s{sMT4}, 12", f"s_mul_i32 s{sT}, s{sW4}, {11*131072}", f"s_add_u32 s{sO1}, s{sO1}, s{sT}",
              f"s_lshl_b32 s{sT}, s{sW4}, 3", f"v_lshrrev_b32 v{T+8}, 3, v0", f"v_add_u32 v{T+8}, s{sT}, v{T+8}", f"v_and_b32 v{T+9}, 7, v0",
              f"v_lshlrev_b32 v{vRO}, 10, v{T+8}", f"v_lshl_add_u32 v{vRO}, v{T+9}, 4, v{vRO}",
              f"v_lshrrev_b32 v{T+10}, 1, v{T+9}", f"v_lshlrev_b32 v{vRD}, 10, v{T+10}", f"v_lshl_add_u32 v{vRD}, v{T+8}, 4, v{vRD}",
              f"v_and_b32 v{T+10}, 1, v{T+9}", f"v_lshl_add_u32 v{vRD}, v{T+10}, 3, v{vRD}",
              f"s_add_u32 s{S_A}, s{S_KV}, {WS_X1}", f"s_addc_u32 s{S_A+1}, s{S_KV+1}, 0", f"s_mov_b32 s{S_A+2}, {2*MB}", f"s_mov_b32 s{S_A+3}, 0x20000",
              f"s_mov_b32 s{S_E}, s70", f"s_mov_b32 s{S_E+1}, s71", f"s_mov_b32 s{S_E+2}, {2*MB}", f"s_mov_b32 s{S_E+3}, 0x20000",
              f"s_lshl_b32 s{sO2}, s{sMT4}, 16", f"s_lshl_b32 s{sT}, s{sNT}, 12", f"s_add_u32 s{sT}, s{sT}, s{sO2}", f"s_add_u32 s{sT2}, s{sT}, 32768",
              f"buffer_load_dwordx2 {v(RES,2)}, v{vRD}, s[{S_A}:{S_A+3}], s{sT} offen sc1 ;@cond",
              f"buffer_load_dwordx2 {v(RES+2,2)}, v{vRD}, s[{S_A}:{S_A+3}], s{sT} offen offset:512 sc1 ;@cond",
              f"buffer_load_dwordx2 {v(RES+4,2)}, v{vRD}, s[{S_A}:{S_A+3}], s{sT2} offen sc1 ;@cond",
              f"buffer_load_dwordx2 {v(RES+6,2)}, v{vRD}, s[{S_A}:{S_A+3}], s{sT2} offen offset:512 sc1 ;@cond",
              f"s_lshl_b32 s{sT}, s{sNT}, 7", f"s_add_u32 s{sO2}, s{sO2}, s{sT}", f"s_add_u32 s{sO3}, s{sO2}, 32768",
              f"v_mul_u32_u24 v{vRD}, {PITCH}, v{T+8}", f"v_lshl_add_u32 v{vRD}, v{T+9}, 5, v{vRD}",
              f"v_and_b32 v{T+8}, 15, v0", f"v_mul_u32_u24 v{vWW}, {PITCH}, v{T+8}", f"v_lshrrev_b32 v{T+8}, 4, v0",
              f"v_lshl_add_u32 v{vWW}, v{T+8}, 4, v{vWW}", f"s_mul_i32 s{sT}, s{sW4}, {PART}", f"v_add_u32 v{vWW}, s{sT}, v{vWW}"]
    def readD(st):
        out = []
        for t in range(4):
            for rd in range(2):
                r = WF6 + (st % 2)*16 + t*4 + rd*2
                off = BASE6[st]*1024 + rd*1024
                out.append(f"ds_read_b64_tr_b16 v[{r}:{r+1}], v{vWR6 + 4*(off // 65536) + t} offset:{off % 65536} ;@RD{st}")
        return out
    sync([f"s_add_u32 s{sJ}, s{sBLK}, 88", f"s_lshl_b32 s{sJ}, s{sJ}, 7"], 16, between_g0=p6pre + readD(0))
    stamp(A, 10)
    A(f"s_cmp_lg_u32 s{sG}, 0\ns_cbranch_scc1 k2_p6_g1")
    def loadGf(st):
        out = []
        for Tt in range(4):
            r = AF6 + (st % 6)*16 + Tt*4
            out.append(([f"s_add_u32 s{sT2}, s{sO1}, {st*131072}"] if Tt == 0 else []) +
                       [f"buffer_load_dwordx4 v[{r}:{r+3}], v{vL16}, s[{S_C}:{S_C+3}], s{sT2} offen offset:{Tt*1024} sc1 ;@G{st}"])
        return out
    for st in range(5): A.extend(flat(loadGf(st)))
    for st in range(11):
        mf = []
        for t in range(4):
            for Tt in range(4):
                d = ACC6 + (t*4 + Tt)*4
                cin = "0" if st == 0 else v(d, 4)
                mf.append(f"{M16} {v(d,4)}, {v(WF6+(st%2)*16+t*4,4)}, {v(AF6+(st%6)*16+Tt*4,4)}, {cin}")
        fill = []
        if st == 9: fill.append("@wait vm D10")
        if st + 1 < 11: fill += readD(st + 1)
        if st + 5 < 11: fill += loadGf(st + 5)
        if st == 0: fill += dmaD(10, "D10")
        A(f"@wait vm G{st} lgkm RD{st}")
        A.extend(flat(interleave(mf, fill) if fill else mf))
    A.label("k2_p6_g1")
    A("s_barrier")
    A(f"s_cmp_lg_u32 s{sG}, 0\ns_cbranch_scc1 k2_p6_g1b\ns_nop 3")
    for t in range(4):
        for Tt in range(4):
            A(f"ds_write_b128 v{vWW}, {v(ACC6+(t*4+Tt)*4,4)} offset:{Tt*16*PITCH + t*64}")
    A("s_waitcnt lgkmcnt(0)")
    A.label("k2_p6_g1b")
    A("s_barrier")
    A(f"s_cmp_lg_u32 s{sG}, 0\ns_cbranch_scc1 k2_fin")
    PR = 16
    for ps in range(2):
        for w in range(4):
            for hh in range(2):
                A(f"ds_read_b128 {v(PR+(ps*4+w)*8+hh*4,4)}, v{vRD} offset:{w*PART + ps*32*PITCH + hh*16} ;@PR{ps}")
    for ps in range(2):
        A(f"@wait lgkm PR{ps}")
        bb = PR + ps*32
        for j in range(8):
            A(f"v_add_f32 v{bb+j}, v{bb+j}, v{bb+8+j}")
            A(f"v_add_f32 v{bb+16+j}, v{bb+16+j}, v{bb+24+j}")
        for j in range(8): A(f"v_add_f32 v{bb+j}, v{bb+j}, v{bb+16+j}")
        x = 96 + ps*8
        for j in range(4):
            A(f"v_lshlrev_b32 v{x+2*j}, 16, v{RES+ps*4+j}")
            A(f"v_and_b32 v{x+2*j+1}, 0xffff0000, v{RES+ps*4+j}")
        for j in range(8): A(f"v_fmac_f32 v{x+j}, v{bb+j}, v{GB+j}")
        for j in range(4): A(f"v_cvt_pk_bf16_f32 v{RES+ps*4+j}, v{x+2*j}, v{x+2*j+1}")
        A(f"buffer_store_dwordx4 {v(RES+ps*4,4)}, v{vRO}, s[{S_E}:{S_E+3}], s{sO2 if ps == 0 else sO3} offen")
    A("s_branch k2_fin")
    for (srd_, soff, tag, target) in spins:
        A(f"""
u_spin_{tag}:
s_mov_b32 s{sR}, 0x40000
u_spin2_{tag}:
s_sleep 8
buffer_load_dword v{t1}, v{9 if tag == 'PM' else t0}, s[{srd_}:{srd_+3}], {soff} offen sc1 ;@cond
s_waitcnt vmcnt(0)
v_readfirstlane_b32 s{sJ1}, v{t1}
{f"v_readlane_b32 s{sJ3}, v{t1}, 1" if tag == "PM" else ""}
{f"s_add_u32 s{sJ1}, s{sJ1}, s{sJ3}" if tag == "PM" else ""}
s_sub_u32 s{sR}, s{sR}, 1
s_cbranch_scc1 u_go_{tag}
s_cmp_lt_u32 s{sJ1}, {target}
s_cbranch_scc1 u_spin2_{tag}
s_branch u_go_{tag}
""")
    for lab, txt in slow_st:
        A(f"{lab}:\n{txt} sc1 ;@cond\ns_branch {lab}r")
    A.label("k2_stage")
    A(f"s_cmp_ge_u32 s{sDJ}, s{sNS}\ns_cbranch_scc1 k2_stage_wo")
    A.extend(flat(stage_parts()))
    A(f"s_setpc_b64 s[{sRET}:{sRET+1}]")
    A.label("k2_stage_wo")
    A.extend(wo_parts())
    A(f"s_setpc_b64 s[{sRET}:{sRET+1}]")
    for (p, unit, lab, ret) in slow_sites:
        A.label(lab)
        A("s_nop 7\ns_nop 7")
        A.extend(rowmax(p, vDEL))
        A(f"s_call_b64 s[{sRET}:{sRET+1}], k2_rescale")
        for e in range(unit*8, unit*8 + 8): A.extend(sm_elem(p, e))
        A("s_nop 0")
        e = unit*8 + 7
        A(f"v_add_f32 v{vTS}, v{vTS}, v{T + e % 4}")
        A(f"v_cvt_pk_bf16_f32 v{P + 8*p + e//2}, v{T + (e-1) % 4}, v{T + e % 4}")
        A(f"s_nop 1\ns_branch {ret}")
    A.label("k2_rescale")
    A(f"""
v_max_f32 v{vDEL}, 0, v{vDEL}
v_sub_f32 v{vF}, 0, v{vDEL}
v_exp_f32 v{vF}, v{vF}
""")
    for r in range(32): A(f"v_sub_f32 v{S+r}, v{S+r}, v{vDEL}")
    for r in range(16): A(f"v_sub_f32 v{NEGM+r}, v{NEGM+r}, v{vDEL}")
    for r in range(64): A(f"v_mul_f32 v{O+r}, v{O+r}, v{vF}")
    A(f"v_mul_f32 v{vL}, v{vL}, v{vF}\ns_nop 1\ns_setpc_b64 s[{sRET}:{sRET+1}]")
    A.label("k2_fin")
    stamp_flush(A, 0, 8, sW)
    A.label(f"{name}_end")
    A("s_endpgm")
    if WST and DIAG:
        for q, y in enumerate(WST[0][2:].split(",")):
            st = f"{CLK} s[{88+2*q}:{89+2*q}]"
            neg = y.startswith("-"); y = y.lstrip("-")
            idx = [i for i, l in enumerate(A.lines) if l == f"@wait vm {y}" or l == y + ":"]
            assert len(idx) == 1, (y, idx)
            A.lines.insert(idx[0] + (0 if neg else 1), st)
    A.lines = resolve_waits(A.lines)
    return name, A, desc(name, 256, 256), (256, 512, 160*1024)

def k35(which):
    A = Asm()
    name = f"k{which}_kernel"
    header(A, name)
    K3 = which == 3
    NSTEP = 32 if K3 else 11
    S_ACT, S_W, S_RES, S_MOD, S_O1, S_O2, S_ST, S_WG, S_WU, S_UB = 8, 12, 16, 20, 24, 28, 32, 36, 40, 44
    sW, sMT, sNT, sT, sT2, sAO, sWO, sLB, sCNT, sM0 = 48, 49, 50, 51, 52, 53, 54, 55, 56, 57
    vL16, vWD, vWR, vT, vT2, vT3, vTID = 1, 2, 3, 7, 8, 9, 10
    ACC, AF, WF = 16, 80, 160
    R = 4
    A(f"""
s_cmp_ge_u32 s2, 256
s_cbranch_scc1 {name}_end
""")
    stamp(A, 0)
    A(f"""
s_load_dwordx2 s[64:65], s[0:1], {ARG['wo'] if K3 else ARG['wd']}
s_load_dwordx2 s[66:67], s[0:1], 112
s_load_dwordx2 s[68:69], s[0:1], {ARG['x'] if K3 else ARG['out']}
s_load_dwordx4 s[72:75], s[0:1], {ARG['wg']}
v_mov_b32 v{vTID}, v0
v_lshrrev_b32 v1, 6, v0
v_and_b32 v0, 63, v0
s_and_b32 s{sT}, s2, 7
v_readfirstlane_b32 s{sW}, v1
s_lshr_b32 s{sT2}, s2, 3
s_and_b32 s{sNT}, s{sT2}, 7
s_lshr_b32 s{sT2}, s{sT2}, 3
s_lshl_b32 s{sMT}, s{sT}, 2
s_add_u32 s{sMT}, s{sMT}, s{sT2}
v_lshlrev_b32 v{vL16}, 4, v0
; W dma voffset: (l/8)*1024 + ((l%8) ^ ((l>>4)<<1))*16
v_lshrrev_b32 v{vT}, 3, v0
v_and_b32 v{vT2}, 7, v0
v_lshrrev_b32 v{vT3}, 4, v0
v_lshlrev_b32 v{vWD}, 1, v{vT3}
v_xor_b32 v{vWD}, v{vWD}, v{vT2}
v_lshlrev_b32 v{vWD}, 4, v{vWD}
v_lshl_add_u32 v{vWD}, v{vT}, 10, v{vWD}
; tr read addr: g=l/16, r=(l%16)/4, c=l%4: row=16(g>>1)+4(g&1)+r ; swz=((row>>1)&3) ; addr=row*128 + swz*32 + c*8 + wave*ring
v_and_b32 v{vT}, 15, v0
v_lshrrev_b32 v{vT}, 2, v{vT}             ; r
v_and_b32 v{vT2}, 1, v{vT3}
v_lshl_add_u32 v{vT}, v{vT2}, 2, v{vT}    ; 4(g&1)+r
v_lshrrev_b32 v{vT2}, 1, v{vT}            ; swz
v_lshrrev_b32 v{vT3}, 1, v{vT3}
v_lshl_add_u32 v{vT}, v{vT3}, 4, v{vT}    ; row
v_lshlrev_b32 v{vWR}, 7, v{vT}
v_lshl_add_u32 v{vWR}, v{vT2}, 5, v{vWR}
v_and_b32 v{vT}, 3, v0
v_lshl_add_u32 v{vWR}, v{vT}, 3, v{vWR}
s_mul_i32 s{sLB}, s{sW}, {(R+1)*4096}
v_add_u32 v{vWR}, s{sLB}, v{vWR}
v_xor_b32 v{vWR+1}, 32, v{vWR}
v_xor_b32 v{vWR+2}, 64, v{vWR}
v_xor_b32 v{vWR+3}, 96, v{vWR}
s_waitcnt lgkmcnt(0)
""")
    if K3:
        srd(A, S_ACT, 66, 16*MB, WS_CTX); srd(A, S_W, 64, 4*MB); srd(A, S_RES, 68, 2*MB)
        srd(A, S_O1, 66, 2*MB, WS_X1); srd(A, S_O2, 66, 2*MB, WS_Y); srd(A, S_ST, 66, 131072, WS_STAT)
        srd(A, S_WG, 72, 512*1376*2); srd(A, S_WU, 74, 512*1376*2); srd(A, S_UB, 66, 2*1376*8, WS_UB)
        TSTR, KSTR = 131072, 1024
    else:
        srd(A, S_ACT, 66, 43*131072, WS_G); srd(A, S_W, 64, 1376*512*2); srd(A, S_RES, 66, 2*MB, WS_X1)
        srd(A, S_O1, 68, 2*MB)
        TSTR, KSTR = 1024, 131072
    srd(A, S_MOD, 66, 16384 + 6144, WS_MOD)
    A(f"""
s_mul_i32 s{sAO}, s{sMT}, {4*TSTR}
s_mul_i32 s{sT}, s{sW}, {NSTEP*KSTR}
s_add_u32 s{sAO}, s{sAO}, s{sT}
s_mul_i32 s{sWO}, s{sW}, {NSTEP*32*1024}
s_lshl_b32 s{sT}, s{sNT}, 7
s_add_u32 s{sWO}, s{sWO}, s{sT}
""")
    def issue(st):
        out = []
        slot = st % (R + 1)
        for m in range(4):
            out.append([f"s_add_u32 m0, s{sLB}, {slot*4096 + m*1024}",
                        f"s_add_u32 s{sT}, s{sWO}, {st*32768 + m*8192}",
                        f"buffer_load_dwordx4 v{vWD}, s[{S_W}:{S_W+3}], s{sT} offen lds ;@W{st}"])
        for T in range(4):
            r = AF + slot*16 + T*4
            out.append([f"s_add_u32 s{sT2}, s{sAO}, {st*KSTR + T*TSTR}",
                        f"buffer_load_dwordx4 v[{r}:{r+3}], v{vL16}, s[{S_ACT}:{S_ACT+3}], s{sT2} offen ;@A{st}"])
        return out
    def readW(st):
        out = []
        for t in range(4):
            for rd in range(2):
                r = WF + (st % 2)*16 + t*4 + rd*2
                out.append(f"ds_read_b64_tr_b16 v[{r}:{r+1}], v{vWR+t} offset:{(st % (R+1))*4096 + rd*1024} ;@RW{st}")
        return out
    def flat(x): return [y for z in x for y in (z if isinstance(z, list) else [z])]
    for st in range(R): A.extend(flat(issue(st)))
    A("@wait vm W0")
    stamp(A, 1)
    A.extend(readW(0))
    for st in range(NSTEP):
        mf = []
        for t in range(4):
            for T in range(4):
                d = ACC + (t*4 + T)*4
                cin = "0" if st == 0 else v(d, 4)
                mf.append(f"{M16} {v(d,4)}, {v(WF+(st%2)*16+t*4,4)}, {v(AF+(st%(R+1))*16+T*4,4)}, {cin}")
        fill = []
        if st + R < NSTEP: fill += issue(st + R)
        if st + 1 < NSTEP: fill += [f"@wait vm W{st+1}"] + readW(st + 1)
        A(f"@wait vm A{st} lgkm RW{st}")
        A.extend(interleave(mf, fill) if fill else mf)
    stamp(A, 2)
    RES, GA, SC = 80, 88, 96
    vRO, vMO, vRD, vWRr = 11, 12, 13, 14
    A(f"""
v_lshrrev_b32 v{vT}, 3, v{vTID}           ; token (0..31)
v_and_b32 v{vT2}, 7, v{vTID}
v_lshlrev_b32 v{vRO}, 10, v{vT}
v_lshl_add_u32 v{vRO}, v{vT2}, 4, v{vRO}
v_lshlrev_b32 v{vMO}, 5, v{vT2}
s_lshl_b32 s{sAO}, s{sMT}, 16
s_lshl_b32 s{sT}, s{sNT}, 7
s_add_u32 s{sAO}, s{sAO}, s{sT}
s_add_u32 s{sWO}, s{sAO}, 32768
s_lshl_b32 s{sT}, s{sNT}, 8
s_add_u32 s{sT2}, s{sT}, {(2 if K3 else 5)*2048}
v_lshrrev_b32 v{vT3}, 1, v{vT2}
v_lshlrev_b32 v{vRD}, 10, v{vT3}
v_lshl_add_u32 v{vRD}, v{vT}, 4, v{vRD}
v_and_b32 v{vT3}, 1, v{vT2}
v_lshl_add_u32 v{vRD}, v{vT3}, 3, v{vRD}
s_lshl_b32 s{sCNT}, s{sMT}, 16
s_lshl_b32 s{sM0}, s{sNT}, 12
s_add_u32 s{sCNT}, s{sCNT}, s{sM0}
s_add_u32 s{sM0}, s{sCNT}, 32768
buffer_load_dwordx2 v[{RES}:{RES+1}], v{vRD}, s[{S_RES}:{S_RES+3}], s{sCNT} offen
buffer_load_dwordx2 v[{RES+2}:{RES+3}], v{vRD}, s[{S_RES}:{S_RES+3}], s{sCNT} offen offset:512
buffer_load_dwordx2 v[{RES+4}:{RES+5}], v{vRD}, s[{S_RES}:{S_RES+3}], s{sM0} offen
buffer_load_dwordx2 v[{RES+6}:{RES+7}], v{vRD}, s[{S_RES}:{S_RES+3}], s{sM0} offen offset:512
buffer_load_dwordx4 v[{GA}:{GA+3}], v{vMO}, s[{S_MOD}:{S_MOD+3}], s{sT2} offen
buffer_load_dwordx4 v[{GA+4}:{GA+7}], v{vMO}, s[{S_MOD}:{S_MOD+3}], s{sT2} offen offset:16
""")
    if K3:
        A(f"""
s_add_u32 s{sT2}, s{sT}, {4*2048}
buffer_load_dwordx4 v[{SC}:{SC+3}], v{vMO}, s[{S_MOD}:{S_MOD+3}], s{sT2} offen
buffer_load_dwordx4 v[{SC+4}:{SC+7}], v{vMO}, s[{S_MOD}:{S_MOD+3}], s{sT2} offen offset:16
""")
    PITCH = 272; PART = 64*PITCH; RB = 4*(R+1)*4096
    A(f"""
v_and_b32 v{vT3}, 15, v0
v_mul_u32_u24 v{vWRr}, {PITCH}, v{vT3}
v_lshrrev_b32 v{vT3}, 4, v0
v_lshl_add_u32 v{vWRr}, v{vT3}, 4, v{vWRr}
s_mul_i32 s{sT}, s{sW}, {PART}
s_add_u32 s{sT}, s{sT}, {RB}
v_add_u32 v{vWRr}, s{sT}, v{vWRr}
v_mul_u32_u24 v{vRD}, {PITCH}, v{vT}
v_lshl_add_u32 v{vRD}, v{vT2}, 5, v{vRD}
v_add_u32 v{vRD}, {RB}, v{vRD}
""")
    for t in range(4):
        for T in range(4):
            A(f"ds_write_b128 v{vWRr}, {v(ACC+(t*4+T)*4,4)} offset:{T*16*PITCH + t*64}")
    A("s_waitcnt lgkmcnt(0)\ns_barrier")
    PR = 16
    for ps in range(2):
        for w in range(4):
            for hh in range(2):
                r = PR + (ps*4 + w)*8 + hh*4
                A(f"ds_read_b128 {v(r,4)}, v{vRD} offset:{w*PART + ps*32*PITCH + hh*16} ;@P{ps}")
    A("s_waitcnt vmcnt(0)")
    X = 104; Y = 120; ST = 136; TM = 140
    for ps in range(2):
        A(f"@wait lgkm P{ps}")
        b = PR + ps*32
        for j in range(8):
            A(f"v_add_f32 v{b+j}, v{b+j}, v{b+8+j}")
            A(f"v_add_f32 v{b+16+j}, v{b+16+j}, v{b+24+j}")
        for j in range(8): A(f"v_add_f32 v{b+j}, v{b+j}, v{b+16+j}")
        x = X + ps*8
        for j in range(4):
            A(f"v_lshlrev_b32 v{x+2*j}, 16, v{RES+ps*4+j}")
            A(f"v_and_b32 v{x+2*j+1}, 0xffff0000, v{RES+ps*4+j}")
        for j in range(8): A(f"v_fmac_f32 v{x+j}, v{b+j}, v{GA+j}")
        for j in range(4): A(f"v_cvt_pk_bf16_f32 v{RES+ps*4+j}, v{x+2*j}, v{x+2*j+1}")
        A(f"buffer_store_dwordx4 {v(RES+ps*4,4)}, v{vRO}, s[{S_O1}:{S_O1+3}], s{sAO if ps == 0 else sWO} offen" + (" sc1" if K3 else ""))
    if K3:
        for ps in range(2):
            x = X + ps*8
            for j in range(4):
                A(f"v_lshlrev_b32 v{x+2*j}, 16, v{RES+ps*4+j}")
                A(f"v_and_b32 v{x+2*j+1}, 0xffff0000, v{RES+ps*4+j}")
            y = Y + ps*8
            for j in range(8): A(f"v_mul_f32 v{y+j}, v{x+j}, v{SC+j}")
            for j in range(4): A(f"v_cvt_pk_bf16_f32 v{y+j}, v{y+2*j}, v{y+2*j+1}")
            A(f"v_add_f32 v{ST+2*ps}, v{x}, v{x+1}")
            for j in range(2, 8): A(f"v_add_f32 v{ST+2*ps}, v{ST+2*ps}, v{x+j}")
        A(f"""
v_lshrrev_b32 v{vT3}, 1, v{vT2}
v_lshlrev_b32 v{vMO}, 10, v{vT3}
v_and_b32 v{vT3}, 1, v{vT2}
v_lshl_add_u32 v{vMO}, v{vT3}, 9, v{vMO}
v_lshl_add_u32 v{vMO}, v{vT}, 4, v{vMO}
s_lshl_b32 s{sT}, s{sMT}, 16
s_lshl_b32 s{sT2}, s{sNT}, 12
s_add_u32 s{sT}, s{sT}, s{sT2}
s_add_u32 s{sT2}, s{sT}, 32768
buffer_store_dwordx4 {v(Y,4)}, v{vMO}, s[{S_O2}:{S_O2+3}], s{sT} offen
buffer_store_dwordx4 {v(Y+8,4)}, v{vMO}, s[{S_O2}:{S_O2+3}], s{sT2} offen
""")
        def red8(regs):
            for pat in ("quad_perm:[1,0,3,2]", "quad_perm:[2,3,0,1]", "row_half_mirror"):
                A("s_nop 0")
                for r in regs: A(f"v_add_f32_dpp v{r}, v{r}, v{r} {pat} row_mask:0xf bank_mask:0xf")
        red8([ST, ST+2])
        for ps in range(2):
            x = X + ps*8
            A(f"v_mul_f32 v{ST+2*ps}, {0x3c800000}, v{ST+2*ps}")
            for j in range(8): A(f"v_sub_f32 v{x+j}, v{x+j}, v{ST+2*ps}")
            A(f"v_mul_f32 v{ST+2*ps+1}, v{x}, v{x}")
            for j in range(1, 8): A(f"v_fmac_f32 v{ST+2*ps+1}, v{x+j}, v{x+j}")
        red8([ST+1, ST+3])
        A(f"""
v_lshlrev_b32 v{vMO}, 6, v{vT}
v_cmp_eq_u32 vcc, 0, v{vT2}
s_lshl_b32 s{sT}, s{sMT}, 12
s_lshl_b32 s{sT2}, s{sNT}, 3
s_add_u32 s{sT}, s{sT}, s{sT2}
s_mov_b64 exec, vcc
buffer_store_dwordx2 {v(ST,2)}, v{vMO}, s[{S_ST}:{S_ST+3}], s{sT} offen
buffer_store_dwordx2 {v(ST+2,2)}, v{vMO}, s[{S_ST}:{S_ST+3}], s{sT} offen offset:2048
s_mov_b64 exec, -1
""")
        BF, UA, UW = 144, 160, 164
        A(f"""
s_cmp_ge_u32 s2, 172
s_cbranch_scc1 {name}_noub
s_cmp_ge_u32 s2, 86
s_cselect_b32 s{S_WG}, s{S_WU}, s{S_WG}
s_cselect_b32 s{S_WG+1}, s{S_WU+1}, s{S_WG+1}
s_cselect_b32 s{sT2}, 86, 0
s_sub_u32 s{sT2}, s2, s{sT2}
v_lshrrev_b32 v{vT}, 1, v0
v_mul_u32_u24 v{vT}, 2752, v{vT}
v_and_b32 v{vT2}, 1, v0
v_lshl_add_u32 v{vT}, v{vT2}, 4, v{vT}
s_mul_i32 s{sT}, s{sW}, {128*2752}
s_lshl_b32 s{sCNT}, s{sT2}, 5
s_add_u32 s{sT}, s{sT}, s{sCNT}
""")
        for m in range(4):
            A(f"s_add_u32 m0, s{sLB}, {m*1024}")
            A(f"s_add_u32 s{sCNT}, s{sT}, {m*32*2752}")
            A(f"buffer_load_dwordx4 v{vT}, s[{S_WG}:{S_WG+3}], s{sCNT} offen lds")
        A(f"""
v_and_b32 v{vT2}, 15, v0
v_lshrrev_b32 v{vT3}, 4, v0
v_lshlrev_b32 v{vT3}, 4, v{vT3}
v_lshlrev_b32 v{vMO}, 10, v{vT2}
v_sub_u32 v{vT3}, v{vT3}, v{vMO}
v_add_u32 v{vT3}, {16384 + 4*1024}, v{vT3}
v_mov_b32 v{vMO}, 0x100000
v_cmp_gt_u32 vcc, 2, v{vT2}
s_lshl_b32 s{sCNT}, s{sW}, 8
s_nop 0
v_cndmask_b32 v{vT3}, v{vMO}, v{vT3}, vcc
""")
        for m in range(4):
            A(f"buffer_load_dwordx4 {v(BF+4*m,4)}, v{vT3}, s[{S_MOD}:{S_MOD+3}], s{sCNT} offen offset:{m*64}")
        A(f"""
v_lshrrev_b32 v{vT}, 4, v0
v_lshlrev_b32 v{vT}, 8, v{vT}
v_lshl_add_u32 v{vT}, v{vT2}, 3, v{vT}    ; g*256 + (r*4+c)*8 = g*256 + r*32 + c*8
v_add_u32 v{vT}, s{sLB}, v{vT}
s_waitcnt vmcnt(0)
""")
        for m in range(4):
            for rd in range(2):
                A(f"ds_read_b64_tr_b16 {v(UW+4*m+2*rd,2)}, v{vT} offset:{m*1024 + rd*128}")
        A("s_waitcnt lgkmcnt(0)")
        for m in range(4):
            A(f"{M16} {v(UA,4)}, {v(UW+4*m,4)}, {v(BF+4*m,4)}, {'0' if m == 0 else v(UA,4)}")
        RB2 = RB + 4*PART
        A(f"""
s_lshl_b32 s{sT}, s{sW}, 10
s_add_u32 s{sT}, s{sT}, {RB2}
v_add_u32 v{vT}, s{sT}, v{vL16}
v_add_u32 v{vT3}, {RB2}, v{vL16}
s_nop 4
ds_write_b128 v{vT}, {v(UA,4)}
s_waitcnt lgkmcnt(0)
s_barrier
""")
        for w in range(4): A(f"ds_read_b128 {v(UW+4*w,4)}, v{vT3} offset:{w*1024}")
        A("s_waitcnt lgkmcnt(0)")
        for j in range(4):
            A(f"v_add_f32 v{UW+j}, v{UW+j}, v{UW+4+j}")
            A(f"v_add_f32 v{UW+8+j}, v{UW+8+j}, v{UW+12+j}")
        for j in range(4): A(f"v_add_f32 v{UW+j}, v{UW+j}, v{UW+8+j}")
        A(f"""
v_mul_u32_u24 v{vT}, {2*1376*4}, v{vT2}
v_lshrrev_b32 v{vT3}, 4, v0
v_lshl_add_u32 v{vT}, v{vT3}, 4, v{vT}
v_cndmask_b32 v{vT}, v{vMO}, v{vT}, vcc
s_lshl_b32 s{sT}, s2, 6
s_cmp_lg_u32 s{sW}, 0
s_cbranch_scc1 {name}_noub
buffer_store_dwordx4 {v(UW,4)}, v{vT}, s[{S_UB}:{S_UB+3}], s{sT} offen
""")
        A.label(f"{name}_noub")
    stamp_flush(A, which - 1, 4, sW)
    A.label(f"{name}_end")
    A("s_endpgm")
    A.lines = resolve_waits(A.lines)
    return name, A, desc(name, 256, 256), (256, 256, 4*(R+1)*4096 + 4*64*272 + 4096)


def k3():
    A = Asm()
    name = "k3_kernel"
    header(A, name)
    S_P, S_X, S_MOD, S_X1, S_H = 8, 12, 16, 20, 24
    sW, sT, sT2, sPO = 28, 29, 30, 31
    vPO, vXO, vMO, vT, vT2, vS, vQ, vLW, vLR = 1, 2, 3, 4, 5, 6, 7, 8, 9
    PP, XR, GA, SC, SH, F, ST = 12, 44, 48, 56, 64, 72, 80
    A(f"""
s_cmp_ge_u32 s2, 256
s_cbranch_scc1 {name}_end
""")
    stamp(A, 0)
    A(f"""
s_load_dwordx2 s[{S_X}:{S_X+1}], s[0:1], {ARG['x']}
s_load_dwordx2 s[32:33], s[0:1], 112
v_lshrrev_b32 v{vT}, 3, v0                ; piece 0..63
v_and_b32 v{vT2}, 7, v0                   ; token 0..7
v_lshlrev_b32 v{vPO}, 9, v{vT}
v_lshl_add_u32 v{vPO}, v{vT2}, 4, v{vPO}
v_lshrrev_b32 v{vS}, 1, v{vT}
v_lshlrev_b32 v{vS}, 4, v{vS}
v_and_b32 v{vQ}, 1, v{vT}
v_lshl_add_u32 v{vS}, v{vQ}, 2, v{vS}
v_lshlrev_b32 v{vMO}, 2, v{vS}
v_lshlrev_b32 v{vXO}, 10, v{vT2}
v_lshl_add_u32 v{vXO}, v{vS}, 1, v{vXO}
v_lshrrev_b32 v{vQ}, 6, v0
s_lshr_b32 s{sPO}, s2, 2
s_lshl_b32 s{sPO}, s{sPO}, 15
v_readfirstlane_b32 s{sW}, v{vQ}
s_and_b32 s{sT}, s2, 3
s_lshl_b32 s{sT}, s{sT}, 7
s_add_u32 s{sPO}, s{sPO}, s{sT}           ; tokblk*32K + (tok0%32)*16
v_lshlrev_b32 v{vLR}, 6, v{vT2}
v_lshl_add_u32 v{vLW}, v{vQ}, 3, v{vLR}
s_mov_b32 s{S_X+2}, {2*MB}
s_mov_b32 s{S_X+3}, 0x20000
s_waitcnt lgkmcnt(0)
""")
    srd(A, S_P, 32, 16*MB, WS_PART)
    for x in range(8):
        A(f"s_add_u32 s{sT}, s{sPO}, {x*2*MB}")
        A(f"buffer_load_dwordx4 {v(PP+4*x,4)}, v{vPO}, s[{S_P}:{S_P+3}], s{sT} offen ;@P{x}")
    srd(A, S_MOD, 32, 12288, WS_MOD)
    A(f"""
s_lshl_b32 s{sT}, s2, 13
buffer_load_dwordx2 {v(XR,2)}, v{vXO}, s[{S_X}:{S_X+3}], s{sT} offen
buffer_load_dwordx2 {v(XR+2,2)}, v{vXO}, s[{S_X}:{S_X+3}], s{sT} offen offset:16
s_movk_i32 s{sT}, 4096
s_movk_i32 s{sT2}, 8192
buffer_load_dwordx4 {v(GA,4)}, v{vMO}, s[{S_MOD}:{S_MOD+3}], s{sT} offen
buffer_load_dwordx4 {v(GA+4,4)}, v{vMO}, s[{S_MOD}:{S_MOD+3}], s{sT} offen offset:32 ;@GA
buffer_load_dwordx4 {v(SH,4)}, v{vMO}, s[{S_MOD}:{S_MOD+3}], s{sT} offen offset:2048
buffer_load_dwordx4 {v(SH+4,4)}, v{vMO}, s[{S_MOD}:{S_MOD+3}], s{sT} offen offset:2080
buffer_load_dwordx4 {v(SC,4)}, v{vMO}, s[{S_MOD}:{S_MOD+3}], s{sT2} offen
buffer_load_dwordx4 {v(SC+4,4)}, v{vMO}, s[{S_MOD}:{S_MOD+3}], s{sT2} offen offset:32 ;@SC
""")
    srd(A, S_X1, 32, 2*MB, WS_X1); srd(A, S_H, 32, 2*MB, WS_Y)
    for x in range(8):
        A(f"@wait vm P{x}")
        if x == 0: stamp(A, 1)
        for j in range(4):
            if x == 0:
                A(f"v_lshlrev_b32 v{F+2*j}, 16, v{PP+j}\nv_and_b32 v{F+2*j+1}, 0xffff0000, v{PP+j}")
            else:
                r = PP + 4*x + j
                A(f"v_lshlrev_b32 v{vT}, 16, v{r}\nv_and_b32 v{r}, 0xffff0000, v{r}\nv_add_f32 v{F+2*j}, v{F+2*j}, v{vT}\nv_add_f32 v{F+2*j+1}, v{F+2*j+1}, v{r}")
    A("@wait vm GA")
    X = PP
    for j in range(4): A(f"v_lshlrev_b32 v{X+2*j}, 16, v{XR+j}\nv_and_b32 v{X+2*j+1}, 0xffff0000, v{XR+j}")
    for j in range(8): A(f"v_fmac_f32 v{X+j}, v{F+j}, v{GA+j}")
    for j in range(4): A(f"v_cvt_pk_bf16_f32 v{XR+j}, v{X+2*j}, v{X+2*j+1}")
    A(f"buffer_store_dwordx4 {v(XR,4)}, v{vPO}, s[{S_X1}:{S_X1+3}], s{sPO} offen sc1")
    for j in range(4): A(f"v_lshlrev_b32 v{X+2*j}, 16, v{XR+j}\nv_and_b32 v{X+2*j+1}, 0xffff0000, v{XR+j}")
    def red(r):
        A(f"""s_nop 1
v_add_f32_dpp v{r}, v{r}, v{r} row_ror:8 row_mask:0xf bank_mask:0xf
v_mov_b32 v{vT}, v{r}
s_nop 1
v_permlane16_swap_b32 v{vT}, v{r}
s_nop 0
v_add_f32 v{r}, v{r}, v{vT}
v_mov_b32 v{vT}, v{r}
s_nop 1
v_permlane32_swap_b32 v{vT}, v{r}
s_nop 0
v_add_f32 v{r}, v{r}, v{vT}""")
    A(f"v_add_f32 v{vS}, v{X}, v{X+1}")
    for j in range(2, 8): A(f"v_add_f32 v{vS}, v{vS}, v{X+j}")
    red(vS)
    A(f"v_mul_f32 v{vS}, 0x3c800000, v{vS}")
    for j in range(8): A(f"v_sub_f32 v{F+j}, v{X+j}, v{vS}")
    A(f"v_mul_f32 v{vQ}, v{F}, v{F}")
    for j in range(1, 8): A(f"v_fmac_f32 v{vQ}, v{F+j}, v{F+j}")
    red(vQ)
    A(f"""
ds_write_b64 v{vLW}, v[{vS}:{vQ}]
s_waitcnt lgkmcnt(0)
s_barrier
""")
    for i in range(4): A(f"ds_read_b128 {v(ST+4*i,4)}, v{vLR} offset:{16*i}")
    A("s_waitcnt lgkmcnt(0)")
    A(f"v_add_f32 v{vS}, v{ST}, v{ST+2}")
    for i in range(2, 8): A(f"v_add_f32 v{vS}, v{vS}, v{ST+2*i}")
    A(f"v_mul_f32 v{vS}, 0x3e000000, v{vS}")
    A(f"v_add_f32 v{vQ}, v{ST+1}, v{ST+3}")
    for i in range(2, 8): A(f"v_add_f32 v{vQ}, v{vQ}, v{ST+2*i+1}")
    A(f"v_mov_b32 v{vT2}, 0")
    for i in range(8): A(f"v_sub_f32 v{vT}, v{ST+2*i}, v{vS}\nv_fmac_f32 v{vT2}, v{vT}, v{vT}")
    A(f"""
v_fmac_f32 v{vQ}, 0x42800000, v{vT2}
v_mov_b32 v{vT}, 0x3727c5ac
v_fmac_f32 v{vT}, 0x3b000000, v{vQ}
v_rsq_f32 v{vQ}, v{vT}
@wait vm SC
""")
    for j in range(8): A(f"v_sub_f32 v{X+j}, v{X+j}, v{vS}")
    for j in range(8): A(f"v_mul_f32 v{X+j}, v{X+j}, v{vQ}")
    for j in range(8): A(f"v_fma_f32 v{X+j}, v{X+j}, v{SC+j}, v{SH+j}")
    for j in range(4): A(f"v_cvt_pk_bf16_f32 v{F+j}, v{X+2*j}, v{X+2*j+1}")
    A(f"buffer_store_dwordx4 {v(F,4)}, v{vPO}, s[{S_H}:{S_H+3}], s{sPO} offen sc1")
    stamp_flush(A, 2, 3, sW)
    A.label(f"{name}_end")
    A("s_endpgm")
    A.lines = resolve_waits(A.lines)
    return name, A, desc(name, 96, 96), (256, 512, 1024)
def k5(): return k35(5)

def k4():
    A = Asm()
    name = "k4_kernel"
    header(A, name)
    S_Y, S_WG, S_WU, S_ST, S_UB, S_G = 8, 12, 16, 20, 24, 28
    sW, sMT, sNT, sT, sT2, sYO, sWO, sM0 = 48, 49, 50, 51, 52, 53, 54, 55
    vL16, vWD, vWR, vT, vT2, vT3, vMU, vRS, vUB, vGO = 1, 2, 5, 8, 9, 10, 11, 12, 13, 14
    ACC, YF, WF, STT = 16, 112, 176, 224
    NSL, RING, SLOT = 8, 6, 24576
    LDS_UB = RING*SLOT
    A(f"""
s_cmp_ge_u32 s2, 240
s_cbranch_scc1 {name}_end
""")
    stamp(A, 0)
    A(f"""
s_load_dwordx4 s[64:67], s[0:1], {ARG['wg']}
s_load_dwordx2 s[68:69], s[0:1], 112
v_lshrrev_b32 v1, 6, v0
v_and_b32 v0, 63, v0
s_and_b32 s{sT}, s2, 7
v_readfirstlane_b32 s{sW}, v1
s_lshr_b32 s{sT2}, s2, 3                  ; 0..29
s_and_b32 s{sMT}, s{sT2}, 1
s_lshl_b32 s{sT}, s{sT}, 1
s_add_u32 s{sMT}, s{sMT}, s{sT}
s_lshr_b32 s{sNT}, s{sT2}, 1
v_lshlrev_b32 v{vL16}, 4, v0
""")
    for i in range(3):
        A(f"""
v_add_u32 v{vT}, {i*64}, v0
v_mul_u32_u24 v{vT2}, 43691, v{vT}
v_lshrrev_b32 v{vT2}, 19, v{vT2}          ; /12
v_mul_u32_u24 v{vT3}, 12, v{vT2}
v_sub_u32 v{vT3}, v{vT}, v{vT3}
v_mul_u32_u24 v{vWD+i}, 2752, v{vT2}
v_lshl_add_u32 v{vWD+i}, v{vT3}, 4, v{vWD+i}
""")
    A(f"""
v_lshrrev_b32 v{vT}, 5, v0
v_and_b32 v{vT2}, 15, v0
v_lshrrev_b32 v{vT3}, 2, v{vT2}
v_lshl_add_u32 v{vT3}, v{vT}, 2, v{vT3}
v_mul_u32_u24 v{vWR}, 192, v{vT3}
v_and_b32 v{vT3}, 16, v0
v_lshl_add_u32 v{vWR}, v{vT3}, 1, v{vWR}
v_and_b32 v{vT3}, 3, v0
v_lshl_add_u32 v{vWR}, v{vT3}, 3, v{vWR}
v_add_u32 v{vWR+1}, {2*SLOT}, v{vWR}
v_add_u32 v{vWR+2}, {4*SLOT}, v{vWR}
v_lshlrev_b32 v{vUB}, 4, v{vT}
v_add_u32 v{vUB}, {LDS_UB}, v{vUB}
; G store voffset: ((l>>4)&1)*1024 + h*256 + (l%16)*16
v_and_b32 v{vT3}, 16, v0
v_lshlrev_b32 v{vGO}, 6, v{vT3}
v_lshl_add_u32 v{vGO}, v{vT}, 8, v{vGO}
v_lshl_add_u32 v{vGO}, v{vT2}, 4, v{vGO}
s_waitcnt lgkmcnt(0)
""")
    srd(A, S_WG, 64, 512*1376*2); srd(A, S_WU, 66, 512*1376*2)
    srd(A, S_Y, 68, 2*MB, WS_Y); srd(A, S_ST, 68, 131072, WS_STAT); srd(A, S_UB, 68, 2*1376*8, WS_UB); srd(A, S_G, 68, 43*131072, WS_G)
    A(f"""
s_lshl_b32 s{sYO}, s{sMT}, 2
s_add_u32 s{sYO}, s{sYO}, s{sW}           ; tokblk32
s_lshl_b32 s{sT}, s{sYO}, 11
s_lshl_b32 s{sYO}, s{sYO}, 15
v_and_b32 v{vT}, 31, v0
v_lshlrev_b32 v{vT}, 6, v{vT}
s_mul_i32 s{sWO}, s{sW}, {16*2752}
s_mul_i32 s{sT2}, s{sNT}, 192
s_add_u32 s{sWO}, s{sWO}, s{sT2}
s_mul_i32 s{sM0}, s{sW}, 3072
""")
    def loadY(ks):
        r = YF + (ks % 16)*4
        return [[f"s_add_u32 s{sT2}, s{sYO}, {(ks // 4)*4096}",
                 f"buffer_load_dwordx4 v[{r}:{r+3}], v{vL16}, s[{S_Y}:{S_Y+3}], s{sT2} offen offset:{(ks % 4)*1024} ;@Y{ks}"]]
    def dmaW(n):
        out = []
        for mat in range(2):
            sr = S_WG if mat == 0 else S_WU
            for i in range(3):
                out.append([f"s_add_u32 m0, s{sM0}, {(n % RING)*SLOT + mat*12288 + i*1024}",
                            f"s_add_u32 s{sT}, s{sWO}, {n*64*2752}",
                            f"buffer_load_dwordx4 v{vWD+i}, s[{sr}:{sr+3}], s{sT} offen lds ;@W{n}"])
        return out
    def flat(x): return [y for z in x for y in (z if isinstance(z, list) else [z])]
    def readW(ks):
        n = ks // 4; sl = n % RING
        out = []
        for ct in range(6):
            for rd in range(2):
                r = WF + (ks % 2)*24 + ct*4 + rd*2
                off = (sl % 2)*SLOT + (ct // 3)*12288 + ((ks % 4)*16 + rd*8)*192 + (ct % 3)*64
                out.append(f"ds_read_b64_tr_b16 v[{r}:{r+1}], v{vWR + sl//2} offset:{off} ;@RW{ks}_{ct}")
        return out
    A.extend(flat(dmaW(0)))
    for ks in range(4): A.extend(flat(loadY(ks)))
    A.extend(flat(dmaW(1)))
    for ks in range(4, 8): A.extend(flat(loadY(ks)))
    A("@wait vm W0\ns_barrier")
    stamp(A, 1)
    A.extend(readW(0))
    pend = {0: dmaW(2), 1: loadY(8) + loadY(9) + loadY(10) + loadY(11), 2: dmaW(3), 3: loadY(12) + loadY(13) + loadY(14) + loadY(15),
            4: dmaW(4), 6: dmaW(5), 8: dmaW(6), 12: dmaW(7)}
    for ks in range(32):
        pre = []
        if ks % 4 == 3 and ks < 31:
            pre += [f"@wait vm W{(ks+1)//4}", "s_barrier"]
        pre.append(f"@wait vm Y{ks}")
        mf = []
        for ct in range(6):
            cin = "0" if ks == 0 else v(ACC + ct*16, 16)
            mf.append([f"@wait lgkm RW{ks}_{ct}", f"{M32} {v(ACC+ct*16,16)}, {v(WF+(ks%2)*24+ct*4,4)}, {v(YF+(ks%16)*4,4)}, {cin}"])
        fill = (readW(ks + 1) if ks < 31 else []) + pend.get(ks, [])
        if 5 <= ks <= 20: fill += loadY(ks + 11)
        A.extend(pre)
        out = []
        per = -(-len(fill) // 6)
        for i, m in enumerate(mf):
            out += m + flat(fill[i*per:(i+1)*per])
        A.extend(out)
    stamp(A, 2)
    A(f"""
s_lshl_b32 s{sT}, s{sMT}, 3
s_lshl_b32 s{sT2}, s{sW}, 1
s_add_u32 s{sT}, s{sT}, s{sT2}
s_lshl_b32 s{sT}, s{sT}, 10               ; tokblk16*1024
s_mul_i32 s{sT2}, s{sNT}, {3*131072}
s_add_u32 s{sYO}, s{sT}, s{sT2}
s_nop 3
s_mov_b32 s56, 0xc0135761                 ; -2*log2e*sqrt(2/pi)
s_mov_b32 s57, 0xbdd2d3e8                 ; that * 0.044715
""")
    U = YF
    for tl in range(3):
        g0 = ACC + tl*16; u0 = ACC + (3 + tl)*16
        TT = WF
        for r in range(16): A(f"v_mul_f32 v{TT+r}, v{g0+r}, v{g0+r}")
        A(f"v_mov_b32 v{vT}, s56")
        for r in range(16): A(f"v_fma_f32 v{TT+r}, v{TT+r}, s57, v{vT}")
        for r in range(16): A(f"v_mul_f32 v{TT+r}, v{TT+r}, v{g0+r}")
        for r in range(16): A(f"v_exp_f32 v{TT+r}, v{TT+r}")
        for r in range(16): A(f"v_mul_f32 v{g0+r}, v{g0+r}, v{u0+r}")
        for r in range(16): A(f"v_add_f32 v{TT+r}, 1.0, v{TT+r}")
        for r in range(16): A(f"v_rcp_f32 v{TT+r}, v{TT+r}")
        A("s_nop 0")
        for r in range(16): A(f"v_mul_f32 v{g0+r}, v{g0+r}, v{TT+r}")
        for r in range(8): A(f"v_cvt_pk_bf16_f32 v{u0+r}, v{g0+2*r}, v{g0+2*r+1}")
        A(f"s_add_u32 s{sT}, s{sYO}, {tl*131072}")
        for sp in range(2):
            A(f"buffer_store_dwordx4 {v(u0+4*sp,4)}, v{vGO}, s[{S_G}:{S_G+3}], s{sT} offen offset:{sp*512} sc1")
    stamp_flush(A, 3, 4, sW)
    A.label(f"{name}_end")
    A("s_endpgm")
    A.lines = resolve_waits(A.lines)
    return name, A, desc(name, 256, 256), (240, 256, RING*SLOT + 4096)

KERNELS = [k2]

def build(kernels=None):
    ks = [k() for k in (kernels or KERNELS)]
    hdr = open("cdna_kernels/" + NAME + ".s.ref").read().split("; Override launch")[0]
    out = hdr
    for name, A, d, (grid, blk, lds) in ks:
        if len(ks) == 1 and not DIAG: out += f"; @launch grid=({grid},1,1) block=({blk},1,1) lds={lds}\n"
        else: out += f"; @launch kernel={name} grid=({grid},1,1) block=({blk},1,1) lds={lds}\n"
    out += '.amdgcn_target "amdgcn-amd-amdhsa--gfx950"\n.text\n'
    wsb = [int(x[2:]) for x in ABL if x.startswith("ws")]
    for name, A, d, _ in ks:
        if wsb:
            import re
            reg = None
            for i, l in enumerate(A.lines):
                m = re.match(r"s_load_dwordx2 s\[(\d+):\d+\], s\[0:1\], 112", l)
                if m and reg is None: reg = int(m.group(1))
                if reg is not None and l.startswith("s_waitcnt lgkmcnt(0)"):
                    A.lines[i+1:i+1] = [f"s_add_u32 s{reg}, s{reg}, {wsb[0]*MB}", f"s_addc_u32 s{reg+1}, s{reg+1}, 0"]
                    break
        pr = check_hazards(A.lines)
        out += A.text()
    out += 'text_end:\n.section .rodata,"a"\n'
    for name, A, d, _ in ks:
        out += d
    return out

if __name__ == "__main__":
    if "diag" in sys.argv[2:]: DIAG = True
    if "cyc" in sys.argv[2:]: CLK = "s_memtime"
    ABL = {x[4:] for x in sys.argv[2:] if x.startswith("abl:")}
    txt = build()
    path = sys.argv[1] if len(sys.argv) > 1 else "cdna_kernels/" + NAME + ".s"
    open(path, "w").write(txt)
    print("wrote", path, len(txt))
```
